```python
import torch

def _softmax(x, axis=-1):
    return torch.softmax(x, dim=axis)
def _gelu(x):
    return torch.nn.functional.gelu(x, approximate="tanh")
def _silu(x):
    return torch.nn.functional.silu(x)
def _sigmoid(x):
    return torch.sigmoid(x)
def _layernorm(x, axis=-1, eps=1e-5):
    m = x.mean(dim=axis, keepdim=True)
    v = x.var(dim=axis, keepdim=True, unbiased=False)
    return (x - m) / torch.sqrt(v + eps)
def _scatter_add(tgt, idx, src, axis=0):
    return tgt.clone().index_add_(axis, idx, src)
def _segment_sum(src, seg, n):
    out = torch.zeros((n,) + src.shape[1:], dtype=src.dtype)
    return out.index_add_(0, seg, src)
def _pad(x, pw):
    flat = tuple(v for pair in reversed(pw) for v in pair)
    return torch.nn.functional.pad(x, flat)

kernel_name = 'recurrent_scan__gqa_block_cached__moe_arch_mod__prompt'

def setup_inputs():

    _w = (lambda a: (lambda t: t.to(torch.bfloat16) if t.is_floating_point() else t)(torch.as_tensor(a)))
    def _A_setup():
        B, Sq, D = 1, 2048, 576
        Hq, Hkv, Sk, Dh = 32, 16, 2048, 128
        assert Hq % Hkv == 0, (Hq, Hkv)
        return {
            "x": _w((lambda *s: torch.randn(*s, dtype=torch.bfloat16) * 0.05)(B, Sq, D)),
            "k_cache": _w((lambda *s: torch.randn(*s, dtype=torch.bfloat16) * 0.8)(B, Hkv, Sk, Dh)),
            "v_cache": _w((lambda *s: torch.randn(*s, dtype=torch.bfloat16) * 0.2)(B, Hkv, Sk, Dh)),
            "wq": _w((lambda *s: torch.randn(*s, dtype=torch.bfloat16) * 0.8)(D, Hq * Dh) * (D ** -0.5)),
            "wo": _w((lambda *s: torch.randn(*s, dtype=torch.bfloat16) * 0.2)(Hq * Dh, D) * ((Hq * Dh) ** -0.5)),
        }
    _A_in = _A_setup()

    def _B_setup():
        B, S, D, F, C = 1, 2048, 576, 4608, 8
        return {
            "x": _w((lambda *s: torch.randn(*s, dtype=torch.bfloat16) * 0.05)(B, S, D)),
            "w_r": _w((lambda *s: torch.randn(*s, dtype=torch.bfloat16) * 0.2)(D)),
            "w_gate": _w((lambda *s: torch.randn(*s, dtype=torch.bfloat16) * 0.1)(D, F)),
            "w_up": _w((lambda *s: torch.randn(*s, dtype=torch.bfloat16) * 0.1)(D, F)),
            "w_down": _w((lambda *s: torch.randn(*s, dtype=torch.bfloat16) * 0.1)(F, D)),
        }
    _B_in = _B_setup()

    return {
        "A_x": _A_in["x"],
        "A_k_cache": _A_in["k_cache"],
        "A_v_cache": _A_in["v_cache"],
        "A_wq": _A_in["wq"],
        "A_wo": _A_in["wo"],
        "B_x": _B_in["x"],
        "B_w_r": _B_in["w_r"],
        "B_w_gate": _B_in["w_gate"],
        "B_w_up": _B_in["w_up"],
        "B_w_down": _B_in["w_down"],
    }

def reference(A_x, A_k_cache, A_v_cache, A_wq, A_wo, B_x, B_w_r, B_w_gate, B_w_up, B_w_down):
    def _A_ref(x, k_cache, v_cache, wq, wo):
        B, Sq, D = x.shape
        Hq, Dh = 32, 128
        Hkv = k_cache.shape[1]
        rep = Hq // Hkv
        q = (lambda x, *d: x.permute(*d))((x @ wq).reshape(B, Sq, Hq, Dh), 0, 2, 1, 3)
        k = (lambda x, n, axis: torch.repeat_interleave(x, n, dim=axis))(k_cache, rep, axis=1)
        v = (lambda x, n, axis: torch.repeat_interleave(x, n, dim=axis))(v_cache, rep, axis=1)
        scores = torch.einsum("bhqd,bhkd->bhqk", q, k) * (Dh ** -0.5)
        p = _softmax(scores, axis=-1)
        o = torch.einsum("bhqk,bhkd->bhqd", p, v)
        return (lambda x, *d: x.permute(*d))(o, 0, 2, 1, 3).reshape(B, Sq, Hq * Dh) @ wo

    def _B_ref(x, w_r, w_gate, w_up, w_down):
        B, S, D = x.shape
        C = 8
        r = x @ w_r
        idx = torch.argsort(-r, axis=-1)[:, :C]
        idx_e = (lambda x, n, axis: torch.repeat_interleave(x, n, dim=axis))(idx.reshape(B, C, 1), D, axis=2)
        x_sel = (lambda x, i, axis: torch.take_along_dim(x, i, dim=axis))(x, idx_e, axis=1)
        g = _silu(x_sel @ w_gate)
        u = x_sel @ w_up
        y = (g * u) @ w_down
        r_sel = _sigmoid((lambda x, i, axis: torch.take_along_dim(x, i, dim=axis))(r, idx, axis=1))
        y = y * r_sel.reshape(B, C, 1)
        b_off = (torch.arange(B) * S).reshape(B, 1)
        flat_idx = (idx + b_off).reshape(B * C)
        zero = (x * 0.0).reshape(B * S, D)
        upd = _scatter_add(zero, flat_idx, y.reshape(B * C, D), axis=0)
        return x + upd.reshape(B, S, D)

    x = A_x
    xn = _layernorm(x, axis=-1)
    s = _A_ref(xn, A_k_cache, A_v_cache, A_wq, A_wo)
    g = _silu(_B_ref(xn, B_w_r, B_w_gate, B_w_up, B_w_down))
    return x + s * g
```

```python
class Em:
    def __init__(self):
        self.L = []
        self.vm = 0
        self.ds = 0
        self.ds_done = -1
        self.ldmap = {}
        self.minN = 99
    def e(self, s):
        for line in s.split("\n"):
            line = line.strip()
            if line:
                self.L.append(line)
    def c(self, s):
        self.L.append("; " + s)
    def label(self, name):
        self.L.append(name + ":")
    def vmem(self, s):
        self.e(s); self.vm += 1; return self.vm - 1
    def dsop(self, s):
        self.e(s); self.ds += 1; return self.ds - 1
    def ds_load(self, s):
        import re
        m = re.match(r"ds_read\S* ([av])\[(\d+):(\d+)\]", s)
        idx = self.dsop(s)
        for r in range(int(m.group(2)), int(m.group(3)) + 1):
            self.ldmap[m.group(1) + str(r)] = idx
    def ds_all_done(self):
        self.e("s_waitcnt lgkmcnt(0)"); self.ds_done = self.ds - 1
    def need(self, regs, loose=8):
        idx = max([self.ldmap.get(r, -1) for r in regs] + [-1])
        if idx > self.ds_done:
            n = min(self.ds - 1 - idx, loose)
            self.minN = min(self.minN, self.ds - 1 - idx)
            self.e(f"s_waitcnt lgkmcnt({n})")
            self.ds_done = self.ds - 1 - n
    def mfma(self, s):
        import re
        regs = []
        ops = s.split(None, 1)[1].split(",")
        for o in ops[1:3]:
            m = re.match(r"\s*([av])\[(\d+):(\d+)\]", o)
            if m: regs += [m.group(1) + str(r) for r in range(int(m.group(2)), int(m.group(3)) + 1)]
        self.need(regs)
        self.e(s)
    def wait_vm(self, idx):
        n = self.vm - 1 - idx
        assert n >= 0
        self.e(f"s_waitcnt vmcnt({min(n, 63)})")
    def wait_ds(self, idx):
        n = self.ds - 1 - idx
        assert n >= 0
        self.e(f"s_waitcnt lgkmcnt({min(n, 15)})")
    def text(self):
        return "\n".join(self.L) + "\n"

def vr(a, n=1):
    return f"v{a}" if n == 1 else f"v[{a}:{a+n-1}]"
def ar(a, n=1):
    return f"a{a}" if n == 1 else f"a[{a}:{a+n-1}]"
def sr(a, n=1):
    return f"s{a}" if n == 1 else f"s[{a}:{a+n-1}]"

def srd(em, d, lo, hi, size):
    em.e(f"s_mov_b32 s{d}, s{lo}")
    em.e(f"s_and_b32 s{d+1}, s{hi}, 0xffff")
    em.e(f"s_mov_b32 s{d+2}, {size if isinstance(size, str) else hex(size)}")
    em.e(f"s_mov_b32 s{d+3}, 0x00020000")

def kernel_head(em, name):
    em.e(f".globl {name}")
    em.e(".p2align 8")
    em.e(f".type {name},@function")
    em.label(name)

def kernel_desc(name, vgpr, sgpr, accum):
    return (f".amdhsa_kernel {name}\n"
            f"  .amdhsa_next_free_vgpr {vgpr}\n"
            f"  .amdhsa_next_free_sgpr {sgpr}\n"
            f"  .amdhsa_accum_offset {accum}\n"
            f"  .amdhsa_group_segment_fixed_size 0\n"
            f"  .amdhsa_kernarg_size 104\n"
            f"  .amdhsa_user_sgpr_count 2\n"
            f"  .amdhsa_user_sgpr_kernarg_segment_ptr 1\n"
            f"  .amdhsa_system_sgpr_workgroup_id_x 1\n"
            f"  .amdhsa_float_denorm_mode_32 3\n"
            f".end_amdhsa_kernel\n")

WS_XNF = 0x0
WS_R = 0x240000
WS_MOE = 0x250000
WS_FLAGS = 0x260000
WS_OF = 0x400000
WS_PART = 0x1400000
WS_YP = 0x2000000
WS_WOF = 0x1A00000
WS_PROF = 0x3000000
WS_SIZE = 0x8000000

KA_X, KA_K, KA_V, KA_WQ, KA_WO, KA_BX, KA_WR, KA_WG, KA_WU, KA_WD, KA_OUT, KA_DBG, KA_WS = [8 * i for i in range(13)]
WS_STAT = 0x248000

def code_prefetch(em, start_label, end_label, wg_s, wave_s, lane_v, dst_v, tmp_v, s0, uniq, forward=False):
    e = em.e
    e(f"s_getpc_b64 s[{s0}:{s0+1}]")
    em.label(f"PC_{uniq}")
    if forward:
        e(f"s_add_u32 s{s0}, s{s0}, {start_label}-PC_{uniq}\ns_addc_u32 s{s0+1}, s{s0+1}, 0")
    else:
        e(f"s_sub_u32 s{s0}, s{s0}, PC_{uniq}-{start_label}\ns_subb_u32 s{s0+1}, s{s0+1}, 0")
    e(f"s_lshr_b32 s{s0+2}, s{wg_s}, 3\ns_lshl_b32 s{s0+2}, s{s0+2}, 2\ns_add_u32 s{s0+2}, s{s0+2}, s{wave_s}")
    e(f"s_min_u32 s{s0+2}, s{s0+2}, (({end_label}-{start_label})>>10)-1\ns_lshl_b32 s{s0+2}, s{s0+2}, 10")
    e(f"v_lshlrev_b32 v{tmp_v}, 4, v{lane_v}\nv_add_u32 v{tmp_v}, s{s0+2}, v{tmp_v}")
    return em.vmem(f"global_load_dwordx4 v[{dst_v}:{dst_v+3}], v{tmp_v}, s[{s0}:{s0+1}]")
```

```python
from asmlib import *

def dpp_reduce(em, v, t, op="v_add_f32"):
    for rot in (8, 4, 2, 1):
        em.e("s_nop 1")
        em.e(f"{op}_dpp v{t}, v{v}, v{v} row_ror:{rot} row_mask:0xf bank_mask:0xf")
        v, t = t, v
    return v

def bf16r(em, dst, src):
    em.e(f"v_cvt_pk_bf16_f32 v{dst}, v{src}, v{src}")
    em.e(f"v_lshlrev_b32 v{dst}, 16, v{dst}")

def k1(name="k1_ln_kernel"):
    em = Em()
    kernel_head(em, name)
    em.e("s_cmp_ge_u32 s2, 256\ns_cbranch_scc1 K1_END")
    em.e(f"s_load_dwordx2 s[4:5], s[0:1], {KA_X}")
    em.e(f"s_load_dwordx2 s[6:7], s[0:1], {KA_WR}")
    em.e(f"s_load_dwordx2 s[20:21], s[0:1], {KA_WS}")
    em.e("v_and_b32 v1, 15, v0")
    em.e("v_lshrrev_b32 v2, 4, v0")
    em.e("s_lshl_b32 s3, s2, 3")
    em.e("v_add_u32 v2, s3, v2")
    em.e("v_mul_u32_u24 v3, 0x480, v2")
    em.e("v_lshl_add_u32 v3, v1, 3, v3")
    em.e("v_lshlrev_b32 v4, 3, v1")
    em.e("s_waitcnt lgkmcnt(0)")
    srd(em, 8, 4, 5, 2048 * 1152)
    srd(em, 12, 6, 7, 1152)
    srd(em, 16, 20, 21, WS_SIZE)
    X, W, F = 10, 28, 50
    for i in range(9):
        em.e(f"buffer_load_dwordx2 v[{X+2*i}:{X+2*i+1}], v3, s[8:11], 0 offen offset:{i*128}")
    for i in range(9):
        em.e(f"buffer_load_dwordx2 v[{W+2*i}:{W+2*i+1}], v4, s[12:15], 0 offen offset:{i*128}")
    em.e("v_lshrrev_b32 v5, 4, v2")
    em.e("v_mul_u32_u24 v5, 0x4800, v5")
    em.e("v_lshrrev_b32 v6, 3, v1\nv_lshlrev_b32 v6, 10, v6\nv_add_u32 v5, v5, v6")
    em.e("v_and_b32 v6, 3, v1\nv_lshlrev_b32 v6, 4, v6\nv_and_b32 v7, 15, v2\nv_add_u32 v6, v6, v7\nv_lshlrev_b32 v6, 4, v6\nv_add_u32 v5, v5, v6")
    em.e("v_bfe_u32 v6, v1, 2, 1\nv_lshlrev_b32 v6, 3, v6\nv_add_u32 v5, v5, v6")
    if WS_XNF: em.e(f"v_add_u32 v5, {hex(WS_XNF)}, v5")
    em.e(f"v_lshlrev_b32 v8, 2, v2\nv_add_u32 v8, {hex(WS_R)}, v8")
    em.e("s_mov_b32 s22, 0x3ae38e39")
    em.e("s_mov_b32 s23, 0x3727c5ac")
    em.e("s_mov_b32 s24, 0xffff0000")
    em.e("s_waitcnt vmcnt(9)")
    for i in range(18):
        em.e(f"v_lshlrev_b32 v{F+2*i}, 16, v{X+i}")
        em.e(f"v_and_b32 v{F+2*i+1}, s24, v{X+i}")
    em.e(f"v_add_f32 v90, v{F}, v{F+1}\nv_add_f32 v91, v{F+2}, v{F+3}")
    for i in range(4, 36, 2):
        em.e(f"v_add_f32 v90, v90, v{F+i}\nv_add_f32 v91, v91, v{F+i+1}")
    em.e("v_add_f32 v90, v90, v91")
    dpp_reduce(em, 90, 91)
    em.e("v_mul_f32 v90, s22, v90")
    em.e(f"v_sub_f32 v92, v{F}, v90\nv_mul_f32 v93, v92, v92\nv_sub_f32 v92, v{F+1}, v90\nv_mul_f32 v94, v92, v92")
    for i in range(2, 36, 2):
        em.e(f"v_sub_f32 v92, v{F+i}, v90\nv_sub_f32 v95, v{F+i+1}, v90\nv_fmac_f32 v93, v92, v92\nv_fmac_f32 v94, v95, v95")
    em.e("v_add_f32 v93, v93, v94")
    dpp_reduce(em, 93, 94)
    em.e("v_mul_f32 v93, s22, v93")
    bf16r(em, 90, 90)
    bf16r(em, 93, 93)
    em.e("v_add_f32 v93, s23, v93")
    bf16r(em, 93, 93)
    em.e("v_sqrt_f32 v93, v93\ns_nop 0")
    bf16r(em, 93, 93)
    em.e("v_rcp_f32 v94, v93\ns_nop 0")
    em.e("v_mov_b32 v96, 0")
    em.e("s_waitcnt vmcnt(0)")
    for i in range(18):
        a, b = F + 2 * i, F + 2 * i + 1
        em.e(f"v_sub_f32 v{a}, v{a}, v90\nv_sub_f32 v{b}, v{b}, v90")
        em.e(f"v_cvt_pk_bf16_f32 v97, v{a}, v{b}")
        em.e(f"v_lshlrev_b32 v{a}, 16, v97\nv_and_b32 v{b}, s24, v97")
        em.e(f"v_mul_f32 v98, v{a}, v94\nv_mul_f32 v99, v{b}, v94")
        em.e(f"v_fma_f32 v{a}, -v98, v93, v{a}\nv_fma_f32 v{b}, -v99, v93, v{b}")
        em.e(f"v_fmac_f32 v98, v{a}, v94\nv_fmac_f32 v99, v{b}, v94")
        em.e(f"v_cvt_pk_bf16_f32 v{X+i}, v98, v99")
        em.e(f"v_dot2_f32_bf16 v96, v{X+i}, v{W+i}, v96")
    em.e("s_cmp_eq_u32 s2, 0\ns_cbranch_scc0 K1_NOZ")
    em.e(f"v_lshlrev_b32 v6, 3, v0\nv_add_u32 v6, {hex(WS_FLAGS)}, v6\nv_mov_b32 v100, 0\nv_mov_b32 v101, 0")
    em.e("buffer_store_dwordx2 v[100:101], v6, s[16:19], 0 offen")
    em.label("K1_NOZ")
    for i in range(9):
        em.e(f"s_movk_i32 s25, {i*2048}")
        em.e(f"buffer_store_dwordx2 v[{X+2*i}:{X+2*i+1}], v5, s[16:19], s25 offen")
    dpp_reduce(em, 96, 97)
    bf16r(em, 96, 96)
    em.e("v_cmp_eq_u32 vcc, 0, v1")
    em.e("s_and_saveexec_b64 s[26:27], vcc")
    em.e("s_cbranch_execz K1_END")
    em.e("buffer_store_dword v96, v8, s[16:19], 0 offen")
    em.label("K1_END")
    em.e("s_endpgm")
    return em.text(), kernel_desc(name, 104, 32, 104), f"; @launch kernel={name} grid=(256,1,1) block=(128,1,1) lds=0"
```

```python
from asmlib import *
import struct

S0 = 8
P0 = 72
NM = 136
Q0 = 152
KA = 216
VA = 220
DK = 228
DV = 232
WQA = 234
DW = 238
XB = 240
L16 = 244
TMP = 246
QACC = 8
AO = 0
AL = 128
AK = 144
AV = 176
AONE = 208
LDS_K = 0
LDS_V = 65536
LDS_X = 131072
LDS_TOTAL = 163840
SRD_K, SRD_V, SRD_WQ, SRD_WS, SRD_OF = 8, 12, 16, 20, 24
S_W4K = 30
S_MX = 31
S_KOFF = 32
S_LOOP = 33
S_WQOFF = 34
S_HEAD = 35
S_QB = 36
S_WAVE = 37
S_OFB = 38
S_VOFF = 39
S_C = 40
S_THR = 42
S_PASS = 43
S_X4 = 44
S_T = 50
S_T2 = 51

MF = "v_mfma_f32_16x16x32_bf16"
PV2 = [False]
AV2 = 212
SUMMODE = ['mfma']
CVTMODE = ['cvt']
def f2u(f): return struct.unpack("<I", struct.pack("<f", f))[0]

def Sreg(b, qs, kt): return S0 + b * 32 + qs * 8 + kt * 4
def Preg(b, qs): return P0 + b * 16 + qs * 4
def Qf(qs, s): return Q0 + (qs * 4 + s) * 4
def Oacc(T, qs): return AO + (T * 4 + qs) * 4
def Kf(kt, s): return AK + (kt * 4 + s) * 4
def Vf(T): return AV + T * 4

ORDER = {"wait": -1, "ds": 0, "vmem": 0, "salu": 1, "cvt": 2, "valu": 2, "exp": 3}
def cost(it): return 8 if it[0] == "exp" else 4 * (1 + it[1].count("\n"))

def pack(n, streams, prio, budget=8):
    out = [[] for _ in range(n + 1)]
    pos = {s: 0 for s in streams}
    for g in range(n + 1):
        used = 0
        b = budget if g < n else 10 ** 6
        progress = True
        while progress:
            progress = False
            for s in prio:
                if s not in streams or pos[s] >= len(streams[s]): continue
                it = streams[s][pos[s]]
                if it[2] > g or (used + cost(it) > b and not (used == 0 and cost(it) > b)): continue
                out[g].append(it); used += cost(it); pos[s] += 1; progress = True
                break
    for s in streams: assert pos[s] == len(streams[s]), s
    res = []
    for g in out:
        g2 = sorted(g, key=lambda it: ORDER[it[0]] if it[0] != "salu" else 0)
        res.append(g2)
    return res

TAGS = {}
def emit_item(em, it, prev):
    x = it[3] if len(it) > 3 else {}
    if x.get("needs"): em.need(x["needs"])
    if prev is not None and prev[0] == "salu" and "m0" in prev[1] and it[0] == "vmem" and not x.get("needs"):
        em.e("s_nop 0")
    if it[0] == "ds": em.ds_load(it[1])
    elif it[0] == "vmem":
        idx = em.vmem(it[1])
        if x.get("tag") is not None: TAGS[x["tag"]] = idx
    else: em.e(it[1])
def emit_packed(em, mf, packed):
    n = len(mf)
    for g in range(n):
        em.mfma(mf[g])
        prev = None
        for it in packed[g]:
            emit_item(em, it, prev); prev = it
    prev = None
    for it in packed[n]:
        emit_item(em, it, prev); prev = it

def emit_step(em, u, do_qk=True, do_pv=True, do_sm=True, first_pv=False, ld_k=True, ld_v=True, dma=(), order="A", pre=None, post=(), xds=()):
    bw = (u + 1) & 1; br = u & 1; pr = (u + 1) & 1
    kslot = ((u + 2) >> 1) & 3; khalf = (u + 2) & 1
    vslot = (u >> 1) & 3; vhalf = u & 1
    koff = LDS_K + kslot * 16384 + khalf * 8192
    voff = vslot * 16384 + vhalf * 8192
    mf = []; frees = []
    def qk(kt, s, qs):
        D = Sreg(bw, qs, kt)
        C = vr(NM + qs * 4, 4) if s == 0 else vr(D, 4)
        return f"{MF} {vr(D,4)}, {ar(Kf(kt,s),4)}, {vr(Qf(qs,s),4)}, {C}"
    def pv(T, qs):
        O = Oacc(T, qs)
        return f"{MF} {ar(O,4)}, {ar(Vf(T),4)}, {vr(Preg(pr,qs),4)}, {'0' if first_pv else ar(O,4)}"
    def sm(qs):
        Lr = AL + qs * 4
        return f"{MF} {ar(Lr,4)}, {ar(AONE,4)}, {vr(Preg(pr,qs),4)}, {'0' if first_pv else ar(Lr,4)}"
    def add(t, fr=()): mf.append(t); frees.append(list(fr))
    h = u & 1
    if PV2[0]:
        p0 = (u - h - 2) & 3; p1 = (p0 + 1) & 3
        def P4(b, qs): return P0 + b * 16 + qs * 4
        def V2(st_, d): return (AV if st_ == 0 else AV2) + d * 4
        def pvc(d, qs):
            O = Oacc(d, qs)
            return [f"{MF} {ar(O,4)}, {ar(V2(0,d),4)}, {vr(P4(p0,qs),4)}, {'0' if first_pv else ar(O,4)}",
                    f"{MF} {ar(O,4)}, {ar(V2(1,d),4)}, {vr(P4(p1,qs),4)}, {ar(O,4)}"]
        def smc(qs):
            Lr = AL + qs * 4
            return [f"{MF} {ar(Lr,4)}, {ar(AONE,4)}, {vr(P4(p0,qs),4)}, {'0' if first_pv else ar(Lr,4)}",
                    f"{MF} {ar(Lr,4)}, {ar(AONE,4)}, {vr(P4(p1,qs),4)}, {ar(Lr,4)}"]
    for i in range(8):
        if do_qk:
            if order == "A":
                kt, s = i >> 2, i & 3
                for qs in range(4): add(qk(kt, s, qs), [("K", i)] if qs == 3 else [])
            else:
                kt, qs = i >> 2, i & 3
                for s in range(4): add(qk(kt, s, qs), [("K", kt * 4 + s)] if qs == 3 else [])
        if do_pv and PV2[0]:
            d = 4 * h + (i >> 1)
            for q2 in (2 * (i & 1), 2 * (i & 1) + 1):
                a_, b_ = pvc(d, q2)
                add(a_); add(b_, [("V", d)] if q2 == 3 else [])
            if (i & 3) == 3:
                for t_ in smc(2 * h + (i >> 2)): add(t_)
        elif do_pv:
            for qs in range(4): add(pv(i, qs), [("V", i)] if qs == 3 else [])
            if (i & 1) and SUMMODE[0] == "mfma": add(sm(i >> 1))
    n = len(mf)
    def kld(i):
        kt, s = i >> 2, i & 3
        return f"ds_read_b128 {ar(Kf(kt,s),4)}, v{KA+s} offset:{koff + kt*4096}"
    def vld(i, j): return f"ds_read_b64_tr_b16 {ar(Vf(i)+2*j,2)}, v{VA+i} offset:{voff + j*4096}"
    def vld2(d):
        base = vslot * 16384
        return [f"ds_read_b64_tr_b16 {ar(V2(st_,d)+2*j,2)}, v{VA+d} offset:{base + st_*8192 + j*4096}" for st_ in range(2) for j in range(2)]
    dsl = []
    for g, fr in enumerate(frees):
        for kind, i in fr:
            if kind == "K" and ld_k: dsl.append((g, kld(i)))
            if kind == "V" and ld_v:
                if PV2[0]:
                    for t_ in vld2(i): dsl.append((g, t_))
                else:
                    dsl.append((g, vld(i, 0))); dsl.append((g, vld(i, 1)))
    if ld_k and not do_qk:
        for i in range(8): dsl.append((min(i * n // 10, n - 1), kld(i)))
    if ld_v and not do_pv:
        if PV2[0]:
            for k_, d in enumerate(range(4 * h, 4 * h + 4)):
                for t_ in vld2(d): dsl.append((min(k_ * n // 5, n - 1), t_))
        else:
            for i in range(8):
                for j in range(2): dsl.append((min(i * n // 10, n - 1), vld(i, j)))
    dsl.sort(key=lambda x: x[0])
    st = {}
    nds = len(dsl)
    st["ds"] = []
    for k, (g, t) in enumerate(dsl):
        st["ds"].append(("ds", t, g))
    if dma:
        m = len(dma)
        st["dma"] = [(d[0], d[1], min(3 + (k * (n - 10)) // m, n - 1), d[2] if len(d) > 2 else {}) for k, d in enumerate(dma)]
    if post:
        st["post"] = [(kind, t, n - 2) for kind, t in post]
    if xds:
        m = len(xds)
        st["xds"] = [("ds", t, min(4 + (k * (n - 12)) // m, n - 1)) for k, t in enumerate(xds)]
    if do_sm:
        st["exp"] = [("exp", f"v_exp_f32 v{S0+br*32+x}, v{S0+br*32+x}", (x * (n - 4)) // 32) for x in range(32)]
        est = [st["exp"][2 * j + 1][2] + 1 for j in range(16)]
        for itn in range(20):
            if CVTMODE[0] == "cvt":
                st["cvt"] = [("cvt", f"v_cvt_pk_bf16_f32 v{P0+((u&3) if PV2[0] else br)*16+j}, v{S0+br*32+2*j}, v{S0+br*32+2*j+1}", est[j]) for j in range(16)]
            else:
                st["cvt"] = [("cvt", f"v_perm_b32 v{P0+br*16+j}, v{S0+br*32+2*j+1}, v{S0+br*32+2*j}, s81", est[j]) for j in range(16)]
            if SUMMODE[0] == "dot2":
                st["sum"] = [("valu", f"v_dot2_f32_bf16 v{112+(j>>2)}, v{P0+br*16+j}, s82, v{112+(j>>2)}", est[j] + 2) for j in range(16)]
            packed = pack(n, st, ["exp", "cvt", "ds", "dma", "sum", "xds", "post"], budget=(8 if n > 40 else 16))
            eg = [g for g, items in enumerate(packed) for it in items if it[0] == "exp"]
            new = [eg[2 * j + 1] + 1 for j in range(16)]
            if all(a <= b for a, b in zip(new, est)): break
            est = [max(a, b) for a, b in zip(new, est)]
        else: raise RuntimeError("no fixpoint")
        tail = packed[n]
        kinds = [it[0] for it in tail]
        if "exp" in kinds: raise RuntimeError("exp in tail")
    else:
        packed = pack(n, st, ["ds", "dma", "xds", "post"])
    if pre: em.e(pre)
    emit_packed(em, mf, packed)
    return packed

def dma_k(slot):
    return [("salu", f"s_add_u32 m0, s{S_W4K}, {LDS_K + slot*16384}")] + \
           [("vmem", f"buffer_load_dwordx4 v{DK+i}, s[{SRD_K}:{SRD_K+3}], s{S_KOFF} offen offset:{i*1024} lds") for i in range(4)]
def dma_v(slot):
    return [("salu", f"s_add_u32 m0, s{S_W4K}, {LDS_V + slot*16384}")] + \
           [("vmem", f"buffer_load_dwordx4 v{DV+(i&1)}, s[{SRD_V}:{SRD_V+3}], s{S_VOFF} offen offset:{i*1024} lds") for i in range(4)]

def emit_setup(em):
    e = em.e
    e("s_cmp_ge_u32 s2, 256\ns_cbranch_scc1 K2_END")
    e(f"s_load_dwordx2 s[4:5], s[0:1], {KA_K}")
    e(f"s_load_dwordx2 s[6:7], s[0:1], {KA_V}")
    e(f"s_load_dwordx2 s[52:53], s[0:1], {KA_WQ}")
    e(f"s_load_dwordx2 s[54:55], s[0:1], {KA_WS}")
    e("v_and_b32 v1, 63, v0\nv_lshrrev_b32 v2, 6, v0\ns_nop 0")
    e(f"v_readfirstlane_b32 s{S_WAVE}, v2")
    e("s_lshr_b32 s28, s2, 3")
    e(f"s_and_b32 s3, s2, 1\ns_lshl_b32 s3, s3, 4\ns_lshr_b32 s29, s28, 1\ns_add_u32 s{S_HEAD}, s3, s29")
    e(f"s_and_b32 s3, s2, 6\ns_and_b32 s29, s28, 1\ns_add_u32 s{S_QB}, s3, s29")
    e(f"s_lshl_b32 s{S_W4K}, s{S_WAVE}, 12")
    e(f"s_lshl_b32 s{S_MX}, s{S_WAVE}, 11\ns_add_u32 s{S_MX}, s{S_MX}, {hex(LDS_X)}")
    e("v_and_b32 v3, 15, v1\nv_lshrrev_b32 v4, 4, v1")
    e(f"v_lshlrev_b32 v{L16}, 4, v1")
    for s in range(4):
        e(f"v_add_u32 v5, {4*s}, v4\nv_xor_b32 v5, v5, v3\nv_lshlrev_b32 v5, 4, v5\nv_lshl_add_u32 v{KA+s}, v3, 8, v5")
    e("v_bfe_u32 v5, v1, 2, 2\nv_and_b32 v6, 3, v1\nv_lshl_add_u32 v7, v4, 2, v5")
    e("v_and_b32 v8, 7, v7")
    e(f"v_lshlrev_b32 v9, 8, v7\nv_lshl_add_u32 v9, v6, 3, v9\nv_add_u32 v9, {hex(LDS_V)}, v9")
    for T in range(8):
        e(f"v_xor_b32 v10, {T}, v8\nv_lshl_add_u32 v{VA+T}, v10, 5, v9")
    e("v_lshrrev_b32 v10, 1, v6\nv_xor_b32 v10, v10, v8")
    e(f"v_and_b32 v11, 1, v6\nv_lshlrev_b32 v11, 4, v11\nv_lshl_add_u32 v11, v7, 8, v11\nv_add_u32 v11, {hex(LDS_X)}, v11")
    for s in range(4):
        e(f"v_xor_b32 v12, {2*s}, v10\nv_lshl_add_u32 v{WQA+s}, v12, 5, v11")
    for i in range(4):
        e(f"v_add_u32 v5, {4*i}, v4\nv_xor_b32 v5, v5, v3\nv_lshlrev_b32 v5, 4, v5\nv_lshl_add_u32 v5, v4, 8, v5\nv_add_u32 v{DK+i}, s{S_W4K}, v5")
    for i in range(2):
        e(f"v_add_u32 v5, {4*i}, v4\nv_lshlrev_b32 v5, 1, v5\nv_xor_b32 v5, v5, v3\nv_lshlrev_b32 v5, 4, v5\nv_lshl_add_u32 v5, v4, 8, v5\nv_add_u32 v{DV+i}, s{S_W4K}, v5")
    e(f"s_lshl_b32 s{S_T}, s{S_WAVE}, 16")
    for i in range(2):
        e(f"v_add_u32 v5, {4*i}, v4\nv_lshlrev_b32 v6, 1, v5\nv_xor_b32 v6, v6, v3\nv_lshlrev_b32 v6, 4, v6\nv_lshl_add_u32 v6, v5, 13, v6")
        e(f"v_add_u32 v6, s{S_T}, v6")
        if i: e(f"v_subrev_u32 v6, {1024*i}, v6")
        e(f"v_mov_b32 v{DW+i}, v6")
    e(f"s_lshl_b32 s{S_T}, s{S_QB}, 4\ns_lshl_b32 s{S_T2}, s{S_WAVE}, 2\ns_add_u32 s{S_T}, s{S_T}, s{S_T2}")
    e(f"s_lshl_b32 s{S_OFB}, s{S_T}, 17\ns_lshl_b32 s{S_T2}, s{S_HEAD}, 12\ns_add_u32 s{S_OFB}, s{S_OFB}, s{S_T2}")
    e(f"s_mul_i32 s{S_T}, s{S_T}, 18432")
    for qs in range(4):
        e(f"s_add_u32 s{S_T2}, s{S_T}, {qs*18432 + WS_XNF}\nv_add_u32 v{XB+qs}, s{S_T2}, v{L16}")
    for k in range(5): e(f"s_mov_b32 s{S_X4+k}, {k*4096}")
    e(f"s_lshl_b32 s{S_WQOFF}, s{S_HEAD}, 8")
    c = f2u(128 ** -0.5 * 1.4426950408889634)
    e(f"s_mov_b32 s{S_C}, {hex(c)}\ns_mov_b32 s{S_C+1}, {hex(c)}")
    e(f"s_mov_b32 s{S_THR}, 0x5f800000")
    e(f"s_mov_b32 s{S_PASS}, 0")
    for i in range(4): e(f"v_mov_b32 v{TMP}, 0x3f803f80\nv_accvgpr_write_b32 a{AONE+i}, v{TMP}")
    e("s_waitcnt lgkmcnt(0)")
    e(f"s_lshr_b32 s{S_T}, s{S_HEAD}, 1\ns_lshl_b32 s{S_T}, s{S_T}, 19")
    e(f"s_add_u32 s4, s4, s{S_T}\ns_addc_u32 s5, s5, 0\ns_add_u32 s6, s6, s{S_T}\ns_addc_u32 s7, s7, 0")
    srd(em, SRD_K, 4, 5, 524288)
    srd(em, SRD_V, 6, 7, 524288)
    srd(em, SRD_WQ, 52, 53, 576 * 8192)
    srd(em, SRD_WS, 54, 55, WS_SIZE)
    e(f"s_add_u32 s54, s54, {hex(WS_OF)}\ns_addc_u32 s55, s55, 0")
    srd(em, SRD_OF, 54, 55, 2048 * 4096 * 2)

def emit_qproj(em):
    e = em.e
    NK = 18
    tags = {}
    def wq_dma(sg):
        r = [("salu", f"s_add_u32 m0, s{S_MX}, {(sg & 3) * 8192}")]
        r += [("vmem", f"buffer_load_dwordx4 v{DW+i}, s[{SRD_WQ}:{SRD_WQ+3}], s{S_WQOFF} offen offset:{i*1024} lds", ("wq", sg)) for i in range(2)]
        r += [("salu", f"s_add_u32 s{S_WQOFF}, s{S_WQOFF}, {32*8192}")]
        return r
    def xn_ld(sg):
        r = []
        for qs in range(4):
            d = AO + ((sg & 7) * 4 + qs) * 4
            r.append(("vmem", f"buffer_load_dwordx4 {ar(d,4)}, v{XB+qs}, s[{SRD_WS}:{SRD_WS+3}], s{S_X4+(sg>>2)} offen offset:{(sg&3)*1024}", ("xn", sg)))
        return r
    def kv_init(kind, T):
        sreg = S_KOFF if kind == "K" else S_VOFF
        r = [("salu", f"s_mov_b32 s{sreg}, {T*16384}")]
        r += [(k, t) for k, t in (dma_k(T) if kind == "K" else dma_v(T))]
        return r
    def issue(items):
        prev = None
        for it in items:
            if it[0] == "vmem":
                if prev is not None and "m0" in prev[1] and prev[0] == "salu": e("s_nop 0")
                idx = em.vmem(it[1])
                if len(it) > 2: tags[it[2]] = idx
            else: e(it[1])
            prev = it
    def aset(sg): return AK + (sg & 1) * 32
    def a_ld(sg):
        r = []
        for t in range(8):
            s, half = t >> 1, t & 1
            for j in range(2):
                r.append(f"ds_read_b64_tr_b16 {ar(aset(sg)+t*4+2*j,2)}, v{WQA+s} offset:{(sg&3)*8192 + j*4096 + 8*half}")
        return r
    AHEAD = 5
    for sg in range(4):
        issue(wq_dma(sg)); issue(xn_ld(sg))
    issue(xn_ld(4))
    em.wait_vm(tags[("wq", 0)])
    e("s_barrier")
    for t in a_ld(0): em.ds_load(t)
    kvq = [("K", 0), ("K", 1), ("V", 0), ("K", 2), ("V", 1)]
    kv_at = {3: 0, 5: 1, 7: 2, 9: 3, 11: 4}
    for sg in range(NK):
        need = max(tags[("xn", sg)], tags[("wq", min(sg + 1, NK - 1))])
        em.wait_vm(need)
        em.ds_all_done()
        e("s_barrier")
        mf = []
        for t in range(8):
            for qs in range(4):
                acc = QACC + (t * 4 + qs) * 4
                b = AO + ((sg & 7) * 4 + qs) * 4
                C = "0" if sg == 0 else vr(acc, 4)
                mf.append(f"{MF} {vr(acc,4)}, {ar(aset(sg)+t*4,4)}, {ar(b,4)}, {C}")
        fill = [[] for _ in range(33)]
        if sg + 1 < NK:
            for k, t in enumerate(a_ld(sg + 1)): fill[(k * 3) // 2].append(("ds", t))
        vm = []
        if sg + 4 < NK: vm += wq_dma(sg + 4)
        if sg + AHEAD < NK: vm += xn_ld(sg + AHEAD)
        if sg in kv_at: vm += kv_init(*kvq[kv_at[sg]])
        for g in range(32):
            em.mfma(mf[g])
            for k, t in fill[g]: em.ds_load(t)
            if g % 2 == 1 and vm:
                take = [vm.pop(0)]
                while take[-1][0] == "salu" and vm: take.append(vm.pop(0))
                prev = None
                for it in take:
                    if it[0] == "vmem":
                        if prev is not None and prev[0] == "salu" and "m0" in prev[1]: e("s_nop 0")
                        idx = em.vmem(it[1])
                        if len(it) > 2: tags[it[2]] = idx
                    else: e(it[1])
                    prev = it
        issue(vm)
    e("s_nop 7\ns_nop 3")
    for qs in range(4):
        for s in range(4):
            for half in range(2):
                acc = QACC + ((2 * s + half) * 4 + qs) * 4
                e(f"v_pk_mul_f32 {vr(acc,2)}, {vr(acc,2)}, s[{S_C}:{S_C+1}]")
                e(f"v_pk_mul_f32 {vr(acc+2,2)}, {vr(acc+2,2)}, s[{S_C}:{S_C+1}]")
            for half in range(2):
                acc = QACC + ((2 * s + half) * 4 + qs) * 4
                e(f"v_cvt_pk_bf16_f32 v{Qf(qs,s)+2*half}, v{acc}, v{acc+1}")
                e(f"v_cvt_pk_bf16_f32 v{Qf(qs,s)+2*half+1}, v{acc+2}, v{acc+3}")

def emit_rowmax_across_groups(em, v, t):
    e = em.e
    e(f"v_mov_b32 v{t}, v{v}\ns_nop 1\nv_permlane16_swap_b32 v{v}, v{t}\nv_max_f32 v{v}, v{v}, v{t}")
    e(f"v_mov_b32 v{t}, v{v}\ns_nop 1\nv_permlane32_swap_b32 v{v}, v{t}\nv_max_f32 v{v}, v{v}, v{t}")

def emit_pre(em):
    e = em.e
    import k2new
    em.label("K2_PRE")
    e(f"s_waitcnt vmcnt({k2new.PRE_WAIT[0]})\ns_barrier")
    def kld(i, off):
        kt, s = i >> 2, i & 3
        return f"ds_read_b128 {ar(Kf(kt,s),4)}, v{KA+s} offset:{off + kt*4096}"
    for i in range(8): em.ds_load(kld(i, LDS_K))
    em.ds_all_done()
    for i in range(8):
        kt, s = i >> 2, i & 3
        for qs in range(4):
            D = Sreg(0, qs, kt)
            e(f"{MF} {vr(D,4)}, {ar(Kf(kt,s),4)}, {vr(Qf(qs,s),4)}, {'0' if s == 0 else vr(D,4)}")
        em.ds_load(kld(i, LDS_K + 8192))
    e("s_nop 7\ns_nop 3")
    e(f"s_cmp_eq_u32 s{S_PASS}, 0\ns_cbranch_scc0 K2_HAVEMAX")
    for qs in range(4):
        b = S0 + qs * 8
        m = TMP
        e(f"v_max3_f32 v{m}, v{b}, v{b+1}, v{b+2}\nv_max3_f32 v{m}, v{m}, v{b+3}, v{b+4}\nv_max3_f32 v{m}, v{m}, v{b+5}, v{b+6}\nv_max_f32 v{m}, v{m}, v{b+7}")
        emit_rowmax_across_groups(em, m, TMP + 1)
        for r in range(4): e(f"v_sub_f32 v{NM+qs*4+r}, 0, v{m}")
    em.label("K2_HAVEMAX")
    for qs in range(4):
        for x in range(8):
            e(f"v_add_f32 v{S0+qs*8+x}, v{S0+qs*8+x}, v{NM+qs*4}")
    em.ds_all_done()

def emit_final_pv(em):
    em.c("--- final PV")
    emit_step(em, 8, do_qk=False, do_sm=False, ld_k=False, ld_v=False)

def emit_epilogue(em, OST='', xsel=(), ts=False, pv=True):
    e = em.e
    if pv: emit_final_pv(em)
    e("s_nop 7\ns_nop 3")
    R = TMP
    for qs in range(4):
        e(f"v_accvgpr_read_b32 v{R+2*qs}, a{AL+qs*4}")
    e("s_nop 0")
    for qs in range(4):
        e(f"v_rcp_f32 v{R+2*qs}, v{R+2*qs}")
    e("s_nop 0")
    for qs in range(4):
        e(f"v_mov_b32 v{R+2*qs+1}, v{R+2*qs}")
    buf = 0
    for qs in range(4):
        e(f"s_add_u32 s{S_T}, s{S_OFB}, {qs*131072}")
        for sg in range(4):
            t = S0 + (buf & 3) * 12; buf += 1
            for half in range(2):
                for r in range(4):
                    e(f"v_accvgpr_read_b32 v{t+half*4+r}, a{Oacc(2*sg+half, qs)+r}")
            for k in range(4):
                e(f"v_pk_mul_f32 {vr(t+2*k,2)}, {vr(t+2*k,2)}, {vr(R+2*qs,2)}")
            for k in range(4):
                e(f"v_cvt_pk_bf16_f32 v{t+8+k}, v{t+2*k}, v{t+2*k+1}")
            e(f"buffer_store_dwordx4 {vr(t+8,4)}, v{L16}, s[{SRD_OF}:{SRD_OF+3}], s{S_T} offen offset:{sg*1024} {OST}")


def emit_final_fused(em, OST, xsel=()):
    e = em.e
    pr = 1
    def mf(qs):
        if PV2[0]:
            Pa, Pb = P0 + 2 * 16 + qs * 4, P0 + 3 * 16 + qs * 4
            r = [f"{MF} {ar(AL+qs*4,4)}, {ar(AONE,4)}, {vr(Pa,4)}, {ar(AL+qs*4,4)}", f"{MF} {ar(AL+qs*4,4)}, {ar(AONE,4)}, {vr(Pb,4)}, {ar(AL+qs*4,4)}"]
            for T in range(8):
                O = Oacc(T, qs)
                r.append(f"{MF} {ar(O,4)}, {ar(AV+T*4,4)}, {vr(Pa,4)}, {ar(O,4)}")
                r.append(f"{MF} {ar(O,4)}, {ar(AV2+T*4,4)}, {vr(Pb,4)}, {ar(O,4)}")
            return r
        r = [f"{MF} {ar(AL+qs*4,4)}, {ar(AONE,4)}, {vr(Preg(pr,qs),4)}, {ar(AL+qs*4,4)}"]
        for T in range(8):
            O = Oacc(T, qs)
            r.append(f"{MF} {ar(O,4)}, {ar(Vf(T),4)}, {vr(Preg(pr,qs),4)}, {ar(O,4)}")
        return r
    R = TMP
    def epi(qs):
        r = []
        r.append(f"v_accvgpr_read_b32 v{56+qs}, a{AL+qs*4}")
        r.append(f"s_add_u32 s{S_T}, s{S_OFB}, {qs*131072}")
        r.append(f"v_rcp_f32 v{R+2*qs}, v{56+qs}")
        r.append("s_nop 0")
        r.append(f"v_mov_b32 v{R+2*qs+1}, v{R+2*qs}")
        for sg in range(4):
            t = S0 + ((qs * 4 + sg) & 3) * 12
            for half in range(2):
                for rr in range(4): r.append(f"v_accvgpr_read_b32 v{t+half*4+rr}, a{Oacc(2*sg+half, qs)+rr}")
            for k in range(4): r.append(f"v_pk_mul_f32 {vr(t+2*k,2)}, {vr(t+2*k,2)}, {vr(R+2*qs,2)}")
            for k in range(4): r.append(f"v_cvt_pk_bf16_f32 v{t+8+k}, v{t+2*k}, v{t+2*k+1}")
            r.append(f"buffer_store_dwordx4 {vr(t+8,4)}, v{L16}, s[{SRD_OF}:{SRD_OF+3}], s{S_T} offen offset:{sg*1024} {OST}")
        return r
    for m in mf(0): em.mfma(m)
    for qs in range(4):
        if qs == 3:
            if xsel:
                import moe2
                e(f"s_cmp_lt_u32 s2, {moe2.NGD[0]}\ns_cbranch_scc0 K2_NOXSL")
                for it in xsel: e(it[1])
                em.label("K2_NOXSL")
        nxt = mf(qs + 1) if qs < 3 else []
        ep = epi(qs)
        head = nxt[:]
        pad = 0
        while head:
            em.mfma(head.pop(0)); pad += 1
        if pad < 9: e("s_nop 7\ns_nop 1")
        for t in ep: e(t)

def emit_check2(em):
    emit_check_and_fallback(em, lsrc=56)

def emit_check_and_fallback(em, lsrc=None):
    import k2new, moe2
    e = em.e
    FL = 49152
    T2 = 60
    if lsrc is None:
        e("s_nop 7")
        for qs in range(4): e(f"v_accvgpr_read_b32 v{56+qs}, a{AL+qs*4}")
        e("s_nop 0")
    e(f"v_max3_f32 v{T2}, v56, v57, v58\nv_max_f32 v{T2}, v{T2}, v59")
    e(f"v_add_f32 v{T2+1}, v56, v57\nv_add_f32 v{T2+1}, v{T2+1}, v58\nv_add_f32 v{T2+1}, v{T2+1}, v59")
    e(f"v_cmp_nge_f32 vcc, s{S_THR}, v{T2}")
    e(f"v_cmp_u_f32 s[48:49], v{T2+1}, v{T2+1}")
    e("s_or_b64 vcc, vcc, s[48:49]")
    e("s_cmp_lg_u64 vcc, 0\ns_cselect_b32 s48, 1, 0")
    e(f"v_mov_b32 v{T2}, s48\ns_lshl_b32 s49, s{S_WAVE}, 2\ns_add_u32 s49, s49, {FL}\nv_mov_b32 v{T2+1}, s49")
    e(f"ds_write_b32 v{T2+1}, v{T2}\ns_waitcnt lgkmcnt(0)\ns_barrier")
    e(f"v_mov_b32 v{T2+1}, {FL}\nds_read_b128 {vr(T2+4,4)}, v{T2+1}\ns_waitcnt lgkmcnt(0)")
    e(f"v_or_b32 v{T2+4}, v{T2+4}, v{T2+5}\nv_or_b32 v{T2+6}, v{T2+6}, v{T2+7}\nv_or_b32 v{T2+4}, v{T2+4}, v{T2+6}\ns_nop 0")
    e(f"v_readfirstlane_b32 s48, v{T2+4}")
    e(f"s_cmp_eq_u32 s48, 0\ns_cbranch_scc1 K2_NOFB\ns_cmp_eq_u32 s{S_PASS}, 0\ns_cbranch_scc0 K2_NOFB")
    e(f"s_mov_b32 s{S_PASS}, 1")
    e("s_waitcnt vmcnt(0)\ns_barrier")
    MX = NM
    for qs in range(4): e(f"v_mov_b32 v{MX+4*qs}, 0xff800000")
    e(f"s_mov_b32 s{S_KOFF}, 0\ns_mov_b32 s{S_LOOP}, 32")
    em.label("K2_FBLOOP")
    for kind, t in dma_k(0):
        e(t)
        if kind == "salu": e("s_nop 0")
    e("s_waitcnt vmcnt(0)\ns_barrier")
    for half in range(2):
        for i in range(8):
            kt, s = i >> 2, i & 3
            e(f"ds_read_b128 {ar(Kf(kt,s),4)}, v{KA+s} offset:{LDS_K + half*8192 + kt*4096}")
        e("s_waitcnt lgkmcnt(0)")
        for i in range(8):
            kt, s = i >> 2, i & 3
            for qs in range(4):
                D = Sreg(0, qs, kt)
                e(f"{MF} {vr(D,4)}, {ar(Kf(kt,s),4)}, {vr(Qf(qs,s),4)}, {'0' if s == 0 else vr(D,4)}")
        e("s_nop 7\ns_nop 3")
        for qs in range(4):
            b = S0 + qs * 8; m = MX + 4 * qs
            e(f"v_max3_f32 v{m}, v{m}, v{b}, v{b+1}\nv_max3_f32 v{m}, v{m}, v{b+2}, v{b+3}\nv_max3_f32 v{m}, v{m}, v{b+4}, v{b+5}\nv_max3_f32 v{m}, v{m}, v{b+6}, v{b+7}")
    e("s_barrier")
    e(f"s_add_u32 s{S_KOFF}, s{S_KOFF}, 16384\ns_sub_u32 s{S_LOOP}, s{S_LOOP}, 1\ns_cmp_lg_u32 s{S_LOOP}, 0\ns_cbranch_scc1 K2_FBLOOP")
    for qs in range(4):
        m = MX + 4 * qs
        emit_rowmax_across_groups(em, m, TMP)
        e(f"v_sub_f32 v{m}, 0, v{m}")
        for r in range(1, 4): e(f"v_mov_b32 v{m+r}, v{m}")
    for kind, T in (("K", 0), ("K", 1), ("V", 0), ("K", 2), ("V", 1)):
        sreg = S_KOFF if kind == "K" else S_VOFF
        e(f"s_mov_b32 s{sreg}, {T*16384}")
        for k2_, t in (dma_k(T) if kind == "K" else dma_v(T)):
            e(t)
            if k2_ == "salu": e("s_nop 0")
    k2new.emit_wof_addr_fb(em)
    e("s_waitcnt vmcnt(0)")
    e("s_branch K2_PRE")
    em.label("K2_NOFB")
    em.ds_done = em.ds - 1

NST = [0]
DBGOUT = [False]
CPF2 = [True]
TOUCH = [True]
FINFUSE = [True]
def stamp(em, prof=True, k=None):
    if not prof: return
    if k is None:
        k = NST[0]; NST[0] += 1
    em.e(f"s_memrealtime s[98:99]\ns_waitcnt lgkmcnt(0)\nv_writelane_b32 v2, s98, {k}")
    em.ds_done = em.ds - 1
def stamp_out(em, prof):
    if not prof: return
    e = em.e
    e(f"s_lshl_b32 s{S_T}, s2, 2\ns_add_u32 s{S_T}, s{S_T}, s{S_WAVE}\ns_lshl_b32 s{S_T}, s{S_T}, 8")
    e(f"s_add_u32 s{S_T}, s{S_T}, {hex(WS_PROF)}")
    e("v_lshlrev_b32 v5, 2, v1")
    e(f"buffer_store_dword v2, v5, s[{SRD_WS}:{SRD_WS+3}], s{S_T} offen")

def emit_iter(em, kind, order, extras=None, prehook=None):
    for b in range(4):
        for half in range(2):
            u = 2 * b + half
            kw = {}
            pre = None; dma = []; post = ()
            if half == 0:
                if kind == "first":
                    if b >= 2:
                        n = em.vm - 1 - TAGS[("body", b - 2)]
                        pre = f"s_waitcnt vmcnt({n})" + (" lgkmcnt(0)" if b == 3 else "") + "\ns_barrier"
                    elif b == 1:
                        import k2new
                        pre = (f"s_waitcnt vmcnt({em.vm})\n" if k2new.B1WAIT[0] else "") + "s_barrier"
                elif kind == "last":
                    n = em.vm - 1 - TAGS[("body", b - 2)]
                    pre = f"s_waitcnt vmcnt({min(n, 63)})\ns_barrier"
                else:
                    pre = "s_waitcnt vmcnt(8)\ns_barrier"
                do = (kind != "last") or b == 0
                if do: dma = [("salu", f"s_add_u32 s{S_KOFF}, s{S_KOFF}, 16384")] + dma_k((b + 3) & 3)
            else:
                do = (kind != "last") or b <= 1
                if do:
                    dma = [("salu", f"s_add_u32 s{S_VOFF}, s{S_VOFF}, 16384")] + dma_v((b + 2) & 3)
                    dma[-1] = (dma[-1][0], dma[-1][1], {"tag": ("body", b)})
            xds = []
            if extras is not None:
                xd, xds = extras(u)
                dma = xd + dma
            if PV2[0]:
                if kind == "first" and u <= 1: kw["do_pv"] = False
                if kind == "first" and u in (2, 3): kw["first_pv"] = True
            else:
                if kind == "first" and u == 0: kw["do_pv"] = False
                if kind == "first" and u == 1: kw["first_pv"] = True
            if kind == "last" and u >= 6: kw["ld_k"] = False
            if kind == "last" and u == 7: kw["do_qk"] = False
            if kind == "mid" and u == 7:
                post = [("salu", f"s_sub_u32 s{S_LOOP}, s{S_LOOP}, 1"), ("salu", f"s_cmp_lg_u32 s{S_LOOP}, 0")]
            em.c(f"--- {kind} step u={u}")
            if pre:
                em.e(pre)
                if "lgkmcnt(0)" in pre: em.ds_done = em.ds - 1
            if prehook is not None and half == 0: prehook(em, b)
            emit_step(em, u, dma=dma, order=order, pre=None, post=post, xds=xds, **kw)

def k2(name="k2_attn_kernel", order="C", prof=False, ost="", wof=True, moe=True, fused=True):
    import k2new, moe2, k3f
    NST[0] = 0
    moe2.FUSED[0] = fused
    if PV2[0]: moe2.set_pv2()
    import moe3 as _m3
    _m3.PROF[0] = prof
    k2new.KNAME[0] = name
    em = Em()
    kernel_head(em, name)
    if k2new.FRONT[0] == 4:
        import k2f4
        k2new.EARLY[0] = False
        moe2.PFV, moe2.PFD = 184, 180
        k2f4.emit_front4(em, prof)
        k2f4.emit_qproj4(em)
    else:
        k2new.B1WAIT[0] = False
        k2new.emit_front(em, prof, moe)
        stamp(em, prof)
        k2new.emit_qproj2(em)
    GDE = k2new.GDE[0] and k2new.FRONT[0] == 2 and fused
    if GDE:
        import k3f, moe3
        e = em.e
        stamp(em, prof)
        emit_pre(em)
        stamp(em, prof)
        em.e(f"s_mov_b32 s{S_KOFF}, {2*16384}\ns_mov_b32 s{S_VOFF}, {1*16384}")
        em.vm = 0
        emit_iter(em, "first", order, extras=lambda u: (([moe2.flag_item()] if u == 5 else []), []))
        moe2.after_first(em, gather=False)
        moe3.after_first(em)
        em.e(f"s_mov_b32 s{S_LOOP}, 6")
        em.e(".p2align 6")
        em.label("K2_LOOP")
        em.e(f"s_cmp_eq_u32 s{S_LOOP}, 5\ns_cbranch_scc0 K2_NOWOFC\ns_cmp_eq_u32 s{S_PASS}, 0\ns_cbranch_scc0 K2_NOWOFC")
        k3f.atomic_inc(em, k3f.C_WOF, "K2_NOWOFC", vt=TMP, st=S_T)
        em.e("s_nop 1")
        moe3.loop_head(em)
        em.e(f"s_cmp_eq_u32 s{S_LOOP}, 1\ns_cbranch_scc0 K2_NOXF")
        em.e(f"v_mov_b32 v{moe2.IDXV}, 0\ns_mov_b32 s{S_T}, {hex(k3f.C_WOF)}\nbuffer_load_dword v{moe2.XSB}, v{moe2.IDXV}, s[{SRD_WS}:{SRD_WS+3}], s{S_T} offen sc0 sc1")
        if k2new.CPF[0] and CPF2[0]:
            code_prefetch(em, "K2_LAST", "K2_CODE_END", 2, S_WAVE, 1, (234 if PV2[0] else 108), (238 if PV2[0] else 105), 92, "k2b", forward=True); em.vm -= 1
        em.label("K2_NOXF")
        em.e("s_nop 3")
        em.e("s_waitcnt lgkmcnt(8)"); em.ds_done = em.ds - 9
        emit_iter(em, "mid", order)
        em.e("s_cbranch_scc1 K2_LOOP")
        em.vm = 16; TAGS[("body", -2)] = 7; TAGS[("body", -1)] = 15
        em.label("K2_LAST")
        e(f"v_readfirstlane_b32 s{S_T}, v{moe2.XSB}\ns_cmp_ge_u32 s{S_T}, 256\ns_cbranch_scc1 K2_WOFOK")
        em.label("K2_WOFSPIN")
        e(f"s_sleep 4\ns_mov_b32 s{S_T}, {hex(k3f.C_WOF)}\nbuffer_load_dword v{moe2.XSB}, v{moe2.IDXV}, s[{SRD_WS}:{SRD_WS+3}], s{S_T} offen sc0 sc1\ns_waitcnt vmcnt(0)")
        e(f"v_readfirstlane_b32 s{S_T}, v{moe2.XSB}\ns_cmp_ge_u32 s{S_T}, 256\ns_cbranch_scc0 K2_WOFSPIN")
        em.label("K2_WOFOK")
        emit_iter(em, "last", order)
        stamp(em, prof)
        emit_final_pv(em)
        emit_check_and_fallback(em)
        k3f.early(em)
        emit_epilogue(em, "sc0 sc1", pv=False)
        stamp(em, prof)
        k3f.setup(em)
        e("s_barrier")
        em.vm = 0
        for st in range(3): k3f.emit_items(em, k3f.a_dma(st))
        e("s_waitcnt vmcnt(27)")
        k3f.oflag_set(em)
        e(f"buffer_load_dword v{k3f.OFV8+1}, v{k3f.OFV8}, s[{SRD_WS}:{SRD_WS+3}], s{k3f.P_OD} offen sc0 sc1\ns_waitcnt vmcnt(0)")
        k3f.oflag_need(em, 1, "K2_OF01")
        for st in range(2): k3f.emit_items(em, k3f.b_ld(st))
        k3f.YMODE[0] = "none"; k3f.YTGT[0] = 144
        k3f.main(em, lambda em_: stamp(em_, prof))
    else:
        moe2.emit_front_topk(em)
        moe2.setup_early(em)
        stamp(em, prof)
        emit_pre(em)
        stamp(em, prof)
        em.e("s_mov_b32 s81, 0x07060302\ns_mov_b32 s82, 0x3f803f80")
        if SUMMODE[0] == "dot2":
            for k in range(4): em.e(f"v_mov_b32 v{112+k}, 0")
        em.e(f"s_mov_b32 s{S_KOFF}, {2*16384}\ns_mov_b32 s{S_VOFF}, {1*16384}")
        em.vm = 0
        def ex_first(u):
            d, x = k2new.wof_extras(u)
            d2, x2 = moe2.extras_first(u)
            return d + d2, x + x2
        emit_iter(em, "first", order, extras=ex_first)
        moe2.after_first(em, gather=(k2new.FRONT[0] != 4))
        if fused and TOUCH[0]:
            e = em.e
            e(f"v_mov_b32 v104, 0")
            e(f"buffer_load_dword v105, v104, s[{SRD_OF}:{SRD_OF+3}], s{S_OFB} offen")
            e(f"s_bfe_u32 s{S_T}, s2, 0x20001\ns_lshl_b32 s{S_T}, s{S_T}, 2\ns_lshr_b32 s{S_T2}, s2, 6\ns_add_u32 s{S_T}, s{S_T}, s{S_T2}")
            e(f"s_lshl_b32 s{S_T2}, s{S_T}, 20\nbuffer_load_dword v106, v104, s[{SRD_OF}:{SRD_OF+3}], s{S_T2} offen")
            e(f"s_lshl_b32 s{S_T}, s{S_T}, 2\ns_bfe_u32 s{S_T2}, s2, 0x20004\ns_add_u32 s{S_T}, s{S_T}, s{S_T2}\ns_mul_i32 s{S_T}, s{S_T}, {64*5120}\ns_add_u32 s{S_T}, s{S_T}, {hex(k3f.WS_PART2)}")
            e(f"buffer_load_dword v107, v104, s[{SRD_WS}:{SRD_WS+3}], s{S_T} offen")
            e(f"s_load_dwordx2 s[92:93], s[0:1], {KA_OUT}\ns_waitcnt lgkmcnt(0)")
            em.ds_done = em.ds - 1
            e(f"s_bfe_u32 s{S_T}, s2, 0x20001\ns_mul_i32 s{S_T}, s{S_T}, {512*1152}\nv_mov_b32 v108, s{S_T}")
            e("global_load_dword v109, v108, s[92:93]")
        em.e(f"s_mov_b32 s{S_LOOP}, 6")
        em.e(".p2align 6")
        em.label("K2_LOOP")
        if fused:
            em.e(f"s_cmp_eq_u32 s{S_LOOP}, 5\ns_cbranch_scc0 K2_NOWOFC\ns_cmp_eq_u32 s{S_PASS}, 0\ns_cbranch_scc0 K2_NOWOFC")
            k3f.atomic_inc(em, k3f.C_WOF, "K2_NOWOFC", vt=TMP, st=S_T)
            em.e("s_nop 1")
        if k2new.FRONT[0] == 4:
            moe2.loop_head_prefetch(em)
            em.e(f"s_cmp_eq_u32 s{S_LOOP}, 3\ns_cbranch_scc0 K2_NOXSG\ns_cmp_eq_u32 s2, {moe2.XSWG}\ns_cbranch_scc0 K2_NOXSG")
            moe2.xs_gather(em, wait_wof=True)
            em.label("K2_NOXSG")
        em.e(f"s_cmp_eq_u32 s{S_LOOP}, 1\ns_cbranch_scc0 K2_NOXF")
        moe2.loop_head_flag(em)
        if k2new.CPF[0] and CPF2[0]:
            code_prefetch(em, "K2_LAST", "K2_CODE_END", 2, S_WAVE, 1, (234 if PV2[0] else 108), (238 if PV2[0] else 105), 92, "k2b", forward=True); em.vm -= 1
        em.label("K2_NOXF")
        em.e("s_waitcnt lgkmcnt(8)"); em.ds_done = em.ds - 9
        emit_iter(em, "mid", order)
        em.e("s_cbranch_scc1 K2_LOOP")
        em.vm = 16; TAGS[("body", -2)] = 7; TAGS[("body", -1)] = 15
        em.label("K2_LAST")
        moe2.setup_before_last(em)
        emit_iter(em, "last", order, extras=moe2.extras_last)
        stamp(em, prof)
        e = em.e
        if not fused:
            emit_epilogue(em, ost)
            moe2.emit_tail(em)
        else:
            if FINFUSE[0]:
                emit_final_fused(em, "sc0 sc1", xsel=([moe2.xsel_item(sg) for sg in range(15, 18)] if PV2[0] else ()))
                emit_check2(em)
                k3f.early(em)
            else:
                emit_final_pv(em)
                emit_check_and_fallback(em)
                k3f.early(em)
                emit_epilogue(em, "sc0 sc1", pv=False)
            stamp(em, prof)
            e(f"s_cmp_lt_u32 s2, {moe2.NGD[0]}\ns_cbranch_scc0 K2_NOGD")
            e(f"s_waitcnt vmcnt({19 if PV2[0] else 16})\ns_barrier")
            moe2.emit_tail(em, fused=True, mid=lambda: (e("s_waitcnt vmcnt(0)"), k3f.oflag_set(em, 14)))
            k3f.setup(em)
            e("s_waitcnt vmcnt(0)\ns_barrier")
            k3f.atomic_inc(em, k3f.C_Y, "K2_YC1")
            em.vm = 0
            e(f"buffer_load_dword v{k3f.OFV8+1}, v{k3f.OFV8}, s[{SRD_WS}:{SRD_WS+3}], s{k3f.P_OD} offen sc0 sc1")
            for st in range(3): k3f.emit_items(em, k3f.a_dma(st))
            e("s_waitcnt vmcnt(27)")
            e("s_branch K2_P2A")
            em.label("K2_NOGD")
            k3f.setup(em)
            e("s_barrier")
            for st in range(3): k3f.emit_items(em, k3f.a_dma(st))
            e("s_waitcnt vmcnt(27)")
            k3f.oflag_set(em)
            e(f"buffer_load_dword v{k3f.OFV8+1}, v{k3f.OFV8}, s[{SRD_WS}:{SRD_WS+3}], s{k3f.P_OD} offen sc0 sc1\ns_waitcnt vmcnt(0)")
            em.label("K2_P2A")
            k3f.oflag_need(em, 1, "K2_OF01")
            for st in range(2): k3f.emit_items(em, k3f.b_ld(st))
            em.label("K2_P2")
            k3f.main(em, lambda em_: stamp(em_, prof))
    if prof:
        em.e("s_waitcnt vmcnt(0)")
        stamp(em, prof)
        stamp_out(em, prof)
        if DBGOUT[0]:
            e = em.e
            for wg, words in ((0, (3, 4, 5, 6, 7, 9)), (133, (10, 11, 12, 13, 14, 15))):
                lab = f"K2_DBG{wg}"
                e(f"s_cmp_eq_u32 s2, {wg}\ns_cbranch_scc0 {lab}\ns_cmp_eq_u32 s{S_WAVE}, 0\ns_cbranch_scc0 {lab}")
                e("v_readlane_b32 s49, v2, 0\ns_nop 3")
                for k, w in zip((2, 3, 5, 7, 8, 10), words):
                    e(f"v_readlane_b32 s48, v2, {k}\ns_nop 3\ns_sub_u32 s48, s48, s49\nv_mov_b32 v6, s48\nv_mov_b32 v5, 0\ns_mov_b64 exec, 1")
                    e(f"buffer_store_dword v6, v5, s[68:71], 0 offen offset:{4*w}")
                    e("s_mov_b64 exec, -1")
                em.label(lab)
    print("k2 min DS distance:", em.minN, "stamps", NST[0])
    em.label("K2_END")
    em.e("s_endpgm")
    em.label("K2_CODE_END")
    L2 = []
    seen_head = False
    for line in em.L:
        L2.append(line)
        if line.startswith("s_cbranch_scc1 K2_END") and not seen_head:
            L2.append("s_mov_b32 s100, 0"); seen_head = True
        if line.startswith("s_sleep"):
            L2 += ["s_add_u32 s100, s100, 1", "s_bitcmp1_b32 s100, 19", "s_cbranch_scc1 K2_END"]
    em.L = L2
    return em.text(), kernel_desc(name, 512, 102, 256), f"; @launch kernel={name} grid=(256,1,1) block=(256,1,1) lds={LDS_TOTAL}"
```

```python
from asmlib import *
import k2 as K
from k2 import *
import k2new as N
from k2new import SRD_X, SRD_WR, SRD_WO, SRD_DBG, LN_RS, WOF_LDS, dpp_reduce32, bf16r, emit_wof_addr, CSACC, STATV, CNTV
XS = [0, 65536]
XH = 32768
WQR = 131072
CSBUF = 131072
LN_ST = 114688
XD = 104
XD = 200
XHV = 204
XHA = 205
XNK = 152
LNA = 161
BR = 0
T4 = {}

def emit_front4(em, prof):
    e = em.e
    e("s_cmp_ge_u32 s2, 256\ns_cbranch_scc1 K2_END")
    e(f"s_load_dwordx2 s[72:73], s[0:1], {KA_X}")
    e(f"s_load_dwordx2 s[74:75], s[0:1], {KA_WR}")
    e(f"s_load_dwordx2 s[52:53], s[0:1], {KA_WQ}")
    e(f"s_load_dwordx2 s[54:55], s[0:1], {KA_WS}")
    e(f"s_load_dwordx4 s[4:7], s[0:1], {KA_K}")
    e(f"s_load_dwordx2 s[76:77], s[0:1], {KA_WO}")
    e(f"s_load_dwordx2 s[78:79], s[0:1], {KA_DBG}")
    e("s_lshr_b32 s28, s2, 3")
    e(f"s_and_b32 s3, s2, 1\ns_lshl_b32 s3, s3, 4\ns_lshr_b32 s29, s28, 1\ns_add_u32 s{S_HEAD}, s3, s29")
    e(f"s_and_b32 s3, s2, 6\ns_and_b32 s29, s28, 1\ns_add_u32 s{S_QB}, s3, s29")
    e(f"s_lshl_b32 s3, s{S_QB}, 8\ns_lshl_b32 s28, s{S_HEAD}, 3\ns_add_u32 s3, s3, s28")
    e("v_and_b32 v1, 63, v0\nv_lshrrev_b32 v2, 6, v0")
    e("v_and_b32 v3, 15, v1\nv_lshrrev_b32 v4, 4, v1")
    e(f"v_readfirstlane_b32 s{S_WAVE}, v2")
    for k in range(4):
        e(f"v_add_u32 v9, {4*k}, v4\nv_xor_b32 v10, v9, v3\nv_lshlrev_b32 v10, 4, v10\nv_mul_u32_u24 v9, 0x480, v9\nv_add_u32 v10, v10, v9")
        e(f"v_subrev_u32 v{XD+k}, {1024*k}, v10" if k else f"v_mov_b32 v{XD}, v10")
    e(f"s_lshl_b32 s{S_T}, s{S_QB}, 8\ns_lshl_b32 s{S_T2}, s{S_WAVE}, 6\ns_add_u32 s{S_T}, s{S_T}, s{S_T2}\ns_mul_i32 s97, s{S_T}, 1152")
    e(f"s_lshl_b32 s96, s{S_WAVE}, 14")
    e(f"s_and_b32 s28, s{S_WAVE}, 1\ns_lshl_b32 s28, s28, 2\nv_or_b32 v9, s28, v4\nv_lshlrev_b32 v9, 1, v9\nv_xor_b32 v9, v9, v3\nv_lshlrev_b32 v9, 4, v9")
    e(f"s_lshl_b32 s{S_T}, s{S_WAVE}, 16")
    e(f"v_lshl_add_u32 v9, v4, 13, v9\nv_add_u32 v{DW}, s{S_T}, v9\nv_add_u32 v{DW+1}, {4*8192-1024}, v{DW}")
    e(f"s_lshl_b32 s{S_WQOFF}, s{S_HEAD}, 8")
    e(f"s_lshl_b32 s{S_MX}, s{S_WAVE}, 11\ns_add_u32 s{S_MX}, s{S_MX}, {WQR}")
    e("v_lshrrev_b32 v5, 5, v0\nv_add_u32 v5, s3, v5\nv_and_b32 v6, 31, v0")
    e("v_mul_u32_u24 v7, 0x480, v5\nv_lshl_add_u32 v7, v6, 2, v7\nv_lshlrev_b32 v8, 2, v6")
    e("s_waitcnt lgkmcnt(0)")
    srd(em, SRD_X, 72, 73, 2048 * 1152)
    srd(em, SRD_WQ, 52, 53, 576 * 8192)
    tags = T4; tags.clear()
    def wq_dma(sg):
        e(f"s_add_u32 m0, s{S_MX}, {(sg&3)*8192}\ns_nop 0")
        for i in range(2):
            tags[("wq", sg)] = em.vmem(f"buffer_load_dwordx4 v{DW+i}, s[{SRD_WQ}:{SRD_WQ+3}], s{S_WQOFF} offen offset:{i*1024} lds")
        e(f"s_add_u32 s{S_WQOFF}, s{S_WQOFF}, {32*8192}")
    def x_dma(c):
        for gi in range(4):
            e(f"s_add_u32 m0, s96, {XS[c&1] + gi*4096}\ns_add_u32 s{S_T}, s97, {gi*18432 + c*256}")
            for k in range(4):
                tags[("x", c)] = em.vmem(f"buffer_load_dwordx4 v{XD+k}, s[{SRD_X}:{SRD_X+3}], s{S_T} offen offset:{k*1024} lds")
    wq_dma(0); x_dma(0); wq_dma(1)
    X, W, F = 18, 28, 40
    srd(em, SRD_WR, 74, 75, 1152)
    for i in range(9): em.vmem(f"buffer_load_dword v{X+i}, v7, s[{SRD_X}:{SRD_X+3}], 0 offen offset:{i*128}")
    xtag = em.vm - 1
    for i in range(9): em.vmem(f"buffer_load_dword v{W+i}, v8, s[{SRD_WR}:{SRD_WR+3}], 0 offen offset:{i*128}")
    wtag = em.vm - 1
    if N.CPF[0]: code_prefetch(em, N.KNAME[0], "K2_CODE_END", 2, S_WAVE, 1, 100, 99, 92, "k2")
    wq_dma(2); wq_dma(3); x_dma(1)
    for k in range(4): e(f"s_mov_b32 s{N.SRD_X2+k}, s{SRD_X+k}")
    e(f"s_mov_b32 s{N.SRD_X2+3}, 0x00020000")
    K.stamp(em, prof)
    e(f"s_lshl_b32 s{S_W4K}, s{S_WAVE}, 12")
    e(f"v_lshlrev_b32 v{L16}, 4, v1")
    for u in range(4):
        e(f"s_add_u32 s28, s{S_WAVE}, {u}\ns_and_b32 s28, s28, 3\ns_lshl_b32 s28, s28, 2")
        e(f"v_add_u32 v9, s28, v4\nv_xor_b32 v9, v9, v3\nv_lshlrev_b32 v9, 4, v9\nv_lshl_add_u32 v{KA+u}, v3, 8, v9")
    for kk in range(4):
        e(f"v_add_u32 v9, {4*kk}, v4\nv_xor_b32 v9, v9, v3\nv_lshlrev_b32 v9, 4, v9\nv_lshl_add_u32 v9, v3, 8, v9\nv_add_u32 v{XB+kk}, s96, v9")
    e(f"v_lshrrev_b32 v9, 3, v1\nv_and_b32 v10, 7, v1\nv_xor_b32 v10, v10, v9\nv_lshlrev_b32 v10, 4, v10\nv_mul_u32_u24 v9, 0x480, v9\nv_add_u32 v{XHV}, v9, v10")
    e(f"s_lshl_b32 s28, s{S_WAVE}, 13\ns_add_u32 s28, s28, {XH}\nv_and_b32 v10, 7, v3")
    for p in range(2):
        e(f"v_add_u32 v9, {4*p}, v4\nv_xor_b32 v9, v9, v10\nv_lshlrev_b32 v9, 4, v9\nv_lshl_add_u32 v9, v3, 7, v9\nv_add_u32 v{XHA+p}, s28, v9")
    e("v_bfe_u32 v9, v1, 2, 2\nv_and_b32 v10, 3, v1\nv_lshl_add_u32 v11, v4, 2, v9")
    e("v_and_b32 v12, 7, v11")
    e(f"v_lshlrev_b32 v13, 8, v11\nv_lshl_add_u32 v13, v10, 3, v13\nv_add_u32 v13, {hex(LDS_V)}, v13")
    for T in range(8):
        e(f"v_xor_b32 v14, {T}, v12\nv_lshl_add_u32 v{VA+T}, v14, 5, v13")
    e("v_and_b32 v14, 1, v4\nv_lshl_add_u32 v14, v14, 2, v9")
    e("v_lshrrev_b32 v15, 1, v10\nv_xor_b32 v14, v14, v15")
    e(f"v_lshl_add_u32 v15, v4, 3, v9\nv_lshlrev_b32 v15, 8, v15\nv_and_b32 v16, 1, v10\nv_lshl_add_u32 v15, v16, 4, v15\nv_add_u32 v15, {WQR}, v15")
    for u in range(4):
        e(f"s_add_u32 s28, s{S_WAVE}, {u}\ns_and_b32 s28, s28, 3\ns_lshl_b32 s28, s28, 1")
        e(f"v_xor_b32 v16, s28, v14\nv_lshl_add_u32 v{WQA+u}, v16, 5, v15")
    e(f"v_mul_u32_u24 v16, 576, v11\nv_lshl_add_u32 v16, v10, 3, v16\nv_add_u32 v16, {hex(WOF_LDS)}, v16")
    e(f"s_lshl_b32 s{S_T}, s{S_WAVE}, 5\nv_add_u32 v{TMP+8}, s{S_T}, v16")
    for i in range(4):
        e(f"v_add_u32 v9, {4*i}, v4\nv_xor_b32 v9, v9, v3\nv_lshlrev_b32 v9, 4, v9\nv_lshl_add_u32 v9, v4, 8, v9\nv_add_u32 v{DK+i}, s{S_W4K}, v9")
    for i in range(2):
        e(f"v_add_u32 v9, {4*i}, v4\nv_lshlrev_b32 v9, 1, v9\nv_xor_b32 v9, v9, v3\nv_lshlrev_b32 v9, 4, v9\nv_lshl_add_u32 v9, v4, 8, v9\nv_add_u32 v{DV+i}, s{S_W4K}, v9")
    e(f"s_lshl_b32 s{S_T}, s{S_QB}, 4\ns_lshl_b32 s{S_T2}, s{S_WAVE}, 2\ns_add_u32 s{S_T}, s{S_T}, s{S_T2}")
    e(f"s_lshl_b32 s{S_OFB}, s{S_T}, 17\ns_lshl_b32 s{S_T2}, s{S_HEAD}, 12\ns_add_u32 s{S_OFB}, s{S_OFB}, s{S_T2}")
    for k in range(5): e(f"s_mov_b32 s{S_X4+k}, {k*4096}")
    e(f"s_mov_b32 s{S_THR}, 0x5f800000\ns_mov_b32 s{S_PASS}, 0")
    for i in range(4): e(f"v_mov_b32 v{TMP}, 0x3f803f80\nv_accvgpr_write_b32 a{AONE+i}, v{TMP}")
    e(f"s_lshr_b32 s{S_T}, s{S_HEAD}, 1\ns_lshl_b32 s{S_T}, s{S_T}, 19")
    e(f"s_add_u32 s4, s4, s{S_T}\ns_addc_u32 s5, s5, 0\ns_add_u32 s6, s6, s{S_T}\ns_addc_u32 s7, s7, 0")
    srd(em, SRD_K, 4, 5, 524288)
    srd(em, SRD_V, 6, 7, 524288)
    srd(em, SRD_WS, 54, 55, WS_SIZE)
    e(f"s_add_u32 s54, s54, {hex(WS_OF)}\ns_addc_u32 s55, s55, 0")
    srd(em, SRD_OF, 54, 55, 2048 * 4096 * 2)
    srd(em, SRD_WO, 76, 77, 4096 * 1152)
    srd(em, SRD_DBG, 78, 79, 256)
    e(f"s_load_dwordx2 s[80:81], s[0:1], {KA_WG}\ns_load_dwordx2 s[82:83], s[0:1], {KA_WU}\ns_load_dwordx2 s[84:85], s[0:1], {KA_WD}")
    c = f2u(128 ** -0.5 * 1.4426950408889634)
    e(f"s_mov_b32 s72, 0x3ae38e39\ns_mov_b32 s73, 0x3727c5ac\ns_mov_b32 s74, 0xffff0000\ns_mov_b32 s75, {hex(c)}")
    em.wait_vm(xtag)
    for i in range(9):
        e(f"v_lshlrev_b32 v{F+2*i}, 16, v{X+i}\nv_and_b32 v{F+2*i+1}, s74, v{X+i}")
    A0, A1, A2, A3 = 60, 61, 62, 63
    e(f"v_add_f32 v{A0}, v{F}, v{F+1}\nv_add_f32 v{A1}, v{F+2}, v{F+3}")
    for i in range(4, 18, 2): e(f"v_add_f32 v{A0}, v{A0}, v{F+i}\nv_add_f32 v{A1}, v{A1}, v{F+i+1}")
    e(f"v_add_f32 v{A0}, v{A0}, v{A1}")
    dpp_reduce32(em, A0, A1)
    e(f"v_mul_f32 v{A0}, s72, v{A0}")
    e(f"v_sub_f32 v{A2}, v{F}, v{A0}\nv_mul_f32 v{A1}, v{A2}, v{A2}\nv_sub_f32 v{A2}, v{F+1}, v{A0}\nv_mul_f32 v{A3}, v{A2}, v{A2}")
    for i in range(2, 18, 2):
        e(f"v_sub_f32 v{A2}, v{F+i}, v{A0}\nv_sub_f32 v64, v{F+i+1}, v{A0}\nv_fmac_f32 v{A1}, v{A2}, v{A2}\nv_fmac_f32 v{A3}, v64, v64")
    e(f"v_add_f32 v{A1}, v{A1}, v{A3}")
    dpp_reduce32(em, A1, A2)
    e(f"v_mul_f32 v{A1}, s72, v{A1}")
    bf16r(em, A0, A0); bf16r(em, A1, A1)
    e(f"v_add_f32 v{A1}, s73, v{A1}")
    bf16r(em, A1, A1)
    e(f"v_sqrt_f32 v{A1}, v{A1}\ns_nop 0")
    bf16r(em, A1, A1)
    e(f"v_rcp_f32 v{A2}, v{A1}\ns_nop 0")
    e(f"v_mul_f32 v70, s75, v{A2}\nv_mul_f32 v71, v70, v{A0}\nv_sub_f32 v71, 0, v71")
    e(f"v_mov_b32 v{A3}, 0")
    e(f"v_lshrrev_b32 v65, 5, v0\nv_mul_u32_u24 v65, {LN_RS}, v65\nv_lshl_add_u32 v65, v6, 2, v65\nv_add_u32 v{LNA}, {hex(LN_ST)}, v65")
    em.wait_vm(wtag)
    for i in range(9):
        a, b = F + 2 * i, F + 2 * i + 1
        e(f"v_sub_f32 v{a}, v{a}, v{A0}\nv_sub_f32 v{b}, v{b}, v{A0}")
        e(f"v_cvt_pk_bf16_f32 v66, v{a}, v{b}")
        e(f"v_lshlrev_b32 v{a}, 16, v66\nv_and_b32 v{b}, s74, v66")
        e(f"v_mul_f32 v67, v{a}, v{A2}\nv_mul_f32 v68, v{b}, v{A2}")
        e(f"v_fma_f32 v{a}, -v67, v{A1}, v{a}\nv_fma_f32 v{b}, -v68, v{A1}, v{b}")
        e(f"v_fmac_f32 v67, v{a}, v{A2}\nv_fmac_f32 v68, v{b}, v{A2}")
        e(f"v_cvt_pk_bf16_f32 v{XNK+i}, v67, v68")
        e(f"v_dot2_f32_bf16 v{A3}, v{XNK+i}, v{W+i}, v{A3}")
    e("s_nop 2")
    dpp_reduce32(em, A3, A2)
    bf16r(em, A3, A3)
    e(f"v_lshlrev_b32 v66, 2, v5\nv_add_u32 v66, {hex(WS_R)}, v66\nv_lshlrev_b32 v67, 3, v5\nv_add_u32 v67, {hex(WS_STAT)}, v67")
    e("v_cmp_eq_u32 vcc, 0, v6\ns_and_saveexec_b64 s[76:77], vcc")
    em.vmem(f"buffer_store_dword v{A3}, v66, s[{SRD_WS}:{SRD_WS+3}], 0 offen sc0 sc1")
    em.vmem(f"buffer_store_dwordx2 v[70:71], v67, s[{SRD_WS}:{SRD_WS+3}], 0 offen sc0 sc1")
    e("s_mov_b64 exec, s[76:77]")
    e(f"s_cmp_eq_u32 s2, 0\ns_lshl_b32 s28, s{S_WAVE}, 10\ns_add_u32 s28, s28, {hex(WS_FLAGS)}" .replace("s_cmp_eq_u32 s2, 0\n", ""))
    e("s_cmp_eq_u32 s2, 0\ns_cselect_b32 s28, s28, 0x7ff00000")
    e("v_mov_b32 v84, 0\nv_mov_b32 v85, 0\nv_mov_b32 v86, 0\nv_mov_b32 v87, 0")
    for zk in range(3):
        tags["lnst"] = em.vmem(f"buffer_store_dwordx4 v[84:87], v{L16}, s[{SRD_WS}:{SRD_WS+3}], s28 offen sc0 sc1")
        e("s_add_u32 s28, s28, 4096")
    e("s_waitcnt lgkmcnt(0)")
    import moe2
    moe2.setup_front(em)
    em.ds_done = em.ds - 1
    K.stamp(em, prof); K.stamp(em, prof)

def emit_qproj4(em):
    import moe2
    e = em.e
    NK = 18
    tags = T4
    def wq_items(sg):
        r = [("salu", f"s_add_u32 m0, s{S_MX}, {(sg&3)*8192}")]
        r += [("vmem", f"buffer_load_dwordx4 v{DW+i}, s[{SRD_WQ}:{SRD_WQ+3}], s{S_WQOFF} offen offset:{i*1024} lds", ("wq", sg)) for i in range(2)]
        r += [("salu", f"s_add_u32 s{S_WQOFF}, s{S_WQOFF}, {32*8192}")]
        return r
    def x_items(c, g0, g1):
        r = []
        for gi in range(g0, g1):
            r.append(("salu", f"s_add_u32 m0, s96, {XS[c&1] + gi*4096}\ns_add_u32 s{S_T}, s97, {gi*18432 + c*256}"))
            for k in range(4):
                r.append(("vmem", f"buffer_load_dwordx4 v{XD+k}, s[{N.SRD_X2}:{N.SRD_X2+3}], s{S_T} offen offset:{k*1024} lds", ("x", c)))
        return r
    def xh_items():
        r = []
        for i in range(8):
            r.append(("vmem", f"s_lshl_b32 s{S_T2}, s{S_WAVE}, 13\ns_add_u32 m0, s{S_T2}, {XH + i*1024}\ns_add_u32 s{S_T}, s97, {i*8*1152 + 1024}\nbuffer_load_dwordx4 v{XHV}, s[{N.SRD_X2}:{N.SRD_X2+3}], s{S_T} offen lds", ("x", 4)))
        return r
    def kv_init(kind, T):
        sreg = S_KOFF if kind == "K" else S_VOFF
        r = [("salu", f"s_mov_b32 s{sreg}, {T*16384}")]
        r += [(k, t) for k, t in (dma_k(T) if kind == "K" else dma_v(T))]
        return r
    def issue(items):
        prev = None
        for it in items:
            if it[0] == "vmem":
                if prev is not None and "m0" in prev[1] and prev[0] == "salu" and prev[1].strip().endswith(tuple(str(d) for d in range(10))) and prev[1].count("\n") == 0: e("s_nop 0")
                idx = em.vmem(it[1])
                if len(it) > 2: tags[it[2]] = idx
            else: e(it[1])
            prev = it
    def aset(sg): return AK + (sg & 1) * 32
    def a_ld(sg):
        r = []
        for t in range(8):
            u, half = t >> 1, t & 1
            for j in range(2):
                r.append(f"ds_read_b64_tr_b16 {ar(aset(sg)+t*4+2*j,2)}, v{WQA+u} offset:{(sg&3)*8192 + j*1024 + 8*half}")
        return r
    def b_ld(sg):
        c, kk = sg >> 2, sg & 3
        if c < 4: return [f"ds_read_b128 {ar(BR+((sg&1)*4+qs)*4,4)}, v{XB+kk} offset:{qs*4096}" for qs in range(4)]
        return [f"ds_read_b128 {ar(BR+((sg&1)*4+qs)*4,4)}, v{XHA+kk} offset:{qs*2048}" for qs in range(4)]
    em.wait_vm(max(tags[("wq", 0)], tags[("x", 0)]))
    e("s_barrier")
    for t in a_ld(0) + b_ld(0): em.ds_load(t)
    PUB, CHK0, CHK1 = 3, 9, 12
    nw = 4
    for sg in range(NK):
        c, kk = sg >> 2, sg & 3
        need = -1
        if sg + 1 < NK:
            need = max(tags[("wq", sg + 1)], tags[("x", (sg + 1) >> 2)])
        if sg == PUB: need = max(need, tags["lnst"])
        if sg == CHK1: need = max(need, tags["cnt"])
        if need >= 0: em.wait_vm(need)
        em.ds_all_done(); e("s_barrier")
        if N.QSTAMP[0]: K.stamp(em, True, 30 + sg)
        if sg == PUB:
            e(f"s_cmp_eq_u32 s{S_WAVE}, 0\ns_cbranch_scc0 K2_NOATOM")
            e(f"s_lshl_b32 s28, s{S_QB}, 5\nv_mov_b32 v{TMP}, 0\nv_mov_b32 v{TMP+1}, 1")
            e("s_mov_b64 exec, 1")
            e(f"buffer_atomic_add v{TMP+1}, v{TMP}, s[{SRD_DBG}:{SRD_DBG+3}], s28 offen sc1")
            e("s_mov_b64 exec, -1")
            em.label("K2_NOATOM")
            e("s_nop 3")
        if sg == 8: tkpos = moe2.topk_async1(em)
        if sg == 12: moe2.topk_async2(em, tkpos)
        if sg == CHK0:
            e(f"s_lshl_b32 s28, s{S_QB}, 5\nv_mov_b32 v{TMP}, 0")
            tags["cnt"] = em.vmem(f"buffer_load_dword v{CNTV}, v{TMP}, s[{SRD_DBG}:{SRD_DBG+3}], s28 offen sc0 sc1")
        if sg == CHK1:
            e(f"v_readfirstlane_b32 s29, v{CNTV}\ns_cmp_ge_u32 s29, 32\ns_cbranch_scc1 K2_CNTOK")
            em.label("K2_CNTSPIN")
            e(f"s_lshl_b32 s28, s{S_QB}, 5\ns_sleep 2\nbuffer_load_dword v{CNTV}, v{TMP}, s[{SRD_DBG}:{SRD_DBG+3}], s28 offen sc0 sc1\ns_waitcnt vmcnt(0)")
            e(f"v_readfirstlane_b32 s29, v{CNTV}\ns_cmp_ge_u32 s29, 32\ns_cbranch_scc0 K2_CNTSPIN")
            em.label("K2_CNTOK")
            e(f"s_lshl_b32 s28, s{S_QB}, 8\ns_lshl_b32 s29, s{S_WAVE}, 6\ns_add_u32 s28, s28, s29\ns_lshl_b32 s28, s28, 3\ns_add_u32 s28, s28, {hex(WS_STAT)}")
            e(f"v_lshlrev_b32 v{CNTV}, 3, v3")
            for qs in range(4):
                tags["stat"] = em.vmem(f"buffer_load_dwordx2 {vr(STATV+2*qs,2)}, v{CNTV}, s[{SRD_WS}:{SRD_WS+3}], s28 offen offset:{qs*128} sc0 sc1")
        if sg == 16:
            for i in range(9): em.dsop(f"ds_write_b32 v{LNA}, v{XNK+i} offset:{i*128}")
        if sg == 17:
            emit_xnf_store(em)
        mf = []
        for t in range(8):
            for qs in range(4):
                acc = QACC + (t * 4 + qs) * 4
                b = BR + ((sg & 1) * 4 + qs) * 4
                mf.append(f"{MF} {vr(acc,4)}, {ar(aset(sg)+t*4,4)}, {ar(b,4)}, {'0' if sg == 0 else vr(acc,4)}")
            if t < 2:
                mf.append(f"{MF} {vr(CSACC+4*t,4)}, {ar(aset(sg)+t*4,4)}, {ar(AONE,4)}, {'0' if sg == 0 else vr(CSACC+4*t,4)}")
        n = len(mf)
        fill = [[] for _ in range(n + 1)]
        if sg + 1 < NK:
            if ((sg + 1) & 3) == 0 and (sg + 1) < 16:
                d = 65536 if (((sg + 1) >> 2) & 1) else -65536
                for k in range(4): e(f"v_add_u32 v{XB+k}, {d & 0xffffffff:#x}, v{XB+k}")
            lst = b_ld(sg + 1) + a_ld(sg + 1)
            for k, t in enumerate(lst): fill[min((k * 3) // 2 + 1, n - 1)].append(t)
        vm = []
        if nw < NK: vm += wq_items(nw); nw += 1
        XS_ = {3: (2, 0, 2), 4: (2, 2, 3), 5: (2, 3, 4), 7: (3, 0, 2), 8: (3, 2, 3), 9: (3, 3, 4)}
        if sg in XS_: vm += x_items(*XS_[sg])
        if sg == 12: vm += xh_items()[:4] + kv_init("K", 0)
        if sg == 13: vm += xh_items()[4:]
        if sg == 14: vm += kv_init("K", 1)
        if sg == 16: vm += kv_init("V", 0) + kv_init("V", 1)
        if sg == 17: vm += kv_init("K", 2)
        for g in range(n):
            em.mfma(mf[g])
            for t in fill[g]: em.ds_load(t)
            if g % 2 == 1 and vm:
                take = [vm.pop(0)]
                while take[-1][0] == "salu" and vm: take.append(vm.pop(0))
                issue(take)
        issue(vm)
    e("s_nop 7")
    e(f"s_barrier")
    e(f"s_lshl_b32 s28, s{S_WAVE}, 7\ns_add_u32 s28, s28, {CSBUF}\nv_lshlrev_b32 v{CNTV}, 4, v4\nv_add_u32 v144, s28, v{CNTV}")
    e(f"ds_write_b128 v144, {vr(CSACC,4)}\nds_write_b128 v144, {vr(CSACC+4,4)} offset:64")
    em.wait_vm(tags["stat"])
    e("s_waitcnt lgkmcnt(0)\ns_barrier")
    for u in range(4):
        e(f"s_add_u32 s28, s{S_WAVE}, {u}\ns_and_b32 s28, s28, 3\ns_lshl_b32 s28, s28, 7\ns_add_u32 s28, s28, {CSBUF}\nv_add_u32 v{144+u}, s28, v{CNTV}")
    for u in range(4):
        e(f"ds_read_b128 {vr(136,4)}, v{144+u}\nds_read_b128 {vr(140,4)}, v{144+u} offset:64\ns_waitcnt lgkmcnt(0)")
        for qs in range(4):
            st = vr(STATV + 2 * qs, 2)
            for half in range(2):
                acc = QACC + ((2 * u + half) * 4 + qs) * 4
                for k in range(2):
                    e(f"v_pk_mul_f32 {vr(148+2*k,2)}, {vr(136+4*half+2*k,2)}, {st} op_sel:[0,1] op_sel_hi:[1,1]")
                for k in range(2):
                    e(f"v_pk_fma_f32 {vr(acc+2*k,2)}, {vr(acc+2*k,2)}, {st}, {vr(148+2*k,2)} op_sel:[0,0,0] op_sel_hi:[1,0,1]")
                e(f"v_cvt_pk_bf16_f32 v{Qf(qs,u)+2*half}, v{acc}, v{acc+1}")
                e(f"v_cvt_pk_bf16_f32 v{Qf(qs,u)+2*half+1}, v{acc+2}, v{acc+3}")
    em.ds_done = em.ds - 1
    emit_wof_addr(em)
    N.PRE_WAIT[0] = 11
    N.B1WAIT[0] = True

def emit_xnf_store(em):
    e = em.e
    R = 162
    e(f"v_and_b32 v{R}, 7, v1\nv_mul_u32_u24 v{R+1}, {LN_RS}, v{R}")
    e(f"v_lshrrev_b32 v{R+2}, 5, v1\nv_lshl_add_u32 v{R+1}, v{R+2}, 6, v{R+1}")
    e(f"v_bfe_u32 v{R+3}, v1, 3, 2\nv_lshl_add_u32 v{R+1}, v{R+3}, 3, v{R+1}")
    e(f"v_add_u32 v{R+1}, {hex(LN_ST)}, v{R+1}")
    e(f"s_lshl_b32 s28, s{S_WAVE}, 7\nv_add_u32 v{R+1}, s28, v{R+1}")
    e("s_lshr_b32 s28, s3, 4\ns_mul_i32 s28, s28, 18432\ns_and_b32 s29, s3, 15\ns_lshl_b32 s29, s29, 4\ns_add_u32 s28, s28, s29")
    e(f"s_lshl_b32 s29, s{S_WAVE}, 11\ns_add_u32 s28, s28, s29")
    e(f"v_lshlrev_b32 v{R+4}, 10, v{R+2}\nv_lshl_add_u32 v{R+5}, v{R+3}, 4, v{R}\nv_lshl_add_u32 v{R+4}, v{R+5}, 4, v{R+4}")
    G = 168
    for k in range(3): em.dsop(f"ds_read2_b64 {vr(G+4*k,4)}, v{R+1} offset0:{k*64} offset1:{k*64+4}")
    em.ds_all_done()
    for k in range(3):
        if k == 2: e(f"s_cmp_eq_u32 s{S_WAVE}, 0\ns_cselect_b32 s28, s28, 0x7ffffff0")
        em.vmem(f"buffer_store_dwordx4 {vr(G+4*k,4)}, v{R+4}, s[{SRD_WS}:{SRD_WS+3}], s28 offen sc0 sc1")
        e("s_add_u32 s28, s28, 8192")
```

```python
from asmlib import *
import k2 as K
from k2 import *

SRD_X, SRD_WR, SRD_WO, SRD_DBG = 56, 60, 64, 68
LN_LDS = 154496
LN_RS = 1168
WOF_LDS = LDS_X
WOFV = 104
WOFA = 109
WOFF = 112
XNSC = ['sc0 sc1']
S_WOF = 49

def dpp_reduce32(em, v, t, op="v_add_f32"):
    e = em.e
    for rot in (8, 4, 2, 1):
        e("s_nop 1")
        e(f"{op}_dpp v{t}, v{v}, v{v} row_ror:{rot} row_mask:0xf bank_mask:0xf")
        v, t = t, v
    e(f"v_mov_b32 v{t}, v{v}\ns_nop 1\nv_permlane16_swap_b32 v{v}, v{t}\n{op} v{v}, v{v}, v{t}")
    return v

def bf16r(em, dst, src):
    em.e(f"v_cvt_pk_bf16_f32 v{dst}, v{src}, v{src}\nv_lshlrev_b32 v{dst}, 16, v{dst}")

GDE = [True]
EARLY = [True]
SRD_X2 = 92
B1WAIT = [False]
PFN = [0]
PRE_WAIT = [0]
CPF = [True]
CPF3 = [0]
CPF0 = [True]
MAP = ['rq']
KNAME = ['k2_attn_kernel']
MOE_ON = [True]
NPRE = [8, 14]
WQT = {}
def emit_front(em, prof, moe=True):
    e = em.e
    e("s_cmp_ge_u32 s2, 256\ns_cbranch_scc1 K2_END")
    e(f"s_load_dwordx2 s[72:73], s[0:1], {KA_X}")
    if CPF[0] and CPF0[0]:
        e("s_getpc_b64 s[90:91]")
        em.label("PC_k20")
        e(f"s_sub_u32 s90, s90, PC_k20-{KNAME[0]}\ns_subb_u32 s91, s91, 0\nv_lshlrev_b32 v99, 4, v0")
        em.vmem("global_load_dwordx4 v[88:91], v99, s[90:91]")
    e(f"s_load_dwordx2 s[74:75], s[0:1], {KA_WR}")
    e(f"s_load_dwordx2 s[52:53], s[0:1], {KA_WQ}")
    e(f"s_load_dwordx2 s[54:55], s[0:1], {KA_WS}")
    e(f"s_load_dwordx4 s[4:7], s[0:1], {KA_K}")
    e(f"s_load_dwordx2 s[76:77], s[0:1], {KA_WO}")
    e(f"s_load_dwordx2 s[78:79], s[0:1], {KA_DBG}")
    e("s_lshr_b32 s28, s2, 3")
    if MAP[0] == "kv":
        e(f"s_and_b32 s3, s2, 7\ns_lshl_b32 s3, s3, 2\ns_lshr_b32 s29, s28, 3\ns_add_u32 s{S_HEAD}, s3, s29\ns_and_b32 s{S_QB}, s28, 7")
    else:
        e(f"s_and_b32 s3, s2, 1\ns_lshl_b32 s3, s3, 4\ns_lshr_b32 s29, s28, 1\ns_add_u32 s{S_HEAD}, s3, s29")
        e(f"s_and_b32 s3, s2, 6\ns_and_b32 s29, s28, 1\ns_add_u32 s{S_QB}, s3, s29")
    e(f"s_lshl_b32 s3, s{S_QB}, 8\ns_lshl_b32 s28, s{S_HEAD}, 3\ns_add_u32 s3, s3, s28")
    e("v_lshrrev_b32 v5, 5, v0\nv_add_u32 v5, s3, v5")
    e("v_and_b32 v6, 31, v0")
    e("v_mul_u32_u24 v7, 0x480, v5\nv_lshl_add_u32 v7, v6, 2, v7")
    e("v_and_b32 v1, 63, v0\nv_lshrrev_b32 v2, 6, v0")
    X, W, F = 18, 28, 40
    e("s_waitcnt lgkmcnt(0)")
    srd(em, SRD_X, 72, 73, 2048 * 1152)
    for i in range(9): em.vmem(f"buffer_load_dword v{X+i}, v7, s[{SRD_X}:{SRD_X+3}], 0 offen offset:{i*128}")
    xtag = em.vm - 1
    e(f"v_readfirstlane_b32 s{S_WAVE}, v2")
    e("v_lshlrev_b32 v8, 2, v6")
    e("v_and_b32 v3, 15, v1\nv_lshrrev_b32 v4, 4, v1")
    if CPF[0]:
        code_prefetch(em, KNAME[0], "K2_CODE_END", 2, S_WAVE, 1, 100, 99, 92, "k2")
    srd(em, SRD_WR, 74, 75, 1152)
    e(f"s_lshl_b32 s{S_T}, s{S_WAVE}, 16")
    for i in range(2):
        e(f"v_add_u32 v9, {4*i}, v4\nv_lshlrev_b32 v10, 1, v9\nv_xor_b32 v10, v10, v3\nv_lshlrev_b32 v10, 4, v10\nv_lshl_add_u32 v10, v9, 13, v10")
        e(f"v_add_u32 v10, s{S_T}, v10")
        if i: e(f"v_subrev_u32 v10, {1024*i}, v10")
        e(f"v_mov_b32 v{DW+i}, v10")
    e(f"s_lshl_b32 s{S_WQOFF}, s{S_HEAD}, 8")
    e(f"s_lshl_b32 s{S_MX}, s{S_WAVE}, 11")
    for i in range(9): em.vmem(f"buffer_load_dword v{W+i}, v8, s[{SRD_WR}:{SRD_WR+3}], 0 offen offset:{i*128}")
    wtag = em.vm - 1
    srd(em, SRD_WQ, 52, 53, 576 * 8192)
    def wq_dma(sg0, sg1):
        for sg in range(sg0, sg1):
            e(f"s_add_u32 m0, s{S_MX}, {sg*8192}\ns_nop 0")
            for i in range(2):
                WQT[sg] = em.vmem(f"buffer_load_dwordx4 v{DW+i}, s[{SRD_WQ}:{SRD_WQ+3}], s{S_WQOFF} offen offset:{i*1024} lds")
            e(f"s_add_u32 s{S_WQOFF}, s{S_WQOFF}, {32*8192}")
    wq_dma(0, NPRE[0])
    K.stamp(em, prof)
    e(f"s_lshl_b32 s{S_W4K}, s{S_WAVE}, 12")
    e(f"v_lshlrev_b32 v{L16}, 4, v1")
    for s in range(4):
        e(f"v_add_u32 v9, {4*s}, v4\nv_xor_b32 v9, v9, v3\nv_lshlrev_b32 v9, 4, v9\nv_lshl_add_u32 v{KA+s}, v3, 8, v9")
    e("v_bfe_u32 v9, v1, 2, 2\nv_and_b32 v10, 3, v1\nv_lshl_add_u32 v11, v4, 2, v9")
    e("v_and_b32 v12, 7, v11")
    e(f"v_lshlrev_b32 v13, 8, v11\nv_lshl_add_u32 v13, v10, 3, v13\nv_add_u32 v13, {hex(LDS_V)}, v13")
    for T in range(8):
        e(f"v_xor_b32 v14, {T}, v12\nv_lshl_add_u32 v{VA+T}, v14, 5, v13")
    e("v_lshrrev_b32 v14, 1, v10\nv_xor_b32 v14, v14, v12")
    e(f"v_and_b32 v15, 1, v10\nv_lshlrev_b32 v15, 4, v15\nv_lshl_add_u32 v15, v11, 8, v15")
    for s in range(4):
        e(f"v_xor_b32 v16, {2*s}, v14\nv_lshl_add_u32 v{WQA+s}, v16, 5, v15")
    e(f"v_mul_u32_u24 v16, 576, v11\nv_lshl_add_u32 v16, v10, 3, v16\nv_add_u32 v16, {hex(WOF_LDS)}, v16")
    e(f"s_lshl_b32 s{S_T}, s{S_WAVE}, 5\nv_add_u32 v{TMP+8}, s{S_T}, v16")
    for i in range(4):
        e(f"v_add_u32 v9, {4*i}, v4\nv_xor_b32 v9, v9, v3\nv_lshlrev_b32 v9, 4, v9\nv_lshl_add_u32 v9, v4, 8, v9\nv_add_u32 v{DK+i}, s{S_W4K}, v9")
    for i in range(2):
        e(f"v_add_u32 v9, {4*i}, v4\nv_lshlrev_b32 v9, 1, v9\nv_xor_b32 v9, v9, v3\nv_lshlrev_b32 v9, 4, v9\nv_lshl_add_u32 v9, v4, 8, v9\nv_add_u32 v{DV+i}, s{S_W4K}, v9")
    e(f"s_lshl_b32 s{S_T}, s{S_QB}, 4\ns_lshl_b32 s{S_T2}, s{S_WAVE}, 2\ns_add_u32 s{S_T}, s{S_T}, s{S_T2}")
    e(f"s_lshl_b32 s{S_OFB}, s{S_T}, 17\ns_lshl_b32 s{S_T2}, s{S_HEAD}, 12\ns_add_u32 s{S_OFB}, s{S_OFB}, s{S_T2}")
    e(f"s_mul_i32 s{S_T}, s{S_T}, 18432")
    for qs in range(4):
        e(f"s_add_u32 s{S_T2}, s{S_T}, {qs*18432 + WS_XNF}\nv_add_u32 v{XB+qs}, s{S_T2}, v{L16}")
    for k in range(5): e(f"s_mov_b32 s{S_X4+k}, {k*4096}")
    c = f2u(128 ** -0.5 * 1.4426950408889634)
    e(f"s_mov_b32 s{S_C}, {hex(c)}\ns_mov_b32 s{S_C+1}, {hex(c)}")
    e(f"s_mov_b32 s{S_THR}, 0x5f800000\ns_mov_b32 s{S_PASS}, 0")
    for i in range(4): e(f"v_mov_b32 v{TMP}, 0x3f803f80\nv_accvgpr_write_b32 a{AONE+i}, v{TMP}")
    e(f"s_lshr_b32 s{S_T}, s{S_HEAD}, 1\ns_lshl_b32 s{S_T}, s{S_T}, 19")
    e(f"s_add_u32 s4, s4, s{S_T}\ns_addc_u32 s5, s5, 0\ns_add_u32 s6, s6, s{S_T}\ns_addc_u32 s7, s7, 0")
    srd(em, SRD_K, 4, 5, 524288)
    srd(em, SRD_V, 6, 7, 524288)
    srd(em, SRD_WS, 54, 55, WS_SIZE)
    e(f"s_add_u32 s54, s54, {hex(WS_OF)}\ns_addc_u32 s55, s55, 0")
    srd(em, SRD_OF, 54, 55, 2048 * 4096 * 2)
    srd(em, SRD_WO, 76, 77, 4096 * 1152)
    srd(em, SRD_DBG, 78, 79, 256)
    if EARLY[0]:
        emit_wof_addr(em)
        for k in range(5):
            em.vmem(f"s_lshl_b32 s{S_T}, s{S_WAVE}, 10\ns_add_u32 m0, s{S_T}, {WOF_LDS + 4096*k}\ns_nop 0\nbuffer_load_dwordx4 v{WOFV+k}, s[{SRD_WO}:{SRD_WO+3}], s{S_WOF} offen lds")
        e(f"s_load_dwordx2 s[80:81], s[0:1], {KA_WG}\ns_load_dwordx2 s[82:83], s[0:1], {KA_WU}\ns_load_dwordx2 s[84:85], s[0:1], {KA_WD}")
    e("s_mov_b32 s72, 0x3ae38e39\ns_mov_b32 s73, 0x3727c5ac\ns_mov_b32 s74, 0xffff0000")
    em.wait_vm(xtag)
    for i in range(9):
        e(f"v_lshlrev_b32 v{F+2*i}, 16, v{X+i}\nv_and_b32 v{F+2*i+1}, s74, v{X+i}")
    A0, A1, A2, A3 = 60, 61, 62, 63
    e(f"v_add_f32 v{A0}, v{F}, v{F+1}\nv_add_f32 v{A1}, v{F+2}, v{F+3}")
    for i in range(4, 18, 2): e(f"v_add_f32 v{A0}, v{A0}, v{F+i}\nv_add_f32 v{A1}, v{A1}, v{F+i+1}")
    e(f"v_add_f32 v{A0}, v{A0}, v{A1}")
    dpp_reduce32(em, A0, A1)
    e(f"v_mul_f32 v{A0}, s72, v{A0}")
    e(f"v_sub_f32 v{A2}, v{F}, v{A0}\nv_mul_f32 v{A1}, v{A2}, v{A2}\nv_sub_f32 v{A2}, v{F+1}, v{A0}\nv_mul_f32 v{A3}, v{A2}, v{A2}")
    for i in range(2, 18, 2):
        e(f"v_sub_f32 v{A2}, v{F+i}, v{A0}\nv_sub_f32 v64, v{F+i+1}, v{A0}\nv_fmac_f32 v{A1}, v{A2}, v{A2}\nv_fmac_f32 v{A3}, v64, v64")
    e(f"v_add_f32 v{A1}, v{A1}, v{A3}")
    dpp_reduce32(em, A1, A2)
    e(f"v_mul_f32 v{A1}, s72, v{A1}")
    bf16r(em, A0, A0); bf16r(em, A1, A1)
    e(f"v_add_f32 v{A1}, s73, v{A1}")
    bf16r(em, A1, A1)
    e(f"v_sqrt_f32 v{A1}, v{A1}\ns_nop 0")
    bf16r(em, A1, A1)
    e(f"v_rcp_f32 v{A2}, v{A1}\ns_nop 0")
    e(f"v_mov_b32 v{A3}, 0")
    e(f"v_lshrrev_b32 v65, 5, v1\ns_lshl_b32 s28, s{S_WAVE}, 1\nv_add_u32 v65, s28, v65\nv_mul_u32_u24 v65, {LN_RS}, v65\nv_lshl_add_u32 v65, v6, 2, v65\nv_add_u32 v65, {hex(LN_LDS)}, v65")
    em.wait_vm(wtag)
    for i in range(9):
        a, b = F + 2 * i, F + 2 * i + 1
        e(f"v_sub_f32 v{a}, v{a}, v{A0}\nv_sub_f32 v{b}, v{b}, v{A0}")
        e(f"v_cvt_pk_bf16_f32 v66, v{a}, v{b}")
        e(f"v_lshlrev_b32 v{a}, 16, v66\nv_and_b32 v{b}, s74, v66")
        e(f"v_mul_f32 v67, v{a}, v{A2}\nv_mul_f32 v68, v{b}, v{A2}")
        e(f"v_fma_f32 v{a}, -v67, v{A1}, v{a}\nv_fma_f32 v{b}, -v68, v{A1}, v{b}")
        e(f"v_fmac_f32 v67, v{a}, v{A2}\nv_fmac_f32 v68, v{b}, v{A2}")
        e(f"v_cvt_pk_bf16_f32 v{X+i}, v67, v68")
        e(f"v_dot2_f32_bf16 v{A3}, v{X+i}, v{W+i}, v{A3}")
        e(f"ds_write_b32 v65, v{X+i} offset:{i*128}")
    e("s_nop 2")
    dpp_reduce32(em, A3, A2)
    bf16r(em, A3, A3)
    e(f"v_lshlrev_b32 v66, 2, v5\nv_add_u32 v66, {hex(WS_R)}, v66")
    e("v_cmp_eq_u32 vcc, 0, v6\ns_and_saveexec_b64 s[76:77], vcc")
    em.vmem(f"buffer_store_dword v{A3}, v66, s[{SRD_WS}:{SRD_WS+3}], 0 offen sc0 sc1")
    e("s_mov_b64 exec, s[76:77]")
    e("s_waitcnt lgkmcnt(0)\ns_barrier")
    e(f"v_and_b32 v66, 7, v1\nv_mul_u32_u24 v67, {LN_RS}, v66")
    e("v_lshrrev_b32 v68, 5, v1\nv_lshl_add_u32 v67, v68, 6, v67")
    e("v_bfe_u32 v69, v1, 3, 2\nv_lshl_add_u32 v67, v69, 3, v67")
    e(f"v_add_u32 v67, {hex(LN_LDS)}, v67")
    e(f"s_lshl_b32 s28, s{S_WAVE}, 7\nv_add_u32 v67, s28, v67")
    e("s_lshr_b32 s28, s3, 4\ns_mul_i32 s28, s28, 18432\ns_and_b32 s29, s3, 15\ns_lshl_b32 s29, s29, 4\ns_add_u32 s28, s28, s29")
    e(f"s_lshl_b32 s29, s{S_WAVE}, 11\ns_add_u32 s28, s28, s29")
    if WS_XNF: e(f"s_add_u32 s28, s28, {hex(WS_XNF)}")
    e("v_lshlrev_b32 v70, 10, v68\nv_lshl_add_u32 v71, v69, 4, v66\nv_lshl_add_u32 v70, v71, 4, v70")
    G = 72
    for k in range(3):
        e(f"ds_read2_b64 {vr(G+4*k,4)}, v67 offset0:{k*64} offset1:{k*64+4}")
    e("s_waitcnt lgkmcnt(0)")
    for k in range(2):
        em.vmem(f"buffer_store_dwordx4 {vr(G+4*k,4)}, v70, s[{SRD_WS}:{SRD_WS+3}], s28 offen sc0 sc1")
        e(f"s_add_u32 s28, s28, 8192")
    e(f"s_cmp_eq_u32 s{S_WAVE}, 0\ns_cbranch_scc0 K2_NO9")
    e(f"buffer_store_dwordx4 {vr(G+8,4)}, v70, s[{SRD_WS}:{SRD_WS+3}], s28 offen sc0 sc1")
    em.label("K2_NO9")
    e(f"s_cmp_eq_u32 s2, 0\ns_cbranch_scc0 K2_NOZ")
    e(f"v_mov_b32 v76, 0\nv_mov_b32 v77, 0\nv_mov_b32 v78, 0\nv_mov_b32 v79, 0\ns_lshl_b32 s28, s{S_WAVE}, 10\ns_add_u32 s28, s28, {hex(WS_FLAGS)}")
    for zk in range(3):
        e(f"buffer_store_dwordx4 v[76:79], v{L16}, s[{SRD_WS}:{SRD_WS+3}], s28 offen sc0 sc1\ns_add_u32 s28, s28, 4096")
    em.label("K2_NOZ")
    e("s_waitcnt vmcnt(0)\ns_barrier")
    K.stamp(em, prof)
    e(f"s_cmp_eq_u32 s{S_WAVE}, 0\ns_cbranch_scc0 K2_NOATOM")
    e(f"s_lshl_b32 s28, s{S_QB}, 5")
    e("v_mov_b32 v66, 0\nv_mov_b32 v67, 1")
    e("s_mov_b64 s[76:77], exec\ns_mov_b64 exec, 1")
    e(f"buffer_atomic_add v67, v66, s[{SRD_DBG}:{SRD_DBG+3}], s28 offen sc1")
    e("s_mov_b64 exec, s[76:77]")
    em.label("K2_NOATOM")
    em.vm = 0
    wq_dma(NPRE[0], NPRE[1])
    if EARLY[0]:
        import moe2
        for k in range(5):
            for j in range(2):
                e(f"ds_read_b64_tr_b16 {vr(WOFF+4*k+2*j,2)}, v{WOFA} offset:{k*128 + j*16*576}")
        e(f"s_lshr_b32 s{S_T}, s2, 1\ns_mul_i32 s{S_T}, s{S_T}, 36\ns_and_b32 s{S_T2}, s2, 1\ns_mul_i32 s{S_T2}, s{S_T2}, 18\ns_add_u32 s{S_T}, s{S_T}, s{S_T2}\ns_add_u32 s{S_T}, s{S_T}, s{S_WAVE}\ns_lshl_b32 s{S_T}, s{S_T}, 10\ns_add_u32 s{S_WOF}, s{S_T}, {hex(WS_WOF)}")
        e("s_waitcnt lgkmcnt(0)")
        for k in range(5):
            if k == 4: e(f"s_cmp_lt_u32 s{S_WAVE}, 2\ns_cselect_b32 s{S_WOF}, s{S_WOF}, 0x7ffffff0")
            em.vmem(f"buffer_store_dwordx4 {vr(WOFF+4*k,4)}, v{L16}, s[{SRD_WS}:{SRD_WS+3}], s{S_WOF} offen sc0 sc1")
            e(f"s_add_u32 s{S_WOF}, s{S_WOF}, 4096")
        moe2.setup_front(em)
        if GDE[0]:
            import moe3
            moe3.front_setup(em)

    e(f"s_cmp_eq_u32 s{S_WAVE}, 0\ns_cbranch_scc0 K2_FLAGDONE")
    e(f"s_lshl_b32 s28, s{S_QB}, 5\nv_mov_b32 v66, 0")
    e("s_mov_b64 s[76:77], exec\ns_mov_b64 exec, 1")
    em.label("K2_POLL")
    e(f"buffer_load_dword v68, v66, s[{SRD_DBG}:{SRD_DBG+3}], s28 offen sc0 sc1")
    e("s_waitcnt vmcnt(0)")
    e("v_readfirstlane_b32 s29, v68")
    e("s_cmp_ge_u32 s29, 32\ns_cbranch_scc1 K2_POLLED\ns_sleep 2\ns_branch K2_POLL")
    em.label("K2_POLLED")
    e("s_mov_b64 exec, s[76:77]")
    em.label("K2_FLAGDONE")
    e("s_barrier")

def emit_qproj2(em):
    e = em.e
    NK = 18
    tags = {}
    def xn_ld(sg):
        return [("vmem", f"buffer_load_dwordx4 {ar(AO + ((sg & 7) * 4 + qs) * 4, 4)}, v{XB+qs}, s[{SRD_WS}:{SRD_WS+3}], s{S_X4+(sg>>2)} offen offset:{(sg&3)*1024} {XNSC[0]}", ("xn", sg)) for qs in range(4)]
    def kv_init(kind, T):
        sreg = S_KOFF if kind == "K" else S_VOFF
        r = [("salu", f"s_mov_b32 s{sreg}, {T*16384}")]
        r += [(k, t) for k, t in (dma_k(T) if kind == "K" else dma_v(T))]
        return r
    def issue(items):
        prev = None
        for it in items:
            if it[0] == "vmem":
                if prev is not None and "m0" in prev[1] and prev[0] == "salu": e("s_nop 0")
                idx = em.vmem(it[1])
                if len(it) > 2: tags[it[2]] = idx
            else: e(it[1])
            prev = it
    def aset(sg): return AK + (sg & 1) * 32
    def a_ld(sg):
        r = []
        for t in range(8):
            s, half = t >> 1, t & 1
            for j in range(2):
                r.append(f"ds_read_b64_tr_b16 {ar(aset(sg)+t*4+2*j,2)}, v{WQA+s} offset:{(sg&7)*8192 + j*4096 + 8*half}")
        return r
    AHEAD = 6
    def wq_items(sg):
        r = [("salu", f"s_add_u32 m0, s{S_MX}, {sg*8192}")]
        r += [("vmem", f"buffer_load_dwordx4 v{DW+i}, s[{SRD_WQ}:{SRD_WQ+3}], s{S_WQOFF} offen offset:{i*1024} lds", ("wq", sg)) for i in range(2)]
        r += [("salu", f"s_add_u32 s{S_WQOFF}, s{S_WQOFF}, {32*8192}")]
        return r
    for sg, ix in WQT.items():
        if sg >= NPRE[0]: tags[("wq", sg)] = ix
        else: tags[("wq", sg)] = -1
    nxt = NPRE[1]
    for sg in range(AHEAD): issue(xn_ld(sg))
    if tags[("wq", 0)] >= 0: em.wait_vm(tags[("wq", 0)])
    e("s_barrier")
    for t in a_ld(0): em.ds_load(t)
    kv_at = {1: ("K", 0), 3: ("K", 1), 5: ("K", 2), 9: ("V", 0), 11: ("V", 1)}
    if GDE[0]: kv_at = {1: ("K", 0), 3: ("K", 1), 9: ("V", 0)}
    for sg in range(NK):
        need = tags[("xn", sg)]
        if sg + 1 < NK: need = max(need, tags[("wq", sg + 1)])
        em.wait_vm(need)
        em.ds_all_done(); e("s_barrier")
        if QSTAMP[0]: K.stamp(em, True, 30 + sg)
        if CPF[0] and CPF3[0] and sg == CPF3[0]:
            code_prefetch(em, "K2_PRE", "K2_LAST", 2, S_WAVE, 1, 136, 140, 92, "k2c", forward=True)
        if GDE[0]:
            import moe3
            moe3.qproj_pre(em, sg)
        elif MOE_ON[0]:
            import moe2
            if sg == 8: tkpos = moe2.topk_async1(em)
            if sg == 12: moe2.topk_async2(em, tkpos)
        mf = []
        for t in range(8):
            for qs in range(4):
                acc = QACC + (t * 4 + qs) * 4
                b = AO + ((sg & 7) * 4 + qs) * 4
                mf.append(f"{MF} {vr(acc,4)}, {ar(aset(sg)+t*4,4)}, {ar(b,4)}, {'0' if sg == 0 else vr(acc,4)}")
        fill = [[] for _ in range(33)]
        if sg + 1 < NK:
            if ((sg + 1) & 7) == 0:
                for s in range(4): e(f"v_add_u32 v{WQA+s}, 0x10000, v{WQA+s}")
            for k, t in enumerate(a_ld(sg + 1)): fill[(k * 3) // 2 + 1].append(("ds", t))
        vm = []
        if nxt < NK: vm += wq_items(nxt); nxt += 1
        if nxt < NK and sg < 4: vm += wq_items(nxt); nxt += 1
        if sg + AHEAD < NK: vm += xn_ld(sg + AHEAD)
        if sg in kv_at: vm += kv_init(*kv_at[sg])
        if GDE[0]: vm += moe3.qproj_vm(sg)
        if EARLY[0] and MOE_ON[0] and not GDE[0] and 12 <= sg <= 15:
            import moe2
            if sg == 12: pfl = moe2.prefetch_items(); PFN[0] = em.vm
            take_n = {12: 9, 13: 9, 14: 8, 15: 10}[sg]
            vm += pfl[:take_n]; pfl = pfl[take_n:]
        for g in range(32):
            em.mfma(mf[g])
            for k, t in fill[g]: em.ds_load(t)
            if g % 2 == 1 and vm:
                take = [vm.pop(0)]
                while take[-1][0] == "salu" and vm: take.append(vm.pop(0))
                issue(take)
        issue(vm)
    e("s_nop 7\ns_nop 3")
    for qs in range(4):
        for s in range(4):
            for half in range(2):
                acc = QACC + ((2 * s + half) * 4 + qs) * 4
                e(f"v_pk_mul_f32 {vr(acc,2)}, {vr(acc,2)}, s[{S_C}:{S_C+1}]")
                e(f"v_pk_mul_f32 {vr(acc+2,2)}, {vr(acc+2,2)}, s[{S_C}:{S_C+1}]")
            for half in range(2):
                acc = QACC + ((2 * s + half) * 4 + qs) * 4
                e(f"v_cvt_pk_bf16_f32 v{Qf(qs,s)+2*half}, v{acc}, v{acc+1}")
                e(f"v_cvt_pk_bf16_f32 v{Qf(qs,s)+2*half+1}, v{acc+2}, v{acc+3}")
    if not EARLY[0]: emit_wof_addr(em)
    PRE_WAIT[0] = 27 if (EARLY[0] and MOE_ON[0]) else 0
    if GDE[0]:
        moe3.emit_gd(em)
        issue(kv_init("K", 2) + kv_init("V", 1))
        PRE_WAIT[0] = 63
        B1WAIT[0] = True

def wof_extras(step):
    dma, xds = [], []
    if EARLY[0]: return dma, xds
    if step in (0, 1):
        ks = (0, 1, 2) if step == 0 else (3, 4)
        for k in ks:
            dma.append(("vmem", f"s_lshl_b32 s{S_T}, s{S_WAVE}, 10\ns_add_u32 m0, s{S_T}, {WOF_LDS + 4096*k}\ns_nop 0\nbuffer_load_dwordx4 v{WOFV+k}, s[{SRD_WO}:{SRD_WO+3}], s{S_WOF} offen lds"))
    if step in (4, 5):
        ks = (0, 1, 2) if step == 4 else (3, 4)
        for k in ks:
            for j in range(2):
                xds.append(f"ds_read_b64_tr_b16 {vr(WOFF+4*k+2*j,2)}, v{WOFA} offset:{k*128 + j*16*576}")
    if step == 6:
        dma.append(("salu", f"s_lshr_b32 s{S_T}, s2, 1\ns_mul_i32 s{S_T}, s{S_T}, 36"))
        dma.append(("salu", f"s_and_b32 s{S_T2}, s2, 1\ns_mul_i32 s{S_T2}, s{S_T2}, 18"))
        dma.append(("salu", f"s_add_u32 s{S_T}, s{S_T}, s{S_T2}\ns_add_u32 s{S_T}, s{S_T}, s{S_WAVE}"))
        dma.append(("salu", f"s_lshl_b32 s{S_T}, s{S_T}, 10\ns_add_u32 s{S_WOF}, s{S_T}, {hex(WS_WOF)}"))
        for k in range(4):
            dma.append(("vmem", f"buffer_store_dwordx4 {vr(WOFF+4*k,4)}, v{L16}, s[{SRD_WS}:{SRD_WS+3}], s{S_WOF} offen sc0 sc1" + f"\ns_add_u32 s{S_WOF}, s{S_WOF}, 4096",
                        {"needs": [f"v{WOFF+4*k+r}" for r in range(4)]}))
    if step == 7:
        dma.append(("vmem", f"s_cmp_lt_u32 s{S_WAVE}, 2\ns_cselect_b32 s{S_T}, s{S_WOF}, 0x7ffffff0\nbuffer_store_dwordx4 {vr(WOFF+16,4)}, v{L16}, s[{SRD_WS}:{SRD_WS+3}], s{S_T} offen sc0 sc1",
                    {"needs": [f"v{WOFF+16+r}" for r in range(4)]}))
    return dma, xds

CSBUF = 162816
CSACC = 136
STATV = TMP
CNTV = TMP + 9
F3 = {}

def emit_front3(em, prof):
    e = em.e
    e("s_cmp_ge_u32 s2, 256\ns_cbranch_scc1 K2_END")
    e(f"s_load_dwordx2 s[72:73], s[0:1], {KA_X}")
    e(f"s_load_dwordx2 s[74:75], s[0:1], {KA_WR}")
    e(f"s_load_dwordx2 s[52:53], s[0:1], {KA_WQ}")
    e(f"s_load_dwordx2 s[54:55], s[0:1], {KA_WS}")
    e(f"s_load_dwordx4 s[4:7], s[0:1], {KA_K}")
    e(f"s_load_dwordx2 s[76:77], s[0:1], {KA_WO}")
    e(f"s_load_dwordx2 s[78:79], s[0:1], {KA_DBG}")
    e("v_and_b32 v1, 63, v0\nv_lshrrev_b32 v2, 6, v0\ns_nop 0")
    e(f"v_readfirstlane_b32 s{S_WAVE}, v2")
    e("s_lshr_b32 s28, s2, 3")
    e(f"s_and_b32 s3, s2, 1\ns_lshl_b32 s3, s3, 4\ns_lshr_b32 s29, s28, 1\ns_add_u32 s{S_HEAD}, s3, s29")
    e(f"s_and_b32 s3, s2, 6\ns_and_b32 s29, s28, 1\ns_add_u32 s{S_QB}, s3, s29")
    e(f"s_lshl_b32 s3, s{S_QB}, 8\ns_lshl_b32 s28, s{S_HEAD}, 3\ns_add_u32 s3, s3, s28")
    e(f"s_lshl_b32 s28, s{S_WAVE}, 1\ns_add_u32 s29, s3, s28")
    e("v_lshrrev_b32 v5, 5, v1\nv_add_u32 v5, s29, v5")
    e("v_and_b32 v6, 31, v1")
    e("v_mul_u32_u24 v7, 0x480, v5\nv_lshl_add_u32 v7, v6, 2, v7")
    e("v_lshlrev_b32 v8, 2, v6")
    e("v_and_b32 v3, 15, v1\nv_lshrrev_b32 v4, 4, v1")
    e(f"s_lshl_b32 s{S_T}, s{S_QB}, 8\ns_lshl_b32 s{S_T2}, s{S_WAVE}, 6\ns_add_u32 s{S_T}, s{S_T}, s{S_T2}")
    e(f"v_add_u32 v9, s{S_T}, v3\nv_mul_u32_u24 v9, 0x480, v9\nv_lshl_add_u32 v{XB}, v4, 4, v9")
    for qs in range(1, 4): e(f"v_add_u32 v{XB+qs}, {qs*16*1152}, v{XB}")
    e(f"s_and_b32 s28, s{S_WAVE}, 1\ns_lshl_b32 s28, s28, 2\nv_or_b32 v9, s28, v4\nv_lshlrev_b32 v9, 1, v9\nv_xor_b32 v9, v9, v3\nv_lshlrev_b32 v9, 4, v9")
    e(f"s_lshl_b32 s{S_T}, s{S_WAVE}, 16")
    e(f"v_lshl_add_u32 v9, v4, 13, v9\nv_add_u32 v{DW}, s{S_T}, v9\nv_add_u32 v{DW+1}, {4*8192-1024}, v{DW}")
    e(f"s_lshl_b32 s{S_WQOFF}, s{S_HEAD}, 8")
    e(f"s_lshl_b32 s{S_MX}, s{S_WAVE}, 11")
    e("s_waitcnt lgkmcnt(0)")
    srd(em, SRD_X, 72, 73, 2048 * 1152)
    srd(em, SRD_WR, 74, 75, 1152)
    srd(em, SRD_WQ, 52, 53, 576 * 8192)
    X, W, F = 18, 28, 40
    for i in range(9): em.vmem(f"buffer_load_dword v{X+i}, v7, s[{SRD_X}:{SRD_X+3}], 0 offen offset:{i*128}")
    xtag = em.vm - 1
    for i in range(9): em.vmem(f"buffer_load_dword v{W+i}, v8, s[{SRD_WR}:{SRD_WR+3}], 0 offen offset:{i*128}")
    wtag = em.vm - 1
    tags = F3; tags.clear()
    def wq_dma(sg):
        e(f"s_add_u32 m0, s{S_MX}, {sg*8192}\ns_nop 0")
        for i in range(2):
            tags[("wq", sg)] = em.vmem(f"buffer_load_dwordx4 v{DW+i}, s[{SRD_WQ}:{SRD_WQ+3}], s{S_WQOFF} offen offset:{i*1024} lds")
        e(f"s_add_u32 s{S_WQOFF}, s{S_WQOFF}, {32*8192}")
    def xf_ld(sg):
        for qs in range(4):
            tags[("xn", sg)] = em.vmem(f"buffer_load_dwordx4 {ar(AO + ((sg & 7) * 4 + qs) * 4, 4)}, v{XB+qs}, s[{SRD_X}:{SRD_X+3}], 0 offen offset:{sg*64}")
    for sg in range(F3N[0]):
        wq_dma(sg); xf_ld(sg)
    for sg in range(F3N[0], F3N[1]): wq_dma(sg)
    K.stamp(em, prof)
    e(f"s_lshl_b32 s{S_W4K}, s{S_WAVE}, 12")
    e(f"v_lshlrev_b32 v{L16}, 4, v1")
    for u in range(4):
        e(f"s_add_u32 s28, s{S_WAVE}, {u}\ns_and_b32 s28, s28, 3\ns_lshl_b32 s28, s28, 2")
        e(f"v_add_u32 v9, s28, v4\nv_xor_b32 v9, v9, v3\nv_lshlrev_b32 v9, 4, v9\nv_lshl_add_u32 v{KA+u}, v3, 8, v9")
    e("v_bfe_u32 v9, v1, 2, 2\nv_and_b32 v10, 3, v1\nv_lshl_add_u32 v11, v4, 2, v9")
    e("v_and_b32 v12, 7, v11")
    e(f"v_lshlrev_b32 v13, 8, v11\nv_lshl_add_u32 v13, v10, 3, v13\nv_add_u32 v13, {hex(LDS_V)}, v13")
    for T in range(8):
        e(f"v_xor_b32 v14, {T}, v12\nv_lshl_add_u32 v{VA+T}, v14, 5, v13")
    e("v_and_b32 v14, 1, v4\nv_lshl_add_u32 v14, v14, 2, v9")
    e("v_lshrrev_b32 v15, 1, v10\nv_xor_b32 v14, v14, v15")
    e("v_lshl_add_u32 v15, v4, 3, v9\nv_lshlrev_b32 v15, 8, v15\nv_and_b32 v16, 1, v10\nv_lshl_add_u32 v15, v16, 4, v15")
    for u in range(4):
        e(f"s_add_u32 s28, s{S_WAVE}, {u}\ns_and_b32 s28, s28, 3\ns_lshl_b32 s28, s28, 1")
        e(f"v_xor_b32 v16, s28, v14\nv_lshl_add_u32 v{WQA+u}, v16, 5, v15")
    e(f"v_mul_u32_u24 v16, 576, v11\nv_lshl_add_u32 v16, v10, 3, v16\nv_add_u32 v16, {hex(WOF_LDS)}, v16")
    e(f"s_lshl_b32 s{S_T}, s{S_WAVE}, 5\nv_add_u32 v{TMP+8}, s{S_T}, v16")
    for i in range(4):
        e(f"v_add_u32 v9, {4*i}, v4\nv_xor_b32 v9, v9, v3\nv_lshlrev_b32 v9, 4, v9\nv_lshl_add_u32 v9, v4, 8, v9\nv_add_u32 v{DK+i}, s{S_W4K}, v9")
    for i in range(2):
        e(f"v_add_u32 v9, {4*i}, v4\nv_lshlrev_b32 v9, 1, v9\nv_xor_b32 v9, v9, v3\nv_lshlrev_b32 v9, 4, v9\nv_lshl_add_u32 v9, v4, 8, v9\nv_add_u32 v{DV+i}, s{S_W4K}, v9")
    e(f"s_lshl_b32 s{S_T}, s{S_QB}, 4\ns_lshl_b32 s{S_T2}, s{S_WAVE}, 2\ns_add_u32 s{S_T}, s{S_T}, s{S_T2}")
    e(f"s_lshl_b32 s{S_OFB}, s{S_T}, 17\ns_lshl_b32 s{S_T2}, s{S_HEAD}, 12\ns_add_u32 s{S_OFB}, s{S_OFB}, s{S_T2}")
    for k in range(5): e(f"s_mov_b32 s{S_X4+k}, {k*4096}")
    e(f"s_mov_b32 s{S_THR}, 0x5f800000\ns_mov_b32 s{S_PASS}, 0")
    for i in range(4): e(f"v_mov_b32 v{TMP}, 0x3f803f80\nv_accvgpr_write_b32 a{AONE+i}, v{TMP}")
    e(f"s_lshr_b32 s{S_T}, s{S_HEAD}, 1\ns_lshl_b32 s{S_T}, s{S_T}, 19")
    e(f"s_add_u32 s4, s4, s{S_T}\ns_addc_u32 s5, s5, 0\ns_add_u32 s6, s6, s{S_T}\ns_addc_u32 s7, s7, 0")
    srd(em, SRD_K, 4, 5, 524288)
    srd(em, SRD_V, 6, 7, 524288)
    srd(em, SRD_WS, 54, 55, WS_SIZE)
    e(f"s_add_u32 s54, s54, {hex(WS_OF)}\ns_addc_u32 s55, s55, 0")
    srd(em, SRD_OF, 54, 55, 2048 * 4096 * 2)
    srd(em, SRD_WO, 76, 77, 4096 * 1152)
    srd(em, SRD_DBG, 78, 79, 256)
    c = f2u(128 ** -0.5 * 1.4426950408889634)
    e(f"s_mov_b32 s72, 0x3ae38e39\ns_mov_b32 s73, 0x3727c5ac\ns_mov_b32 s74, 0xffff0000\ns_mov_b32 s75, {hex(c)}")
    em.wait_vm(xtag)
    for i in range(9):
        e(f"v_lshlrev_b32 v{F+2*i}, 16, v{X+i}\nv_and_b32 v{F+2*i+1}, s74, v{X+i}")
    A0, A1, A2, A3 = 60, 61, 62, 63
    e(f"v_add_f32 v{A0}, v{F}, v{F+1}\nv_add_f32 v{A1}, v{F+2}, v{F+3}")
    for i in range(4, 18, 2): e(f"v_add_f32 v{A0}, v{A0}, v{F+i}\nv_add_f32 v{A1}, v{A1}, v{F+i+1}")
    e(f"v_add_f32 v{A0}, v{A0}, v{A1}")
    dpp_reduce32(em, A0, A1)
    e(f"v_mul_f32 v{A0}, s72, v{A0}")
    e(f"v_sub_f32 v{A2}, v{F}, v{A0}\nv_mul_f32 v{A1}, v{A2}, v{A2}\nv_sub_f32 v{A2}, v{F+1}, v{A0}\nv_mul_f32 v{A3}, v{A2}, v{A2}")
    for i in range(2, 18, 2):
        e(f"v_sub_f32 v{A2}, v{F+i}, v{A0}\nv_sub_f32 v64, v{F+i+1}, v{A0}\nv_fmac_f32 v{A1}, v{A2}, v{A2}\nv_fmac_f32 v{A3}, v64, v64")
    e(f"v_add_f32 v{A1}, v{A1}, v{A3}")
    dpp_reduce32(em, A1, A2)
    e(f"v_mul_f32 v{A1}, s72, v{A1}")
    bf16r(em, A0, A0); bf16r(em, A1, A1)
    e(f"v_add_f32 v{A1}, s73, v{A1}")
    bf16r(em, A1, A1)
    e(f"v_sqrt_f32 v{A1}, v{A1}\ns_nop 0")
    bf16r(em, A1, A1)
    e(f"v_rcp_f32 v{A2}, v{A1}\ns_nop 0")
    e(f"v_mul_f32 v70, s75, v{A2}\nv_mul_f32 v71, v70, v{A0}\nv_sub_f32 v71, 0, v71")
    e(f"v_mov_b32 v{A3}, 0")
    e(f"v_lshrrev_b32 v65, 5, v1\ns_lshl_b32 s28, s{S_WAVE}, 1\nv_add_u32 v65, s28, v65\nv_mul_u32_u24 v65, {LN_RS}, v65\nv_lshl_add_u32 v65, v6, 2, v65\nv_add_u32 v65, {hex(LN_LDS)}, v65")
    em.wait_vm(wtag)
    for i in range(9):
        a, b = F + 2 * i, F + 2 * i + 1
        e(f"v_sub_f32 v{a}, v{a}, v{A0}\nv_sub_f32 v{b}, v{b}, v{A0}")
        e(f"v_cvt_pk_bf16_f32 v66, v{a}, v{b}")
        e(f"v_lshlrev_b32 v{a}, 16, v66\nv_and_b32 v{b}, s74, v66")
        e(f"v_mul_f32 v67, v{a}, v{A2}\nv_mul_f32 v68, v{b}, v{A2}")
        e(f"v_fma_f32 v{a}, -v67, v{A1}, v{a}\nv_fma_f32 v{b}, -v68, v{A1}, v{b}")
        e(f"v_fmac_f32 v67, v{a}, v{A2}\nv_fmac_f32 v68, v{b}, v{A2}")
        e(f"v_cvt_pk_bf16_f32 v{X+i}, v67, v68")
        e(f"v_dot2_f32_bf16 v{A3}, v{X+i}, v{W+i}, v{A3}")
        e(f"ds_write_b32 v65, v{X+i} offset:{i*128}")
    e("s_nop 2")
    dpp_reduce32(em, A3, A2)
    bf16r(em, A3, A3)
    e(f"v_lshlrev_b32 v66, 2, v5\nv_add_u32 v66, {hex(WS_R)}, v66\nv_lshlrev_b32 v67, 3, v5\nv_add_u32 v67, {hex(WS_STAT)}, v67")
    e("v_cmp_eq_u32 vcc, 0, v6\ns_and_saveexec_b64 s[76:77], vcc")
    em.vmem(f"buffer_store_dword v{A3}, v66, s[{SRD_WS}:{SRD_WS+3}], 0 offen sc0 sc1")
    em.vmem(f"buffer_store_dwordx2 v[70:71], v67, s[{SRD_WS}:{SRD_WS+3}], 0 offen sc0 sc1")
    e("s_mov_b64 exec, s[76:77]")
    e("s_waitcnt lgkmcnt(0)\ns_barrier")
    e(f"v_and_b32 v66, 7, v1\nv_mul_u32_u24 v67, {LN_RS}, v66")
    e("v_lshrrev_b32 v68, 5, v1\nv_lshl_add_u32 v67, v68, 6, v67")
    e("v_bfe_u32 v69, v1, 3, 2\nv_lshl_add_u32 v67, v69, 3, v67")
    e(f"v_add_u32 v67, {hex(LN_LDS)}, v67")
    e(f"s_lshl_b32 s28, s{S_WAVE}, 7\nv_add_u32 v67, s28, v67")
    e("s_lshr_b32 s28, s3, 4\ns_mul_i32 s28, s28, 18432\ns_and_b32 s29, s3, 15\ns_lshl_b32 s29, s29, 4\ns_add_u32 s28, s28, s29")
    e(f"s_lshl_b32 s29, s{S_WAVE}, 11\ns_add_u32 s28, s28, s29")
    if WS_XNF: e(f"s_add_u32 s28, s28, {hex(WS_XNF)}")
    e("v_lshlrev_b32 v70, 10, v68\nv_lshl_add_u32 v71, v69, 4, v66\nv_lshl_add_u32 v70, v71, 4, v70")
    G = 72
    for k in range(3):
        e(f"ds_read2_b64 {vr(G+4*k,4)}, v67 offset0:{k*64} offset1:{k*64+4}")
    e("s_waitcnt lgkmcnt(0)")
    for k in range(2):
        em.vmem(f"buffer_store_dwordx4 {vr(G+4*k,4)}, v70, s[{SRD_WS}:{SRD_WS+3}], s28 offen sc0 sc1")
        e(f"s_add_u32 s28, s28, 8192")
    e(f"s_cmp_eq_u32 s{S_WAVE}, 0\ns_cselect_b32 s28, s28, 0x7ffffff0")
    em.vmem(f"buffer_store_dwordx4 {vr(G+8,4)}, v70, s[{SRD_WS}:{SRD_WS+3}], s28 offen sc0 sc1")
    e(f"s_lshl_b32 s29, s2, 2\ns_add_u32 s29, s29, s{S_WAVE}\ns_cmp_eq_u32 s29, 1\ns_mov_b32 s28, 0x7ffffff0\ns_cselect_b32 s28, {hex(WS_FLAGS)}, s28")
    e("v_mov_b32 v84, 0\nv_mov_b32 v85, 0\nv_mov_b32 v86, 0\nv_mov_b32 v87, 0")
    tags["lnst"] = em.vmem(f"buffer_store_dwordx4 v[84:87], v{L16}, s[{SRD_WS}:{SRD_WS+3}], s28 offen")
    em.ds_done = em.ds - 1
    if not QSTAMP[0]:
        K.stamp(em, prof)
        K.stamp(em, prof)

QSTAMP = [False]
TSTAMP = [False]
FRONT = [2]
F3N = [5, 8]
def emit_qproj3(em):
    e = em.e
    NK = 18
    tags = F3
    def xn_ld(sg):
        return [("vmem", f"buffer_load_dwordx4 {ar(AO + ((sg & 7) * 4 + qs) * 4, 4)}, v{XB+qs}, s[{SRD_X}:{SRD_X+3}], 0 offen offset:{sg*64}", ("xn", sg)) for qs in range(4)]
    def wq_items(sg):
        r = [("salu", f"s_add_u32 m0, s{S_MX}, {sg*8192}")]
        r += [("vmem", f"buffer_load_dwordx4 v{DW+i}, s[{SRD_WQ}:{SRD_WQ+3}], s{S_WQOFF} offen offset:{i*1024} lds", ("wq", sg)) for i in range(2)]
        r += [("salu", f"s_add_u32 s{S_WQOFF}, s{S_WQOFF}, {32*8192}")]
        return r
    def kv_init(kind, T):
        sreg = S_KOFF if kind == "K" else S_VOFF
        r = [("salu", f"s_mov_b32 s{sreg}, {T*16384}")]
        r += [(k, t) for k, t in (dma_k(T) if kind == "K" else dma_v(T))]
        return r
    def issue(items):
        prev = None
        for it in items:
            if it[0] == "vmem":
                if prev is not None and "m0" in prev[1] and prev[0] == "salu": e("s_nop 0")
                idx = em.vmem(it[1])
                if len(it) > 2: tags[it[2]] = idx
            else: e(it[1])
            prev = it
    def aset(sg): return AK + (sg & 1) * 32
    def a_ld(sg):
        r = []
        for t in range(8):
            u, half = t >> 1, t & 1
            for j in range(2):
                r.append(f"ds_read_b64_tr_b16 {ar(aset(sg)+t*4+2*j,2)}, v{WQA+u} offset:{(sg&7)*8192 + j*1024 + 8*half}")
        return r
    nx = F3N[0]; nw = F3N[1]
    AHEAD = 6
    em.wait_vm(tags[("wq", 0)])
    e("s_barrier")
    for t in a_ld(0): em.ds_load(t)
    kv_at = {1: ("K", 0), 3: ("K", 1), 5: ("K", 2), 9: ("V", 0), 11: ("V", 1)}
    PUB, CHK0, CHK1 = 3, 9, 12
    for sg in range(NK):
        need = tags[("xn", sg)]
        if sg + 1 < NK: need = max(need, tags[("wq", sg + 1)])
        if sg == PUB: need = max(need, tags["lnst"])
        if sg == CHK1: need = max(need, tags["cnt"])
        em.wait_vm(need)
        em.ds_all_done(); e("s_barrier")
        if QSTAMP[0]: K.stamp(em, True, 30 + sg)
        if sg == PUB:
            e(f"s_cmp_eq_u32 s{S_WAVE}, 0\ns_cbranch_scc0 K2_NOATOM")
            e(f"s_lshl_b32 s28, s{S_QB}, 5\nv_mov_b32 v{TMP}, 0\nv_mov_b32 v{TMP+1}, 1")
            e("s_mov_b64 s[76:77], exec\ns_mov_b64 exec, 1")
            e(f"buffer_atomic_add v{TMP+1}, v{TMP}, s[{SRD_DBG}:{SRD_DBG+3}], s28 offen sc1")
            e("s_mov_b64 exec, s[76:77]")
            em.label("K2_NOATOM")
            e("s_nop 3")
        if sg == CHK0:
            e(f"s_lshl_b32 s28, s{S_QB}, 5\nv_mov_b32 v{TMP}, 0")
            tags["cnt"] = em.vmem(f"buffer_load_dword v{CNTV}, v{TMP}, s[{SRD_DBG}:{SRD_DBG+3}], s28 offen sc0 sc1")
        if sg == CHK1:
            e(f"v_readfirstlane_b32 s29, v{CNTV}\ns_cmp_ge_u32 s29, 32\ns_cbranch_scc1 K2_CNTOK")
            em.label("K2_CNTSPIN")
            e(f"s_sleep 1\nbuffer_load_dword v{CNTV}, v{TMP}, s[{SRD_DBG}:{SRD_DBG+3}], s28 offen sc0 sc1\ns_waitcnt vmcnt(0)")
            e(f"v_readfirstlane_b32 s29, v{CNTV}\ns_cmp_ge_u32 s29, 32\ns_cbranch_scc0 K2_CNTSPIN")
            em.label("K2_CNTOK")
            e(f"s_lshl_b32 s28, s{S_QB}, 8\ns_lshl_b32 s29, s{S_WAVE}, 6\ns_add_u32 s28, s28, s29\ns_lshl_b32 s28, s28, 3\ns_add_u32 s28, s28, {hex(WS_STAT)}")
            e(f"v_lshlrev_b32 v{CNTV}, 3, v3")
            for qs in range(4):
                tags["stat"] = em.vmem(f"buffer_load_dwordx2 {vr(STATV+2*qs,2)}, v{CNTV}, s[{SRD_WS}:{SRD_WS+3}], s28 offen offset:{qs*128} sc0 sc1")
        mf = []
        for t in range(8):
            for qs in range(4):
                acc = QACC + (t * 4 + qs) * 4
                b = AO + ((sg & 7) * 4 + qs) * 4
                mf.append(f"{MF} {vr(acc,4)}, {ar(aset(sg)+t*4,4)}, {ar(b,4)}, {'0' if sg == 0 else vr(acc,4)}")
            if t < 2:
                mf.append(f"{MF} {vr(CSACC+4*t,4)}, {ar(aset(sg)+t*4,4)}, {ar(AONE,4)}, {'0' if sg == 0 else vr(CSACC+4*t,4)}")
        n = len(mf)
        fill = [[] for _ in range(n + 1)]
        if sg + 1 < NK:
            if ((sg + 1) & 7) == 0:
                for u in range(4): e(f"v_add_u32 v{WQA+u}, 0x10000, v{WQA+u}")
            for k, t in enumerate(a_ld(sg + 1)): fill[(k * 3) // 2 + 1].append(("ds", t))
        vm = []
        if nw < NK: vm += wq_items(nw); nw += 1
        while nx < NK and nx <= sg + AHEAD:
            vm += xn_ld(nx); nx += 1
        if sg in kv_at: vm += kv_init(*kv_at[sg])
        for g in range(n):
            em.mfma(mf[g])
            for k, t in fill[g]: em.ds_load(t)
            if g % 2 == 1 and vm:
                take = [vm.pop(0)]
                while take[-1][0] == "salu" and vm: take.append(vm.pop(0))
                issue(take)
        issue(vm)
    e("s_nop 7")
    e(f"s_lshl_b32 s28, s{S_WAVE}, 7\ns_add_u32 s28, s28, {CSBUF}\nv_lshlrev_b32 v{CNTV}, 4, v4\nv_add_u32 v144, s28, v{CNTV}")
    e(f"ds_write_b128 v144, {vr(CSACC,4)}\nds_write_b128 v144, {vr(CSACC+4,4)} offset:64")
    em.wait_vm(tags["stat"])
    e("s_waitcnt lgkmcnt(0)\ns_barrier")
    for u in range(4):
        e(f"s_add_u32 s28, s{S_WAVE}, {u}\ns_and_b32 s28, s28, 3\ns_lshl_b32 s28, s28, 7\ns_add_u32 s28, s28, {CSBUF}\nv_add_u32 v{144+u}, s28, v{CNTV}")
    CS = [136, 148]
    for u in range(4):
        e(f"ds_read_b128 {vr(136,4)}, v{144+u}\nds_read_b128 {vr(140,4)}, v{144+u} offset:64\ns_waitcnt lgkmcnt(0)")
        for qs in range(4):
            st = vr(STATV + 2 * qs, 2)
            for half in range(2):
                acc = QACC + ((2 * u + half) * 4 + qs) * 4
                for k in range(2):
                    t = 148 + 2 * k
                    e(f"v_pk_mul_f32 {vr(t,2)}, {vr(136+4*half+2*k,2)}, {st} op_sel:[0,1] op_sel_hi:[1,1]")
                for k in range(2):
                    t = 148 + 2 * k
                    e(f"v_pk_fma_f32 {vr(acc+2*k,2)}, {vr(acc+2*k,2)}, {st}, {vr(t,2)} op_sel:[0,0,0] op_sel_hi:[1,0,1]")
                e(f"v_cvt_pk_bf16_f32 v{Qf(qs,u)+2*half}, v{acc}, v{acc+1}")
                e(f"v_cvt_pk_bf16_f32 v{Qf(qs,u)+2*half+1}, v{acc+2}, v{acc+3}")
    em.ds_done = em.ds - 1
    emit_wof_addr(em)

def emit_wof_addr(em):
    e = em.e
    e(f"s_lshr_b32 s{S_T}, s2, 1\ns_mul_i32 s{S_WOF}, s{S_T}, 36864\ns_and_b32 s{S_T2}, s2, 1\ns_mul_i32 s{S_T2}, s{S_T2}, 576\ns_add_u32 s{S_WOF}, s{S_WOF}, s{S_T2}")
    e(f"s_lshl_b32 s{S_T}, s{S_WAVE}, 6\nv_add_u32 v{TMP}, s{S_T}, v1")
    e(f"s_movk_i32 s{S_T2}, 1821")
    for k in range(5):
        e(f"v_add_u32 v{TMP+1}, {256*k}, v{TMP}")
        e(f"v_mul_lo_u32 v{TMP+2}, v{TMP+1}, s{S_T2}\nv_lshrrev_b32 v{TMP+2}, 16, v{TMP+2}")
        e(f"v_mul_u32_u24 v{TMP+3}, 36, v{TMP+2}\nv_sub_u32 v{TMP+3}, v{TMP+1}, v{TMP+3}")
        e(f"v_mul_u32_u24 v{TMP+2}, 0x480, v{TMP+2}\nv_lshl_add_u32 v{WOFV+k}, v{TMP+3}, 4, v{TMP+2}")
    e(f"v_mov_b32 v{WOFA}, v{TMP+8}")

def emit_wof_addr_fb(em):
    e = em.e
    if EARLY[0]: return
    e("v_bfe_u32 v9, v1, 2, 2\nv_and_b32 v10, 3, v1\nv_lshl_add_u32 v11, v4, 2, v9")
    e(f"v_mul_u32_u24 v16, 576, v11\nv_lshl_add_u32 v16, v10, 3, v16\nv_add_u32 v16, {hex(WOF_LDS)}, v16")
    e(f"s_lshl_b32 s{S_T}, s{S_WAVE}, 5\nv_add_u32 v{TMP+8}, s{S_T}, v16")
    emit_wof_addr(em)
```

```python
from asmlib import *
from moe import WS_YF, WS_RSEL
import struct
MF = "v_mfma_f32_16x16x32_bf16"
def f2u(f): return struct.unpack("<I", struct.pack("<f", f))[0]

ACC = 0
AF = 144
BF = 16
DWO = 80
TRA = 89
OFV = 90
L16 = 94
XV = 95
XNV = 96
YV = 97
E0 = 100
SRD_DBG, SRD_OF, SRD_WS, SRD_X, SRD_OUT = 8, 12, 16, 20, 24
S_WAVE, S_KH, S_NB, S_Q16, S_WOFF, S_BOFF, S_MB, S_T, S_T2, S_PAIR = 30, 31, 32, 33, 34, 35, 36, 37, 38, 39
S_KW, S_KB, S_WB, S_BB = 40, 41, 42, 43
S_IDX = 56
SLOT = 9216
WREG = 4 * SLOT

def k3(name="k3_oproj_kernel", moe=True, prof=False, rot=True, hotw=15, hotb=15, nodma=False, nob=False, cpf=True):
    em = Em(); e = em.e
    nst = [0]
    def stamp():
        if not prof: return
        k = nst[0]; nst[0] += 1
        e(f"s_memtime s[{64+4*k}:{65+4*k}]\ns_memrealtime s[{66+4*k}:{67+4*k}]\ns_waitcnt lgkmcnt(0)")
    kernel_head(em, name)
    e("s_cmp_ge_u32 s2, 256\ns_cbranch_scc1 K3_END")
    e(f"s_load_dwordx2 s[6:7], s[0:1], {KA_WS}")
    e(f"s_load_dwordx2 s[50:51], s[0:1], {KA_X}")
    e(f"s_load_dwordx2 s[52:53], s[0:1], {KA_OUT}")
    e(f"s_load_dwordx2 s[44:45], s[0:1], {KA_DBG}")
    e("v_and_b32 v1, 63, v0\nv_lshrrev_b32 v2, 6, v0\ns_nop 0")
    e(f"v_readfirstlane_b32 s{S_WAVE}, v2")
    e(f"s_and_b32 s{S_KH}, s2, 1\ns_bfe_u32 s3, s2, 0x20001")
    e(f"s_lshr_b32 s28, s2, 3\ns_and_b32 s{S_NB}, s28, 3\ns_lshr_b32 s28, s28, 2")
    e(f"s_lshl_b32 s{S_Q16}, s3, 5\ns_lshl_b32 s28, s28, 2\ns_add_u32 s{S_Q16}, s{S_Q16}, s28")
    e(f"s_lshr_b32 s{S_PAIR}, s2, 1")
    e(f"s_lshl_b32 s{S_T}, s{S_KH}, 6\ns_lshl_b32 s{S_T2}, s{S_WAVE}, 4\ns_add_u32 s{S_T}, s{S_T}, s{S_T2}")
    e(f"s_lshl_b32 s{S_BB}, s{S_T}, 10")
    e(f"s_mul_i32 s{S_WB}, s{S_T}, 36864\ns_mul_i32 s{S_T2}, s{S_NB}, 9216\ns_add_u32 s{S_WB}, s{S_WB}, s{S_T2}\ns_add_u32 s{S_WB}, s{S_WB}, {hex(WS_WOF)}")
    if rot:
        e(f"s_lshr_b32 s{S_KW}, s28, 1\ns_mul_i32 s{S_T2}, s{S_NB}, 5\ns_add_u32 s{S_KW}, s{S_KW}, s{S_T2}\ns_and_b32 s{S_KW}, s{S_KW}, 15")
    else:
        e(f"s_mov_b32 s{S_KW}, 0")
    e(f"s_mov_b32 s{S_KB}, s{S_KW}")
    e(f"s_mul_i32 s{S_WOFF}, s{S_KW}, 36864\ns_add_u32 s{S_WOFF}, s{S_WOFF}, s{S_WB}")
    e(f"s_lshl_b32 s{S_BOFF}, s{S_KB}, 10\ns_add_u32 s{S_BOFF}, s{S_BOFF}, s{S_BB}")
    e(f"s_mul_i32 s{S_MB}, s{S_WAVE}, {WREG}")
    e("v_and_b32 v3, 15, v1\nv_lshrrev_b32 v4, 4, v1")
    e(f"v_lshlrev_b32 v{L16}, 4, v1")
    for qs in range(4):
        e(f"s_add_u32 s{S_T}, s{S_Q16}, {qs}\ns_lshl_b32 s{S_T}, s{S_T}, 17\nv_add_u32 v{OFV+qs}, s{S_T}, v{L16}")
    if cpf:
        code_prefetch(em, name, "K3_CODE_END", 2, S_WAVE, 1, 100, 99, 92, "k3"); em.vm = 0
    e("s_waitcnt lgkmcnt(0)")
    srd(em, SRD_WS, 6, 7, WS_SIZE)
    if moe:
        e(f"s_add_u32 s54, s6, {hex(WS_MOE)}\ns_addc_u32 s55, s7, 0")
        e(f"s_load_dwordx8 s[{S_IDX}:{S_IDX+7}], s[54:55], 0")
    e(f"s_add_u32 s6, s6, {hex(WS_OF)}\ns_addc_u32 s7, s7, 0")
    srd(em, SRD_OF, 6, 7, 2048 * 4096 * 2)
    srd(em, SRD_X, 50, 51, 2048 * 1152)
    srd(em, SRD_OUT, 52, 53, 2048 * 1152)
    srd(em, SRD_DBG, 44, 45, 256)
    YR = 100
    YRA = 0
    if moe:
        e("s_cmp_lt_u32 s2, 36\ns_cbranch_scc0 K3_NOY1")
        e(f"s_lshl_b32 s46, s2, 2\ns_add_u32 s46, s46, s{S_WAVE}")
        e(f"s_lshl_b32 s47, s2, 9\ns_lshl_b32 s48, s{S_WAVE}, 7\ns_add_u32 s47, s47, s48")
        e(f"v_lshrrev_b32 v5, 3, v1\nv_mul_u32_u24 v5, 18432, v5\nv_and_b32 v6, 7, v1\nv_lshl_add_u32 v5, v6, 4, v5\nv_add_u32 v5, s47, v5")
        e(f"s_mov_b32 s48, {hex(WS_YP)}")
        for i in range(18):
            d = f"a[{YRA+4*i}:{YRA+4*i+3}]"
            e(f"buffer_load_dwordx4 {d}, v5, s[{SRD_WS}:{SRD_WS+3}], s48 offen")
            if i < 17: e(f"s_add_u32 s48, s48, {8*18432}")
        e(f"v_lshlrev_b32 v6, 2, v6\ns_mov_b32 s47, {hex(WS_RSEL)}")
        e(f"buffer_load_dword v{YR+36}, v6, s[{SRD_WS}:{SRD_WS+3}], s47 offen")
        em.label("K3_NOY1")
    stamp()
    tags = {}
    NK = 16
    def dma(t):
        r = []
        for N in range(9):
            d = AF + (t % 3) * 36 + N * 4
            pre = ""
            if N in (4, 8): r.append(("salu", f"s_add_u32 s{S_WOFF}, s{S_WOFF}, 4096"))
            r.append(("vmem", f"buffer_load_dwordx4 {ar(d,4)}, v{L16}, s[{SRD_WS}:{SRD_WS+3}], s{S_WOFF} offen offset:{(N&3)*1024}", ("wo", t)))
        r.append(("salu", f"s_add_u32 s{S_KW}, s{S_KW}, 1\ns_and_b32 s{S_KW}, s{S_KW}, {hotw}\ns_mul_i32 s{S_WOFF}, s{S_KW}, 36864\ns_add_u32 s{S_WOFF}, s{S_WOFF}, s{S_WB}"))
        return r
    def bld(t):
        r = []
        for qs in range(4):
            d = BF + ((t & 3) * 4 + qs) * 4
            r.append(("vmem", f"buffer_load_dwordx4 {vr(d,4)}, v{OFV+qs}, s[{SRD_OF}:{SRD_OF+3}], s{S_BOFF} offen", ("b", t)))
        r.append(("salu", f"s_add_u32 s{S_KB}, s{S_KB}, 1\ns_and_b32 s{S_KB}, s{S_KB}, {hotb}\ns_lshl_b32 s{S_BOFF}, s{S_KB}, 10\ns_add_u32 s{S_BOFF}, s{S_BOFF}, s{S_BB}"))
        return r
    def emit_items(items):
        prev = None
        for it in items:
            if it[0] == "vmem":
                if prev is not None and prev[0] == "salu" and "m0" in prev[1]: e("s_nop 0")
                idx = em.vmem(it[1]); tags[it[2]] = idx
            else: e(it[1])
            prev = it
    emit_items(bld(0)); emit_items(dma(0)); emit_items(bld(1)); emit_items(dma(1)); emit_items(bld(2))
    if moe:
        e("s_cmp_lt_u32 s2, 36\ns_cbranch_scc0 K3_NOY2")
        e(f"s_waitcnt vmcnt({em.vm})")
        for r in range(4): e(f"v_accvgpr_read_b32 v{YR+r}, a{YRA+r}")
        for i in range(1, 18):
            for r in range(4): e(f"v_accvgpr_read_b32 v{YR+4+r}, a{YRA+4*i+r}")
            for r in range(4): e(f"v_add_f32 v{YR+r}, v{YR+r}, v{YR+4+r}")
        for r in range(4):
            y, t = YR + r, YR + 4 + r
            e(f"s_nop 1\nv_add_f32_dpp v{t}, v{y}, v{y} row_ror:8 row_mask:0xf bank_mask:0xf")
            e(f"v_mov_b32 v{y}, v{t}\ns_nop 1\nv_permlane16_swap_b32 v{y}, v{t}\nv_add_f32 v{y}, v{y}, v{t}")
            e(f"v_mov_b32 v{t}, v{y}\ns_nop 1\nv_permlane32_swap_b32 v{y}, v{t}\nv_add_f32 v{y}, v{y}, v{t}")
            e(f"v_cvt_pk_bf16_f32 v{y}, v{y}, v{y}\nv_lshlrev_b32 v{y}, 16, v{y}\nv_mul_f32 v{y}, v{y}, v{YR+36}\nv_cvt_pk_bf16_f32 v{y}, v{y}, v{y}\nv_lshlrev_b32 v{y}, 16, v{y}")
        e(f"s_lshl_b32 s47, s2, 6\ns_lshl_b32 s48, s{S_WAVE}, 4\ns_add_u32 s47, s47, s48\ns_add_u32 s47, s47, {hex(WS_YF)}")
        e("v_and_b32 v6, 7, v1\nv_mul_u32_u24 v6, 2304, v6")
        e("s_mov_b64 s[48:49], exec\ns_mov_b64 exec, 0xff")
        e(f"buffer_store_dwordx4 {vr(YR,4)}, v6, s[{SRD_WS}:{SRD_WS+3}], s47 offen sc0 sc1")
        e("s_mov_b64 exec, s[48:49]")
        em.label("K3_NOY2")
    e(f"s_add_u32 s{S_Q16}, s{S_Q16}, s{S_WAVE}")
    e(f"s_mul_i32 s{S_T}, s{S_Q16}, {16*1152}\ns_mul_i32 s{S_T2}, s{S_NB}, 288\ns_add_u32 s{S_T}, s{S_T}, s{S_T2}")
    e(f"v_mul_u32_u24 v5, 0x480, v3\nv_lshl_add_u32 v5, v4, 3, v5\nv_add_u32 v{XV}, s{S_T}, v5")
    for t in range(NK):
        em.wait_vm(max(tags[("b", t)], tags[("wo", t)]))
        if moe and t == 6:
            e("s_cmp_lt_u32 s2, 36\ns_cbranch_scc0 K3_NOY3")
            e("v_mov_b32 v6, 0\nv_mov_b32 v7, 1\ns_mov_b64 s[48:49], exec\ns_mov_b64 exec, 1")
            e(f"buffer_atomic_add v7, v6, s[{SRD_DBG}:{SRD_DBG+3}], 0 offen sc1")
            e("s_mov_b64 exec, s[48:49]")
            em.label("K3_NOY3")
        mf = []
        for N in range(9):
            for qs in range(4):
                acc = ACC + (N * 4 + qs) * 4
                b = BF + ((t & 3) * 4 + qs) * 4
                mf.append(f"{MF} {ar(acc,4)}, {ar(AF+(t%3)*36+N*4,4)}, {vr(b,4)}, {'0' if t == 0 else ar(acc,4)}")
        vm = []
        if t + 2 < NK: vm += dma(t + 2)
        if t + 3 < NK: vm += bld(t + 3)
        for g in range(36):
            e(mf[g])
            if g % 2 == 1 and vm:
                take = [vm.pop(0)]
                while take[-1][0] == "salu" and vm: take.append(vm.pop(0))
                emit_items(take)
        emit_items(vm)
    stamp()
    e("s_nop 7\ns_nop 3")
    e(f"v_add_u32 v5, s{S_MB}, v{L16}")
    for w in range(4):
        e(f"s_cmp_eq_u32 s{S_WAVE}, {w}\ns_cbranch_scc0 K3_W{w}")
        for qs in range(4):
            if qs == w: continue
            for N in range(9):
                e(f"ds_write_b128 v5, {ar(ACC+(N*4+qs)*4,4)} offset:{(qs*9+N)*1024}")
        for N in range(9):
            for r in range(4):
                e(f"v_accvgpr_read_b32 v{E0+N*4+r}, a{ACC+(N*4+w)*4+r}")
        e("s_branch K3_WD")
        em.label(f"K3_W{w}")
    em.label("K3_WD")
    e("s_waitcnt lgkmcnt(0)\ns_barrier")
    e(f"s_mul_i32 s{S_T}, s{S_WAVE}, 9216")
    e(f"v_add_u32 v6, s{S_T}, v{L16}")
    T0 = E0 + 36
    for k in range(1, 4):
        e(f"s_add_u32 s{S_T}, s{S_WAVE}, {k}\ns_and_b32 s{S_T}, s{S_T}, 3\ns_mul_i32 s{S_T}, s{S_T}, {WREG}")
        e(f"v_add_u32 v7, s{S_T}, v6")
        for N in range(9):
            e(f"ds_read_b128 {vr(T0+N*4,4)}, v7 offset:{N*1024}")
        for N in range(9):
            e(f"s_waitcnt lgkmcnt({8-N})")
            for r in range(0, 4, 2):
                e(f"v_pk_add_f32 {vr(E0+N*4+r,2)}, {vr(E0+N*4+r,2)}, {vr(T0+N*4+r,2)}")
    stamp()
    e(f"s_lshl_b32 s{S_T}, s{S_PAIR}, 1")
    e(f"s_xor_b32 s{S_T2}, s{S_KH}, 1")
    e(f"s_add_u32 s44, s{S_T}, s{S_T2}\ns_lshl_b32 s44, s44, 2\ns_add_u32 s44, s44, s{S_WAVE}\ns_mul_i32 s44, s44, 5120\ns_add_u32 s44, s44, {hex(WS_PART)}")
    e(f"s_add_u32 s45, s{S_T}, s{S_KH}\ns_lshl_b32 s45, s45, 2\ns_add_u32 s45, s45, s{S_WAVE}\ns_mul_i32 s45, s45, 5120\ns_add_u32 s45, s45, {hex(WS_PART)}")
    def send(tiles):
        for k, N in enumerate(tiles):
            e(f"s_add_u32 s46, s44, {k*1024}")
            e(f"buffer_store_dwordx4 {vr(E0+N*4,4)}, v{L16}, s[{SRD_WS}:{SRD_WS+3}], s46 offen sc0 sc1")
    e(f"s_cmp_eq_u32 s{S_KH}, 0\ns_cbranch_scc0 K3_S1")
    send(range(5, 9))
    e("s_branch K3_S2")
    em.label("K3_S1")
    send(range(0, 5))
    em.label("K3_S2")
    XL = E0 + 80
    XN = XL + 10
    e(f"s_mul_i32 s47, s{S_KH}, 5")
    e(f"s_mul_i32 s48, s{S_NB}, 9\ns_add_u32 s48, s48, s47")
    for k in range(5):
        e(f"s_add_u32 s46, s47, {k}\ns_lshl_b32 s46, s46, 5")
        e(f"buffer_load_dwordx2 {vr(XL+2*k,2)}, v{XV}, s[{SRD_X}:{SRD_X+3}], s46 offen")
        e(f"s_add_u32 s46, s48, {k}\ns_and_b32 s49, s46, 1\ns_lshl_b32 s49, s49, 3\ns_lshr_b32 s46, s46, 1")
        e(f"s_mul_i32 s54, s{S_Q16}, 18\ns_add_u32 s46, s46, s54\ns_lshl_b32 s46, s46, 10\ns_add_u32 s46, s46, s49")
        if WS_XNF: e(f"s_add_u32 s46, s46, {hex(WS_XNF)}")
        e(f"buffer_load_dwordx2 {vr(XN+2*k,2)}, v{L16}, s[{SRD_WS}:{SRD_WS+3}], s46 offen")
    e("s_waitcnt vmcnt(0)\ns_barrier")
    e(f"s_cmp_eq_u32 s{S_WAVE}, 0\ns_cbranch_scc0 K3_F1")
    e(f"s_lshl_b32 s46, s2, 2\ns_add_u32 s46, s46, {hex(WS_FLAGS)}")
    e("v_mov_b32 v5, 0\nv_mov_b32 v6, 1")
    e(f"buffer_store_dword v6, v5, s[{SRD_WS}:{SRD_WS+3}], s46 offen sc0 sc1")
    e("s_xor_b32 s46, s46, 4")
    em.label("K3_POLL")
    e(f"buffer_load_dword v6, v5, s[{SRD_WS}:{SRD_WS+3}], s46 offen sc0 sc1")
    e("s_waitcnt vmcnt(0)")
    e("v_readfirstlane_b32 s49, v6")
    e("s_cmp_eq_u32 s49, 1\ns_cbranch_scc1 K3_F1\ns_sleep 1\ns_branch K3_POLL")
    em.label("K3_F1")
    e("s_barrier")
    stamp()
    T1 = T0
    for k in range(5):
        e(f"s_add_u32 s46, s45, {k*1024}")
        e(f"buffer_load_dwordx4 {vr(T1+k*4,4)}, v{L16}, s[{SRD_WS}:{SRD_WS+3}], s46 offen sc0 sc1")
    e(f"s_cmp_eq_u32 s{S_KH}, 0\ns_cbranch_scc1 K3_K0")
    for k in range(4):
        for r in range(4): e(f"v_mov_b32 v{E0+k*4+r}, v{E0+(5+k)*4+r}")
    em.label("K3_K0")
    YL = XN + 10
    if moe:
        for k in range(20): e(f"v_mov_b32 v{YL+k}, 0")
        e(f"s_lshl_b32 s46, s{S_Q16}, 4\nv_add_u32 v5, s46, v3\nv_mov_b32 v6, 8")
        for t in range(8):
            e(f"v_cmp_eq_u32 vcc, s{S_IDX+t}, v5\nv_mov_b32 v7, {t}\ns_nop 0\nv_cndmask_b32 v6, v6, v7, vcc")
        e("v_cmp_gt_u32 vcc, 8, v6\ns_cbranch_vccz K3_NOMOE")
        e("s_mov_b64 s[48:49], exec\ns_and_b64 exec, exec, vcc")
        e("v_mov_b32 v7, 0")
        em.label("K3_YPOLL")
        e(f"buffer_load_dword v5, v7, s[{SRD_DBG}:{SRD_DBG+3}], 0 offen sc0 sc1\ns_waitcnt vmcnt(0)")
        e("v_readfirstlane_b32 s46, v5\ns_cmp_ge_u32 s46, 144\ns_cbranch_scc1 K3_YOK\ns_sleep 2\ns_branch K3_YPOLL")
        em.label("K3_YOK")
        e(f"v_mul_u32_u24 v6, 2304, v6\nv_lshl_add_u32 v6, v4, 4, v6")
        e(f"s_mul_i32 s46, s{S_NB}, 576\ns_lshl_b32 s54, s47, 6\ns_add_u32 s46, s46, s54\ns_add_u32 s46, s46, {hex(WS_YF)}")
        for k in range(5):
            e(f"buffer_load_dwordx4 {vr(YL+4*k,4)}, v6, s[{SRD_WS}:{SRD_WS+3}], s46 offen offset:{k*64} sc0 sc1")
        e("s_mov_b64 exec, s[48:49]")
        em.label("K3_NOMOE")
    e("s_mov_b32 s54, 0xbfb8aa3b")
    e("s_mov_b32 s55, 0xffff0000")
    e("s_waitcnt vmcnt(0)")
    nk = 5
    for k in range(nk):
        if k == 4: e(f"s_cmp_eq_u32 s{S_KH}, 0\ns_cbranch_scc0 K3_FIN")
        a = E0 + k * 4; t = T1 + k * 4
        for r in range(0, 4, 2):
            e(f"v_pk_add_f32 {vr(a+r,2)}, {vr(a+r,2)}, {vr(t+r,2)}")
        U = T0 + 24
        e(f"v_cvt_pk_bf16_f32 v{U}, v{a}, v{a+1}\nv_cvt_pk_bf16_f32 v{U+1}, v{a+2}, v{a+3}")
        e(f"v_lshlrev_b32 v{a}, 16, v{U}\nv_and_b32 v{a+1}, s55, v{U}\nv_lshlrev_b32 v{a+2}, 16, v{U+1}\nv_and_b32 v{a+3}, s55, v{U+1}")
        e(f"v_lshlrev_b32 v{t}, 16, v{XN+2*k}\nv_and_b32 v{t+1}, s55, v{XN+2*k}\nv_lshlrev_b32 v{t+2}, 16, v{XN+2*k+1}\nv_and_b32 v{t+3}, s55, v{XN+2*k+1}")
        if moe:
            for r in range(4): e(f"v_add_f32 v{t+r}, v{t+r}, v{YL+4*k+r}")
            e(f"v_cvt_pk_bf16_f32 v{U}, v{t}, v{t+1}\nv_cvt_pk_bf16_f32 v{U+1}, v{t+2}, v{t+3}")
            e(f"v_lshlrev_b32 v{t}, 16, v{U}\nv_and_b32 v{t+1}, s55, v{U}\nv_lshlrev_b32 v{t+2}, 16, v{U+1}\nv_and_b32 v{t+3}, s55, v{U+1}")
        for r in range(4): e(f"v_mul_f32 v{U+2+r}, s54, v{t+r}")
        for r in range(4): e(f"v_exp_f32 v{U+2+r}, v{U+2+r}")
        e("s_nop 0")
        for r in range(4): e(f"v_add_f32 v{U+2+r}, 1.0, v{U+2+r}")
        for r in range(4): e(f"v_rcp_f32 v{U+2+r}, v{U+2+r}")
        e("s_nop 0")
        for r in range(4): e(f"v_mul_f32 v{t+r}, v{t+r}, v{U+2+r}")
        e(f"v_cvt_pk_bf16_f32 v{U}, v{t}, v{t+1}\nv_cvt_pk_bf16_f32 v{U+1}, v{t+2}, v{t+3}")
        e(f"v_lshlrev_b32 v{t}, 16, v{U}\nv_and_b32 v{t+1}, s55, v{U}\nv_lshlrev_b32 v{t+2}, 16, v{U+1}\nv_and_b32 v{t+3}, s55, v{U+1}")
        for r in range(4): e(f"v_mul_f32 v{a+r}, v{a+r}, v{t+r}")
        e(f"v_cvt_pk_bf16_f32 v{U}, v{a}, v{a+1}\nv_cvt_pk_bf16_f32 v{U+1}, v{a+2}, v{a+3}")
        e(f"v_lshlrev_b32 v{a}, 16, v{U}\nv_and_b32 v{a+1}, s55, v{U}\nv_lshlrev_b32 v{a+2}, 16, v{U+1}\nv_and_b32 v{a+3}, s55, v{U+1}")
        e(f"v_lshlrev_b32 v{t}, 16, v{XL+2*k}\nv_and_b32 v{t+1}, s55, v{XL+2*k}\nv_lshlrev_b32 v{t+2}, 16, v{XL+2*k+1}\nv_and_b32 v{t+3}, s55, v{XL+2*k+1}")
        for r in range(4): e(f"v_add_f32 v{a+r}, v{a+r}, v{t+r}")
        e(f"v_cvt_pk_bf16_f32 v{U+6+2*(k&1)}, v{a}, v{a+1}\nv_cvt_pk_bf16_f32 v{U+7+2*(k&1)}, v{a+2}, v{a+3}")
        e(f"s_add_u32 s46, s47, {k}\ns_lshl_b32 s46, s46, 5")
        e(f"buffer_store_dwordx2 {vr(U+6+2*(k&1),2)}, v{XV}, s[{SRD_OUT}:{SRD_OUT+3}], s46 offen")
    em.label("K3_FIN")
    if prof:
        e("s_waitcnt vmcnt(0)")
        stamp()
        e(f"s_lshl_b32 s46, s2, 2\ns_add_u32 s46, s46, s{S_WAVE}\ns_lshl_b32 s46, s46, 7\ns_add_u32 s46, s46, {hex(WS_PROF + 0x40000)}")
        e("v_mov_b32 v1, 0")
        for k in range(nst[0]):
            e(f"v_mov_b32 v2, s{64+4*k}\nv_mov_b32 v3, s{66+4*k}")
            e(f"buffer_store_dwordx2 v[2:3], v1, s[{SRD_WS}:{SRD_WS+3}], s46 offen offset:{8*k} sc0 sc1")
            e("s_nop 1")
        e("s_waitcnt vmcnt(0)")
    if prof:
        e(f"s_cmp_eq_u32 s2, 0\ns_cbranch_scc0 K3_END\ns_cmp_eq_u32 s{S_WAVE}, 0\ns_cbranch_scc0 K3_END")
        e(f"v_lshlrev_b32 v1, 3, v0\ns_mov_b32 s46, {hex(WS_PROF)}")
        e(f"buffer_load_dwordx2 v[2:3], v1, s[{SRD_WS}:{SRD_WS+3}], s46 offen sc0 sc1")
        e(f"s_mov_b32 s46, {hex(WS_PROF + 0x40000)}")
        e(f"buffer_load_dwordx2 v[4:5], v1, s[{SRD_WS}:{SRD_WS+3}], s46 offen sc0 sc1")
        e("s_waitcnt vmcnt(0)")
        e("v_readfirstlane_b32 s46, v3")
        e("v_subrev_u32 v3, s46, v3\nv_subrev_u32 v5, s46, v5")
        e("v_lshlrev_b32 v6, 2, v0\nv_add_u32 v7, 4, v6\nv_add_u32 v8, 32, v6")
        e("v_cmp_gt_u32 vcc, 7, v0\ns_and_saveexec_b64 s[48:49], vcc")
        e(f"buffer_store_dword v3, v7, s[{SRD_DBG}:{SRD_DBG+3}], 0 offen")
        e("s_mov_b64 exec, s[48:49]\nv_cmp_gt_u32 vcc, 5, v0\ns_and_saveexec_b64 s[48:49], vcc")
        e(f"buffer_store_dword v5, v8, s[{SRD_DBG}:{SRD_DBG+3}], 0 offen")
    em.label("K3_END")
    e("s_endpgm")
    em.label("K3_CODE_END")
    return em.text(), kernel_desc(name, 512, 96, 256), f"; @launch kernel={name} grid=(256,1,1) block=(256,1,1) lds={4*WREG}"
```

```python
from asmlib import *
from moe import WS_YF, WS_RSEL
import struct
MF = "v_mfma_f32_16x16x32_bf16"
WS_PART2 = 0x4000000
WS_FLAGS2 = WS_FLAGS
ACC = 0
AF = 72
YRA = 144
BF = 16
L16 = 112
OFV = 113
ARD = 115
XV = 116
E0 = 120
RC = 140
XL = 200
XN = 210
GG = 220
U = 240
SRD_DBG, SRD_OF, SRD_WS, SRD_X, SRD_OUT = 8, 12, 16, 20, 24
S_WAVE, S_KQ, S_NB, S_Q16, S_WOFF, S_BOFF, S_MB, S_T, S_T2, S_TILE = 30, 31, 32, 33, 34, 35, 36, 37, 38, 39
S_N0, S_N36 = 40, 41
S_IDX = 56
STAGE = 36864

def k3b(name="k3_oproj_kernel", moe=True, prof=False, cpf=True, xbf16=False, hota=False, hotb=False):
    em = Em(); e = em.e
    nst = [0]
    def stamp():
        if not prof: return
        k = nst[0]; nst[0] += 1
        e(f"s_memtime s[{64+4*k}:{65+4*k}]\ns_memrealtime s[{66+4*k}:{67+4*k}]\ns_waitcnt lgkmcnt(0)")
        em.ds_done = em.ds - 1
    kernel_head(em, name)
    e("s_cmp_ge_u32 s2, 256\ns_cbranch_scc1 K3_END")
    e(f"s_load_dwordx2 s[6:7], s[0:1], {KA_WS}")
    e(f"s_load_dwordx2 s[50:51], s[0:1], {KA_X}")
    e(f"s_load_dwordx2 s[52:53], s[0:1], {KA_OUT}")
    e(f"s_load_dwordx2 s[44:45], s[0:1], {KA_DBG}")
    e("v_and_b32 v1, 63, v0\nv_lshrrev_b32 v2, 6, v0\ns_nop 0")
    e(f"v_readfirstlane_b32 s{S_WAVE}, v2")
    e(f"s_and_b32 s{S_KQ}, s2, 1\ns_lshl_b32 s{S_KQ}, s{S_KQ}, 1\ns_bfe_u32 s28, s2, 0x10003\ns_add_u32 s{S_KQ}, s{S_KQ}, s28")
    e(f"s_bfe_u32 s{S_NB}, s2, 0x20004\ns_bfe_u32 s3, s2, 0x20001\ns_lshr_b32 s28, s2, 6")
    e(f"s_lshl_b32 s{S_TILE}, s3, 2\ns_add_u32 s{S_TILE}, s{S_TILE}, s28\ns_lshl_b32 s{S_TILE}, s{S_TILE}, 2\ns_add_u32 s{S_TILE}, s{S_TILE}, s{S_NB}")
    e(f"s_lshl_b32 s{S_Q16}, s3, 5\ns_lshl_b32 s28, s28, 3\ns_add_u32 s{S_Q16}, s{S_Q16}, s28\ns_lshl_b32 s28, s{S_WAVE}, 1\ns_add_u32 s{S_Q16}, s{S_Q16}, s28")
    e(f"s_lshl_b32 s{S_T}, s{S_KQ}, 5\ns_add_u32 s{S_T2}, s{S_T}, s{S_WAVE}\ns_mul_i32 s{S_WOFF}, s{S_T2}, 36864\ns_mul_i32 s{S_T2}, s{S_NB}, 9216\ns_add_u32 s{S_WOFF}, s{S_WOFF}, s{S_T2}\ns_add_u32 s{S_WOFF}, s{S_WOFF}, {hex(WS_WOF)}")
    e(f"s_lshl_b32 s{S_BOFF}, s{S_T}, 10")
    e(f"s_mul_i32 s{S_MB}, s{S_WAVE}, 9216")
    e("v_and_b32 v3, 15, v1\nv_lshrrev_b32 v4, 4, v1")
    e(f"v_lshlrev_b32 v{L16}, 4, v1\nv_mov_b32 v{ARD}, v{L16}")
    for q in range(2):
        e(f"s_add_u32 s{S_T}, s{S_Q16}, {q}\ns_lshl_b32 s{S_T}, s{S_T}, 17\nv_add_u32 v{OFV+q}, s{S_T}, v{L16}")
    if cpf:
        code_prefetch(em, name, "K3_CODE_END", 2, S_WAVE, 1, 252, 99, 92, "k3"); em.vm = 0
    e("s_waitcnt lgkmcnt(0)")
    srd(em, SRD_WS, 6, 7, WS_SIZE)
    if moe:
        e(f"s_add_u32 s54, s6, {hex(WS_MOE)}\ns_addc_u32 s55, s7, 0")
        e(f"s_load_dwordx8 s[{S_IDX}:{S_IDX+7}], s[54:55], 0")
    e(f"s_add_u32 s6, s6, {hex(WS_OF)}\ns_addc_u32 s7, s7, 0")
    srd(em, SRD_OF, 6, 7, 2048 * 4096 * 2)
    srd(em, SRD_X, 50, 51, 2048 * 1152)
    srd(em, SRD_OUT, 52, 53, 2048 * 1152)
    srd(em, SRD_DBG, 44, 45, 256)
    stamp()
    YR = 240
    if moe:
        e("s_cmp_lt_u32 s2, 36\ns_cbranch_scc0 K3_NOY1")
        e(f"s_lshl_b32 s47, s2, 9\ns_lshl_b32 s48, s{S_WAVE}, 7\ns_add_u32 s47, s47, s48")
        e(f"v_lshrrev_b32 v5, 3, v1\nv_mul_u32_u24 v5, 18432, v5\nv_and_b32 v6, 7, v1\nv_lshl_add_u32 v5, v6, 4, v5\nv_add_u32 v5, s47, v5")
        e(f"s_mov_b32 s48, {hex(WS_YP)}")
        for i in range(18):
            e(f"buffer_load_dwordx4 a[{YRA+4*i}:{YRA+4*i+3}], v5, s[{SRD_WS}:{SRD_WS+3}], s48 offen")
            if i < 17: e(f"s_add_u32 s48, s48, {8*18432}")
        e(f"v_lshlrev_b32 v6, 2, v6\ns_mov_b32 s47, {hex(WS_RSEL)}")
        e(f"buffer_load_dword v{YR+8}, v6, s[{SRD_WS}:{SRD_WS+3}], s47 offen")
        em.label("K3_NOY1")
    tags = {}
    def a_dma(st):
        r = []
        for i in range(9):
            if (i & 3) == 0:
                r.append(("salu", f"s_add_u32 m0, s{S_MB}, {(st&3)*STAGE + (i>>2)*4096}" + (f"\ns_add_u32 s{S_WOFF}, s{S_WOFF}, 4096" if i else "")))
            r.append(("vmem", f"buffer_load_dwordx4 v{L16}, s[{SRD_WS}:{SRD_WS+3}], s{S_WOFF} offen offset:{(i&3)*1024} lds", ("a", st)))
        r.append(("salu", f"s_add_u32 s{S_WOFF}, s{S_WOFF}, {4*36864 - 8192}" if not hota else f"s_sub_u32 s{S_WOFF}, s{S_WOFF}, 8192"))
        return r
    def b_ld(st):
        r = []
        for kk in range(4):
            for q in range(2):
                d = BF + ((st % 3) * 8 + kk * 2 + q) * 4
                r.append(("vmem", f"buffer_load_dwordx4 {vr(d,4)}, v{OFV+q}, s[{SRD_OF}:{SRD_OF+3}], s{S_BOFF} offen offset:{kk*1024}", ("b", st)))
        if not hotb: r.append(("salu", f"s_add_u32 s{S_BOFF}, s{S_BOFF}, 4096"))
        return r
    def emit_items(items):
        prev = None
        for it in items:
            if it[0] == "vmem":
                idx = em.vmem(it[1]); tags[it[2]] = idx
            else:
                e(it[1])
                if "m0" in it[1] and it[1].count("\n") == 0: e("s_nop 0")
            prev = it
    emit_items(a_dma(0)); emit_items(b_ld(0)); emit_items(a_dma(1)); emit_items(b_ld(1))
    if moe:
        e("s_cmp_lt_u32 s2, 36\ns_cbranch_scc0 K3_NOY2")
        e(f"s_waitcnt vmcnt({em.vm})")
        for r in range(4): e(f"v_accvgpr_read_b32 v{YR+r}, a{YRA+r}")
        for i in range(1, 18):
            for r in range(4): e(f"v_accvgpr_read_b32 v{YR+4+r}, a{YRA+4*i+r}")
            for r in range(4): e(f"v_add_f32 v{YR+r}, v{YR+r}, v{YR+4+r}")
        for r in range(4):
            y, t = YR + r, YR + 4 + r
            e(f"s_nop 1\nv_add_f32_dpp v{t}, v{y}, v{y} row_ror:8 row_mask:0xf bank_mask:0xf")
            e(f"v_mov_b32 v{y}, v{t}\ns_nop 1\nv_permlane16_swap_b32 v{y}, v{t}\nv_add_f32 v{y}, v{y}, v{t}")
            e(f"v_mov_b32 v{t}, v{y}\ns_nop 1\nv_permlane32_swap_b32 v{y}, v{t}\nv_add_f32 v{y}, v{y}, v{t}")
            e(f"v_cvt_pk_bf16_f32 v{y}, v{y}, v{y}\nv_lshlrev_b32 v{y}, 16, v{y}\nv_mul_f32 v{y}, v{y}, v{YR+8}\nv_cvt_pk_bf16_f32 v{y}, v{y}, v{y}\nv_lshlrev_b32 v{y}, 16, v{y}")
        e(f"s_lshl_b32 s47, s2, 6\ns_lshl_b32 s48, s{S_WAVE}, 4\ns_add_u32 s47, s47, s48\ns_add_u32 s47, s47, {hex(WS_YF)}")
        e("v_and_b32 v6, 7, v1\nv_mul_u32_u24 v6, 2304, v6")
        e("s_mov_b64 s[48:49], exec\ns_mov_b64 exec, 0xff")
        e(f"buffer_store_dwordx4 {vr(YR,4)}, v6, s[{SRD_WS}:{SRD_WS+3}], s47 offen sc0 sc1")
        e("s_mov_b64 exec, s[48:49]")
        em.label("K3_NOY2")
    emit_items(a_dma(2))
    e(f"s_lshr_b32 s{S_T}, s{S_KQ}, 1\ns_add_u32 s{S_Q16}, s{S_Q16}, s{S_T}")
    e(f"s_and_b32 s{S_N0}, s{S_KQ}, 1\ns_mul_i32 s{S_N0}, s{S_N0}, 5")
    e(f"s_mul_i32 s{S_N36}, s{S_NB}, 9\ns_add_u32 s{S_N36}, s{S_N36}, s{S_N0}")
    e(f"s_mul_i32 s{S_T}, s{S_Q16}, {16*1152}\ns_mul_i32 s{S_T2}, s{S_NB}, 288\ns_add_u32 s{S_T}, s{S_T}, s{S_T2}")
    e(f"v_mul_u32_u24 v5, 0x480, v3\nv_lshl_add_u32 v5, v4, 3, v5\nv_add_u32 v{XV}, s{S_T}, v5")
    def x_items():
        r = []
        for k in range(5):
            r.append(("vmem", f"s_add_u32 s46, s{S_N0}, {k}\ns_lshl_b32 s46, s46, 5\nbuffer_load_dwordx2 {vr(XL+2*k,2)}, v{XV}, s[{SRD_X}:{SRD_X+3}], s46 offen", ("x", k)))
            r.append(("vmem", f"s_add_u32 s46, s{S_N36}, {k}\ns_and_b32 s47, s46, 1\ns_lshl_b32 s47, s47, 3\ns_lshr_b32 s46, s46, 1\ns_mul_i32 s48, s{S_Q16}, 18\ns_add_u32 s46, s46, s48\ns_lshl_b32 s46, s46, 10\ns_add_u32 s46, s46, s47\n"
                      f"buffer_load_dwordx2 {vr(XN+2*k,2)}, v{L16}, s[{SRD_WS}:{SRD_WS+3}], s46 offen", ("x", k)))
        return r
    def a_rd(t):
        st, kk = t >> 2, t & 3
        return [f"ds_read_b128 {ar(AF+(t&1)*36+N*4,4)}, v{ARDS[st&3]} offset:{kk*9216 + N*1024}" for N in range(9)]
    ARDS = [ARD, 117, 118, 119]
    for k in range(1, 4): e(f"v_add_u32 v{ARDS[k]}, {k*STAGE}, v{ARD}")
    em.wait_vm(tags[("a", 0)])
    e("s_barrier")
    for t in a_rd(0): em.ds_load(t)
    NT = 32
    for t in range(NT):
        st, kk = t >> 2, t & 3
        if kk == 0:
            em.wait_vm(tags[("b", st)])
        if kk == 3 and st + 1 < 8:
            em.wait_vm(tags[("a", st + 1)])
            em.ds_all_done()
            e("s_barrier")
        if moe and t == 13:
            e("s_cmp_lt_u32 s2, 36\ns_cbranch_scc0 K3_NOY3")
            e("v_mov_b32 v6, 0\nv_mov_b32 v7, 1\ns_mov_b64 s[48:49], exec\ns_mov_b64 exec, 1")
            e(f"buffer_atomic_add v7, v6, s[{SRD_DBG}:{SRD_DBG+3}], 0 offen sc1")
            e("s_mov_b64 exec, s[48:49]")
            em.label("K3_NOY3")
            e("s_nop 3")
        mf = []
        for N in range(9):
            for q in range(2):
                acc = ACC + (q * 9 + N) * 4
                b = BF + ((st % 3) * 8 + kk * 2 + q) * 4
                mf.append(f"{MF} {ar(acc,4)}, {ar(AF+(t&1)*36+N*4,4)}, {vr(b,4)}, {'0' if t == 0 else ar(acc,4)}")
        rd = a_rd(t + 1) if t + 1 < NT else []
        vm = []
        if kk == 0 and st + 3 < 8: vm = a_dma(st + 3)
        if kk == 1 and st + 2 < 8: vm = b_ld(st + 2)
        if st == 6 and kk == 2: vm = x_items()
        for g in range(18):
            em.mfma(mf[g])
            if g % 2 == 0 and rd: em.ds_load(rd.pop(0))
            if g % 2 == 1 and vm:
                take = [vm.pop(0)]
                while take[-1][0] == "salu" and vm: take.append(vm.pop(0))
                emit_items(take)
        for x in rd: em.ds_load(x)
        emit_items(vm)
    stamp()
    e("s_nop 7")
    e(f"s_lshl_b32 s{S_T}, s{S_TILE}, 4\ns_add_u32 s{S_T}, s{S_T}, s{S_KQ}\ns_lshl_b32 s{S_T}, s{S_T}, 2\ns_add_u32 s{S_T}, s{S_T}, s{S_WAVE}\ns_mul_i32 s44, s{S_T}, 5120\ns_add_u32 s44, s44, {hex(WS_PART2)}")
    for p in range(4):
        q, n0, cnt = p >> 1, (p & 1) * 5, 5 - (p & 1)
        e(f"s_cmp_eq_u32 s{S_KQ}, {p}\ns_cbranch_scc1 K3_KEEP{p}")
        e(f"s_add_u32 s46, s44, {p*16*5120}")
        for k in range(cnt):
            if k == 4: e("s_add_u32 s46, s46, 4096")
            e(f"buffer_store_dwordx4 {ar(ACC+(q*9+n0+k)*4,4)}, v{L16}, s[{SRD_WS}:{SRD_WS+3}], s46 offen offset:{(k&3)*1024} sc0 sc1")
        e(f"s_branch K3_NEXT{p}")
        em.label(f"K3_KEEP{p}")
        for k in range(cnt):
            for r in range(4): e(f"v_accvgpr_read_b32 v{E0+4*k+r}, a{ACC+(q*9+n0+k)*4+r}")
        em.label(f"K3_NEXT{p}")
    e("s_mov_b32 s54, 0xbfb8aa3b\ns_mov_b32 s55, 0xffff0000")
    e("s_waitcnt vmcnt(13)")
    YL = RC
    if moe:
        for k in range(20): e(f"v_mov_b32 v{YL+k}, 0")
        e(f"s_lshl_b32 s46, s{S_Q16}, 4\nv_add_u32 v5, s46, v3\nv_mov_b32 v6, 8")
        for t in range(8):
            e(f"v_cmp_eq_u32 vcc, s{S_IDX+t}, v5\nv_mov_b32 v7, {t}\ns_nop 0\nv_cndmask_b32 v6, v6, v7, vcc")
        e("v_cmp_gt_u32 vcc, 8, v6\ns_cbranch_vccz K3_NOMOE")
        e("s_mov_b64 s[48:49], exec\ns_and_b64 exec, exec, vcc")
        e("v_mov_b32 v7, 0")
        em.label("K3_YPOLL")
        e(f"buffer_load_dword v5, v7, s[{SRD_DBG}:{SRD_DBG+3}], 0 offen sc0 sc1\ns_waitcnt vmcnt(0)")
        e("v_readfirstlane_b32 s46, v5\ns_cmp_ge_u32 s46, 144\ns_cbranch_scc1 K3_YOK\ns_sleep 2\ns_branch K3_YPOLL")
        em.label("K3_YOK")
        e(f"v_mul_u32_u24 v6, 2304, v6\nv_lshl_add_u32 v6, v4, 4, v6")
        e(f"s_mul_i32 s46, s{S_NB}, 576\ns_lshl_b32 s47, s{S_N0}, 6\ns_add_u32 s46, s46, s47\ns_add_u32 s46, s46, {hex(WS_YF)}")
        for k in range(5):
            e(f"buffer_load_dwordx4 {vr(YL+4*k,4)}, v6, s[{SRD_WS}:{SRD_WS+3}], s46 offen offset:{k*64} sc0 sc1")
        e("s_waitcnt vmcnt(0)")
        e("s_mov_b64 exec, s[48:49]")
        em.label("K3_NOMOE")
    for k in range(5):
        t = GG + 4 * k
        e(f"v_lshlrev_b32 v{t}, 16, v{XN+2*k}\nv_and_b32 v{t+1}, s55, v{XN+2*k}\nv_lshlrev_b32 v{t+2}, 16, v{XN+2*k+1}\nv_and_b32 v{t+3}, s55, v{XN+2*k+1}")
        if moe:
            for r in range(4): e(f"v_add_f32 v{t+r}, v{t+r}, v{YL+4*k+r}")
            e(f"v_cvt_pk_bf16_f32 v{U}, v{t}, v{t+1}\nv_cvt_pk_bf16_f32 v{U+1}, v{t+2}, v{t+3}")
            e(f"v_lshlrev_b32 v{t}, 16, v{U}\nv_and_b32 v{t+1}, s55, v{U}\nv_lshlrev_b32 v{t+2}, 16, v{U+1}\nv_and_b32 v{t+3}, s55, v{U+1}")
        for r in range(4): e(f"v_mul_f32 v{U+2+r}, s54, v{t+r}")
        for r in range(4): e(f"v_exp_f32 v{U+2+r}, v{U+2+r}")
        e("s_nop 0")
        for r in range(4): e(f"v_add_f32 v{U+2+r}, 1.0, v{U+2+r}")
        for r in range(4): e(f"v_rcp_f32 v{U+2+r}, v{U+2+r}")
        e("s_nop 0")
        for r in range(4): e(f"v_mul_f32 v{t+r}, v{t+r}, v{U+2+r}")
        e(f"v_cvt_pk_bf16_f32 v{U}, v{t}, v{t+1}\nv_cvt_pk_bf16_f32 v{U+1}, v{t+2}, v{t+3}")
        e(f"v_lshlrev_b32 v{t}, 16, v{U}\nv_and_b32 v{t+1}, s55, v{U}\nv_lshlrev_b32 v{t+2}, 16, v{U+1}\nv_and_b32 v{t+3}, s55, v{U+1}")
    e("s_waitcnt vmcnt(0)")
    e(f"s_lshl_b32 s46, s{S_TILE}, 2\ns_add_u32 s46, s46, s{S_KQ}\ns_lshl_b32 s46, s46, 2\ns_add_u32 s46, s46, s{S_WAVE}\ns_lshl_b32 s46, s46, 2\ns_add_u32 s46, s46, {hex(WS_FLAGS2)}")
    e("v_mov_b32 v5, 0\nv_mov_b32 v6, 1\ns_mov_b64 s[48:49], exec\ns_mov_b64 exec, 1")
    e(f"buffer_store_dword v6, v5, s[{SRD_WS}:{SRD_WS+3}], s46 offen sc0 sc1")
    e("s_mov_b64 exec, 15")
    e(f"s_lshl_b32 s46, s{S_TILE}, 6\ns_lshl_b32 s47, s{S_WAVE}, 2\ns_add_u32 s46, s46, s47\ns_add_u32 s46, s46, {hex(WS_FLAGS2)}\nv_lshlrev_b32 v5, 4, v1")
    em.label("K3_POLL")
    e(f"buffer_load_dword v6, v5, s[{SRD_WS}:{SRD_WS+3}], s46 offen sc0 sc1\ns_waitcnt vmcnt(0)")
    e("v_cmp_ne_u32 vcc, 1, v6\ns_cbranch_vccz K3_POLLED\ns_sleep 1\ns_branch K3_POLL")
    em.label("K3_POLLED")
    e("s_mov_b64 exec, s[48:49]")
    stamp()
    for i in range(1, 4):
        e(f"s_add_u32 s46, s{S_KQ}, {i}\ns_and_b32 s46, s46, 3\ns_lshl_b32 s47, s{S_TILE}, 2\ns_add_u32 s47, s47, s{S_KQ}\ns_lshl_b32 s47, s47, 2\ns_add_u32 s47, s47, s46\ns_lshl_b32 s47, s47, 2\ns_add_u32 s47, s47, s{S_WAVE}\ns_mul_i32 s47, s47, 5120\ns_add_u32 s47, s47, {hex(WS_PART2)}")
        for k in range(5):
            if k == 4: e("s_add_u32 s47, s47, 4096")
            e(f"buffer_load_dwordx4 {vr(RC+((i-1)*5+k)*4,4)}, v{L16}, s[{SRD_WS}:{SRD_WS+3}], s47 offen offset:{(k&3)*1024} sc0 sc1")
    stamp()
    for k in range(5):
        if k == 4: e(f"s_bitcmp1_b32 s{S_KQ}, 0\ns_cbranch_scc1 K3_FIN")
        a = E0 + 4 * k; g = GG + 4 * k
        e("s_waitcnt vmcnt(4)")
        for i in range(3):
            for r in range(0, 4, 2):
                e(f"v_pk_add_f32 {vr(a+r,2)}, {vr(a+r,2)}, {vr(RC+(i*5+k)*4+r,2)}")
        e(f"v_cvt_pk_bf16_f32 v{U}, v{a}, v{a+1}\nv_cvt_pk_bf16_f32 v{U+1}, v{a+2}, v{a+3}")
        e(f"v_lshlrev_b32 v{a}, 16, v{U}\nv_and_b32 v{a+1}, s55, v{U}\nv_lshlrev_b32 v{a+2}, 16, v{U+1}\nv_and_b32 v{a+3}, s55, v{U+1}")
        for r in range(4): e(f"v_mul_f32 v{a+r}, v{a+r}, v{g+r}")
        e(f"v_cvt_pk_bf16_f32 v{U}, v{a}, v{a+1}\nv_cvt_pk_bf16_f32 v{U+1}, v{a+2}, v{a+3}")
        e(f"v_lshlrev_b32 v{a}, 16, v{U}\nv_and_b32 v{a+1}, s55, v{U}\nv_lshlrev_b32 v{a+2}, 16, v{U+1}\nv_and_b32 v{a+3}, s55, v{U+1}")
        e(f"v_lshlrev_b32 v{g}, 16, v{XL+2*k}\nv_and_b32 v{g+1}, s55, v{XL+2*k}\nv_lshlrev_b32 v{g+2}, 16, v{XL+2*k+1}\nv_and_b32 v{g+3}, s55, v{XL+2*k+1}")
        for r in range(4): e(f"v_add_f32 v{a+r}, v{a+r}, v{g+r}")
        e(f"v_cvt_pk_bf16_f32 v{U+6+2*(k&1)}, v{a}, v{a+1}\nv_cvt_pk_bf16_f32 v{U+7+2*(k&1)}, v{a+2}, v{a+3}")
        e(f"s_add_u32 s46, s{S_N0}, {k}\ns_lshl_b32 s46, s46, 5")
        e(f"buffer_store_dwordx2 {vr(U+6+2*(k&1),2)}, v{XV}, s[{SRD_OUT}:{SRD_OUT+3}], s46 offen")
    em.label("K3_FIN")
    if prof:
        e("s_waitcnt vmcnt(0)")
        stamp()
        e(f"s_lshl_b32 s46, s2, 2\ns_add_u32 s46, s46, s{S_WAVE}\ns_lshl_b32 s46, s46, 7\ns_add_u32 s46, s46, {hex(WS_PROF + 0x40000)}")
        e("v_mov_b32 v1, 0")
        for k in range(nst[0]):
            e(f"v_mov_b32 v2, s{64+4*k}\nv_mov_b32 v3, s{66+4*k}")
            e(f"buffer_store_dwordx2 v[2:3], v1, s[{SRD_WS}:{SRD_WS+3}], s46 offen offset:{8*k}")
            e("s_nop 1")
    em.label("K3_END")
    e("s_endpgm")
    em.label("K3_CODE_END")
    return em.text(), kernel_desc(name, 512, 96, 256), f"; @launch kernel={name} grid=(256,1,1) block=(256,1,1) lds={4*STAGE}"
```

```python
from asmlib import *
from moe import WS_YF, WS_RSEL, WS_IDX
import k2 as K
from k2 import SRD_WS, SRD_OF, S_WAVE, S_T, S_T2, S_HEAD, S_QB
MF = "v_mfma_f32_16x16x32_bf16"
WS_PART2 = 0x4000000
WS_FLAGS2 = WS_FLAGS
SRD_DBG = 68
SRD_X, SRD_OUT = 56, 60
WS_CNT = WS_FLAGS + 0x1000
C_WOF, C_Y, C_YRED = WS_CNT + 0 * 128, WS_CNT + 1 * 128, WS_CNT + 2 * 128
WS_OFLAG = WS_FLAGS + 0x2000
ACC = 0; AF = 72; YRA = 144
BF = 16; L16 = 112; OFV = 113; ARDS = [115, 117, 118, 119]; XV = 116
E0 = 120; RC = 140; XL = 200; XN = 210; GG = 220; U = 240
P_KQ, P_NB, P_Q16, P_WOFF, P_BOFF, P_MB, P_TILE, P_N0, P_N36, P_OC = 28, 29, 30, 31, 32, 33, 34, 35, 36, 39
P_OD = 47
P_IDX = 72
STAGE = 36864
SC = "sc0 sc1"
XB16 = [True]
YMODE = ['main']
YT0V = [220]
NOYP = [False]
YT0 = 220
Y3_0 = 144
WS_YF3 = WS_MOE + 0xA800 if False else 0x2400000
YTGT = [432]
YTS = [14, 18, 24, 30]

def early(em):
    e = em.e
    e(f"s_lshl_b32 s{P_OC}, s{S_QB}, 2\ns_add_u32 s{P_OC}, s{P_OC}, s{S_WAVE}\ns_lshl_b32 s{P_OC}, s{P_OC}, 5\ns_add_u32 s{P_OC}, s{P_OC}, s{S_HEAD}\ns_lshl_b32 s{P_OC}, s{P_OC}, 2\ns_add_u32 s{P_OC}, s{P_OC}, {hex(WS_OFLAG)}")
    e(f"s_load_dwordx2 s[52:53], s[0:1], {KA_X}\ns_load_dwordx2 s[54:55], s[0:1], {KA_OUT}")

def oflag_set(em, vt=5):
    e = em.e
    e(f"v_mov_b32 v{vt}, 0\nv_mov_b32 v{vt+1}, 1\ns_mov_b64 exec, 1")
    e(f"buffer_store_dword v{vt+1}, v{vt}, s[{SRD_WS}:{SRD_WS+3}], s{P_OC} offen {SC}")
    e("s_mov_b64 exec, -1")

OSLEEP = [4]
OFV8 = 253
def oflag_load(em):
    return em.vmem(f"buffer_load_dword v{OFV8+1}, v{OFV8}, s[{SRD_WS}:{SRD_WS+3}], s{P_OD} offen {SC}")
def oflag_need(em, upto, lab, pos=None):
    e = em.e
    if pos is not None: e(f"s_waitcnt vmcnt({min(em.vm - 1 - pos, 63)})")
    m = (1 << (upto + 1)) - 1
    e(f"v_cmp_ne_u32 vcc, 1, v{OFV8+1}\ns_and_b32 s48, vcc_lo, {m}\ns_cbranch_scc0 {lab}_OK")
    em.label(lab)
    e(f"s_sleep {OSLEEP[0]}\nbuffer_load_dword v{OFV8+1}, v{OFV8}, s[{SRD_WS}:{SRD_WS+3}], s{P_OD} offen {SC}\ns_waitcnt vmcnt(0)")
    e(f"v_cmp_ne_u32 vcc, 1, v{OFV8+1}\ns_and_b32 s48, vcc_lo, {m}\ns_cbranch_scc1 {lab}")
    em.label(lab + "_OK")

def setup(em):
    e = em.e
    e(f"s_and_b32 s{P_KQ}, s2, 1\ns_lshl_b32 s{P_KQ}, s{P_KQ}, 1\ns_bfe_u32 s48, s2, 0x10003\ns_add_u32 s{P_KQ}, s{P_KQ}, s48")
    e(f"s_bfe_u32 s{P_NB}, s2, 0x20004\ns_bfe_u32 s49, s2, 0x20001\ns_lshr_b32 s48, s2, 6")
    e(f"s_lshl_b32 s{P_TILE}, s49, 2\ns_add_u32 s{P_TILE}, s{P_TILE}, s48\ns_lshl_b32 s{P_TILE}, s{P_TILE}, 2\ns_add_u32 s{P_TILE}, s{P_TILE}, s{P_NB}")
    e(f"s_lshl_b32 s{P_Q16}, s49, 5\ns_lshl_b32 s48, s48, 3\ns_add_u32 s{P_Q16}, s{P_Q16}, s48\ns_lshl_b32 s48, s{S_WAVE}, 1\ns_add_u32 s{P_Q16}, s{P_Q16}, s48")
    e(f"s_lshl_b32 s{S_T}, s{P_KQ}, 5\ns_add_u32 s{S_T2}, s{S_T}, s{S_WAVE}\ns_mul_i32 s{P_WOFF}, s{S_T2}, 36864\ns_mul_i32 s{S_T2}, s{P_NB}, 9216\ns_add_u32 s{P_WOFF}, s{P_WOFF}, s{S_T2}\ns_add_u32 s{P_WOFF}, s{P_WOFF}, {hex(WS_WOF)}")
    e(f"s_lshl_b32 s{P_BOFF}, s{S_T}, 10")
    e(f"s_mul_i32 s{P_MB}, s{S_WAVE}, 9216")
    e(f"v_lshlrev_b32 v{L16}, 4, v1\nv_mov_b32 v{ARDS[0]}, v{L16}")
    for k in range(1, 4): e(f"v_add_u32 v{ARDS[k]}, {k*STAGE}, v{ARDS[0]}")
    for q in range(2):
        e(f"s_add_u32 s{S_T}, s{P_Q16}, {q}\ns_lshl_b32 s{S_T}, s{S_T}, 17\nv_add_u32 v{OFV+q}, s{S_T}, v{L16}")
    e(f"s_lshr_b32 s49, s{P_Q16}, 2\ns_lshl_b32 s49, s49, 5\ns_lshl_b32 s48, s{P_KQ}, 3\ns_add_u32 s49, s49, s48\ns_lshl_b32 s49, s49, 2\ns_add_u32 s{P_OD}, s49, {hex(WS_OFLAG)}")
    e(f"v_and_b32 v{OFV8}, 7, v1\nv_lshlrev_b32 v{OFV8}, 2, v{OFV8}")
    e("s_waitcnt lgkmcnt(0)")
    em.ds_done = em.ds - 1
    srd(em, SRD_X, 52, 53, 2048 * 1152)
    srd(em, SRD_OUT, 54, 55, 2048 * 1152)

TAG = {}
def a_dma(st):
    r = []
    for i in range(9):
        if (i & 3) == 0:
            r.append(("salu", f"s_add_u32 m0, s{P_MB}, {(st&3)*STAGE + (i>>2)*4096}" + (f"\ns_add_u32 s{P_WOFF}, s{P_WOFF}, 4096" if i else "")))
        r.append(("vmem", f"buffer_load_dwordx4 v{L16}, s[{SRD_WS}:{SRD_WS+3}], s{P_WOFF} offen offset:{(i&3)*1024} {SC} lds", ("a", st)))
    r.append(("salu", f"s_add_u32 s{P_WOFF}, s{P_WOFF}, {4*36864 - 8192}"))
    return r
def b_ld(st):
    r = []
    for kk in range(4):
        for q in range(2):
            d = BF + ((st % 3) * 8 + kk * 2 + q) * 4
            r.append(("vmem", f"buffer_load_dwordx4 {vr(d,4)}, v{OFV+q}, s[{SRD_OF}:{SRD_OF+3}], s{P_BOFF} offen offset:{kk*1024} {SC}", ("b", st)))
    r.append(("salu", f"s_add_u32 s{P_BOFF}, s{P_BOFF}, 4096"))
    return r
def emit_items(em, items):
    for it in items:
        if it[0] == "vmem":
            TAG[it[2]] = em.vmem(it[1])
        else:
            em.e(it[1])
            if "m0" in it[1] and it[1].count("\n") == 0: em.e("s_nop 0")

def poll_ge(em, off_s, target, lab, vt=5, barrier=True, sleep=2):
    e = em.e
    if barrier: e(f"s_cmp_eq_u32 s{S_WAVE}, 0\ns_cbranch_scc0 {lab}_SKIP")
    e(f"v_mov_b32 v{vt}, 0\ns_mov_b64 exec, 1")
    em.label(lab)
    e(f"buffer_load_dword v{vt+1}, v{vt}, s[{SRD_WS}:{SRD_WS+3}], {off_s} offen {SC}\ns_waitcnt vmcnt(0)")
    e(f"v_readfirstlane_b32 s48, v{vt+1}\ns_cmp_ge_u32 s48, {target}\ns_cbranch_scc1 {lab}_OK\ns_sleep {sleep}\ns_branch {lab}")
    em.label(lab + "_OK")
    e("s_mov_b64 exec, -1")
    if barrier:
        em.label(lab + "_SKIP")
        e("s_barrier")

def atomic_inc(em, off, lab, vt=5, st=48):
    e = em.e
    e(f"s_cmp_eq_u32 s{S_WAVE}, 0\ns_cbranch_scc0 {lab}")
    e(f"v_mov_b32 v{vt}, 0\nv_mov_b32 v{vt+1}, 1\ns_mov_b64 exec, 1")
    if not isinstance(off, str):
        e(f"s_mov_b32 s{st}, {hex(off)}"); off = f"s{st}"
    e(f"buffer_atomic_add v{vt+1}, v{vt}, s[{SRD_WS}:{SRD_WS+3}], {off} offen sc1")
    e("s_mov_b64 exec, -1")
    em.label(lab)

def ytask(em):
    e = em.e
    YR = 240
    e(f"s_cmp_ge_u32 s2, {YT0V[0]}\ns_cbranch_scc0 K3_NOY")
    e(f"s_mov_b32 s49, {hex(C_Y)}")
    poll_ge(em, "s49", 144, "K3_YCNT", barrier=True, sleep=8)
    e(f"s_sub_u32 s52, s2, {YT0}\ns_lshl_b32 s49, s52, 9\ns_lshl_b32 s48, s{S_WAVE}, 7\ns_add_u32 s49, s49, s48")
    e("v_lshrrev_b32 v5, 3, v1\nv_mul_u32_u24 v5, 18432, v5\nv_and_b32 v6, 7, v1\nv_lshl_add_u32 v5, v6, 4, v5\nv_add_u32 v5, s49, v5")
    e(f"s_mov_b32 s48, {hex(WS_YP)}")
    for i in range(18):
        e(f"buffer_load_dwordx4 a[{YRA+4*i}:{YRA+4*i+3}], v5, s[{SRD_WS}:{SRD_WS+3}], s48 offen {SC}")
        if i < 17: e(f"s_add_u32 s48, s48, {8*18432}")
    e(f"v_lshlrev_b32 v6, 2, v6\ns_mov_b32 s48, {hex(WS_RSEL)}")
    e(f"buffer_load_dword v{YR+8}, v6, s[{SRD_WS}:{SRD_WS+3}], s48 offen {SC}")
    for i in range(18):
        e(f"s_waitcnt vmcnt({18 - i})" if i < 17 else "s_waitcnt vmcnt(0)")
        if i == 0:
            for r in range(4): e(f"v_accvgpr_read_b32 v{YR+r}, a{YRA+r}")
        else:
            for r in range(4): e(f"v_accvgpr_read_b32 v{YR+4+r}, a{YRA+4*i+r}")
            for r in range(4): e(f"v_add_f32 v{YR+r}, v{YR+r}, v{YR+4+r}")
    for r in range(4):
        y, tt = YR + r, YR + 4 + r
        e(f"s_nop 1\nv_add_f32_dpp v{tt}, v{y}, v{y} row_ror:8 row_mask:0xf bank_mask:0xf")
        e(f"v_mov_b32 v{y}, v{tt}\ns_nop 1\nv_permlane16_swap_b32 v{y}, v{tt}\nv_add_f32 v{y}, v{y}, v{tt}")
        e(f"v_mov_b32 v{tt}, v{y}\ns_nop 1\nv_permlane32_swap_b32 v{y}, v{tt}\nv_add_f32 v{y}, v{y}, v{tt}")
        e(f"v_cvt_pk_bf16_f32 v{y}, v{y}, v{y}\nv_lshlrev_b32 v{y}, 16, v{y}\nv_mul_f32 v{y}, v{y}, v{YR+8}\nv_cvt_pk_bf16_f32 v{y}, v{y}, v{y}\nv_lshlrev_b32 v{y}, 16, v{y}")
    e(f"s_sub_u32 s52, s2, {YT0}\ns_lshl_b32 s49, s52, 6\ns_lshl_b32 s48, s{S_WAVE}, 4\ns_add_u32 s49, s49, s48\ns_add_u32 s49, s49, {hex(WS_YF)}")
    e("v_and_b32 v6, 7, v1\nv_mul_u32_u24 v6, 2304, v6")
    e("s_mov_b64 exec, 0xff")
    e(f"buffer_store_dwordx4 {vr(YR,4)}, v6, s[{SRD_WS}:{SRD_WS+3}], s49 offen {SC}")
    e("s_waitcnt vmcnt(0)")
    e("v_mov_b32 v6, 0\nv_mov_b32 v7, 1\ns_mov_b64 exec, 1")
    e(f"s_mov_b32 s48, {hex(C_YRED)}")
    e(f"buffer_atomic_add v7, v6, s[{SRD_WS}:{SRD_WS+3}], s48 offen sc1")
    e("s_mov_b64 exec, -1")
    em.label("K3_NOY")

def main(em, stamp):
    e = em.e
    TAG.clear(); em.vm = 43
    TAG[("a", 0)] = 8; TAG[("a", 1)] = 17; TAG[("a", 2)] = 26; TAG[("b", 0)] = 34; TAG[("b", 1)] = 42
    YR = 240
    e(f"s_lshr_b32 s{S_T}, s{P_KQ}, 1\ns_add_u32 s{P_Q16}, s{P_Q16}, s{S_T}")
    e(f"s_and_b32 s{P_N0}, s{P_KQ}, 1\ns_mul_i32 s{P_N0}, s{P_N0}, 5")
    e(f"s_mul_i32 s{P_N36}, s{P_NB}, 9\ns_add_u32 s{P_N36}, s{P_N36}, s{P_N0}")
    e(f"s_mul_i32 s{S_T}, s{P_Q16}, {16*1152}\ns_mul_i32 s{S_T2}, s{P_NB}, 288\ns_add_u32 s{S_T}, s{S_T}, s{S_T2}")
    e(f"v_mul_u32_u24 v5, 0x480, v3\nv_lshl_add_u32 v5, v4, 3, v5\nv_add_u32 v{XV}, s{S_T}, v5")
    def x_items():
        r = []
        for k in range(5):
            r.append(("vmem", f"s_add_u32 s48, s{P_N0}, {k}\ns_lshl_b32 s48, s48, 5\nbuffer_load_dwordx2 {vr(XL+2*k,2)}, v{XV}, s[{SRD_X}:{SRD_X+3}], s48 offen", ("x", k)))
            r.append(("vmem", f"s_add_u32 s48, s{P_N36}, {k}\ns_and_b32 s49, s48, 1\ns_lshl_b32 s49, s49, 3\ns_lshr_b32 s48, s48, 1\ns_mul_i32 s52, s{P_Q16}, 18\ns_add_u32 s48, s48, s52\ns_lshl_b32 s48, s48, 10\ns_add_u32 s48, s48, s49\n"
                      f"buffer_load_dwordx2 {vr(XN+2*k,2)}, v{L16}, s[{SRD_WS}:{SRD_WS+3}], s48 offen {SC}", ("x", k)))
        r.append(("vmem", f"v_and_b32 v5, 7, v1\nv_lshlrev_b32 v5, 2, v5\ns_mov_b32 s48, {hex(WS_IDX)}\nbuffer_load_dword v{U+11}, v5, s[{SRD_WS}:{SRD_WS+3}], s48 offen {SC}", ("x", 9)))
        return r
    def a_rd(t):
        st, kk = t >> 2, t & 3
        return [f"ds_read_b128 {ar(AF+(t&1)*36+N*4,4)}, v{ARDS[st&3]} offset:{kk*9216 + N*1024}" for N in range(9)]
    em.wait_vm(TAG[("a", 0)])
    e("s_barrier")
    em.ldmap.clear()
    for t in a_rd(0): em.ds_load(t)
    NT = 32
    isy = f"s_cmp_ge_u32 s2, {YT0V[0]}\ns_cbranch_scc0 "
    for t in range(NT):
        st, kk = t >> 2, t & 3
        if kk == 0:
            em.wait_vm(TAG[("b", st)])
            if t == 0: stamp(em)
        if kk == 3 and st + 1 < 8:
            em.wait_vm(TAG[("a", st + 1)])
            em.ds_all_done()
            e("s_barrier")
        if YMODE[0] == "main":
            isy = f"s_sub_u32 s52, s2, {Y3_0}\ns_cmp_lt_u32 s52, {108 if YT0V[0] < 1000 else 0}\ns_cbranch_scc0 "
            dec = "s_mul_i32 s49, s52, 1821\ns_lshr_b32 s49, s49, 16\ns_mul_i32 s48, s49, 36\ns_sub_u32 s52, s52, s48"
            YR = 240
            if t == YTS[0]:
                e(isy + "K3_NOY0")
                e(f"v_mov_b32 v5, 0\ns_mov_b32 s49, {hex(C_Y)}\nbuffer_load_dword v252, v5, s[{SRD_WS}:{SRD_WS+3}], s49 offen {SC}")
                em.label("K3_NOY0")
                ypos0 = em.vm
            if t == YTS[1]:
                e(isy + "K3_NOY1")
                e(f"s_waitcnt vmcnt({min(em.vm - ypos0, 63)})")
                e("v_readfirstlane_b32 s48, v252\ns_cmp_ge_u32 s48, 144\ns_cbranch_scc1 K3_YC_OK")
                e(f"s_mov_b32 s49, {hex(C_Y)}")
                poll_ge(em, "s49", 144, "K3_YCNT", barrier=False, sleep=8)
                em.label("K3_YC_OK")
                e(dec)
                e(f"s_mul_i32 s49, s49, {48*18432}\ns_lshl_b32 s52, s52, 9\ns_add_u32 s49, s49, s52\ns_lshl_b32 s48, s{S_WAVE}, 7\ns_add_u32 s49, s49, s48")
                e("v_lshrrev_b32 v5, 3, v1\nv_mul_u32_u24 v5, 18432, v5\nv_and_b32 v6, 7, v1\nv_lshl_add_u32 v5, v6, 4, v5\nv_add_u32 v5, s49, v5")
                e(f"s_mov_b32 s48, {hex(WS_YP)}")
                for i in range(6):
                    e(f"buffer_load_dwordx4 a[{YRA+4*i}:{YRA+4*i+3}], v5, s[{SRD_WS}:{SRD_WS+3}], s48 offen {SC}")
                    if i < 5: e(f"s_add_u32 s48, s48, {8*18432}")
                em.label("K3_NOY1")
                e("s_nop 3")
                ypos = em.vm
            if t == YTS[2]:
                e(isy + "K3_NOY2")
                e(f"s_waitcnt vmcnt({min(em.vm - ypos, 63)})")
                for r in range(4): e(f"v_accvgpr_read_b32 v{YR+r}, a{YRA+r}")
                for i in range(1, 6):
                    for r in range(4): e(f"v_accvgpr_read_b32 v{YR+4+r}, a{YRA+4*i+r}")
                    for r in range(4): e(f"v_add_f32 v{YR+r}, v{YR+r}, v{YR+4+r}")
                for r in range(4):
                    y, tt = YR + r, YR + 4 + r
                    e(f"s_nop 1\nv_add_f32_dpp v{tt}, v{y}, v{y} row_ror:8 row_mask:0xf bank_mask:0xf")
                    e(f"v_mov_b32 v{y}, v{tt}\ns_nop 1\nv_permlane16_swap_b32 v{y}, v{tt}\nv_add_f32 v{y}, v{y}, v{tt}")
                    e(f"v_mov_b32 v{tt}, v{y}\ns_nop 1\nv_permlane32_swap_b32 v{y}, v{tt}\nv_add_f32 v{y}, v{y}, v{tt}")
                e(dec)
                e(f"s_mul_i32 s49, s49, {8*2304}\ns_lshl_b32 s52, s52, 6\ns_add_u32 s49, s49, s52\ns_lshl_b32 s48, s{S_WAVE}, 4\ns_add_u32 s49, s49, s48\ns_add_u32 s49, s49, {hex(WS_YF3)}")
                e("v_and_b32 v6, 7, v1\nv_mul_u32_u24 v6, 2304, v6")
                e("s_mov_b64 exec, 0xff")
                e(f"buffer_store_dwordx4 {vr(YR,4)}, v6, s[{SRD_WS}:{SRD_WS+3}], s49 offen {SC}")
                e("s_mov_b64 exec, -1")
                em.label("K3_NOY2")
                e("s_nop 3")
                ypos2 = em.vm
            if t == YTS[3]:
                e(isy + "K3_NOY3")
                e(f"s_waitcnt vmcnt({min(em.vm - ypos2, 63)})")
                e(f"v_mov_b32 v6, 0\nv_mov_b32 v7, 1\ns_mov_b64 exec, 1\ns_mov_b32 s48, {hex(C_YRED)}")
                e(f"buffer_atomic_add v7, v6, s[{SRD_WS}:{SRD_WS+3}], s48 offen sc1")
                e("s_mov_b64 exec, -1")
                em.label("K3_NOY3")
                e("s_nop 3")
        mf = []
        for N in range(9):
            for q in range(2):
                acc = ACC + (q * 9 + N) * 4
                b = BF + ((st % 3) * 8 + kk * 2 + q) * 4
                mf.append(f"{MF} {ar(acc,4)}, {ar(AF+(t&1)*36+N*4,4)}, {vr(b,4)}, {'0' if t == 0 else ar(acc,4)}")
        rd = a_rd(t + 1) if t + 1 < NT else []
        vm = []
        if kk == 0 and st + 3 < 8: vm = a_dma(st + 3)
        if kk == 1 and st + 2 < 8:
            oflag_need(em, st + 2, f"K3_OF{st}", pos=TAG.get(("of", st)))
            vm = b_ld(st + 2)
        if kk == 2 and st + 3 < 8:
            TAG[("of", st + 1)] = oflag_load(em)
        if st == 6 and kk == 2: vm = x_items()
        for g in range(18):
            em.mfma(mf[g])
            if g % 2 == 0 and rd: em.ds_load(rd.pop(0))
            if g % 2 == 1 and vm:
                take = [vm.pop(0)]
                while take[-1][0] == "salu" and vm: take.append(vm.pop(0))
                emit_items(em, take)
        for x in rd: em.ds_load(x)
        emit_items(em, vm)
    stamp(em)
    e("s_nop 7")
    L8 = 252
    e(f"v_lshlrev_b32 v{L8}, 3, v1")
    e(f"s_lshl_b32 s{S_T}, s{P_TILE}, 4\ns_add_u32 s{S_T}, s{S_T}, s{P_KQ}\ns_lshl_b32 s{S_T}, s{S_T}, 2\ns_add_u32 s{S_T}, s{S_T}, s{S_WAVE}\ns_mul_i32 s53, s{S_T}, 5120\ns_add_u32 s53, s53, {hex(WS_PART2)}")
    SB = RC
    slot = 0
    for p in range(4):
        q, n0, cnt = p >> 1, (p & 1) * 5, 5 - (p & 1)
        e(f"s_cmp_eq_u32 s{P_KQ}, {p}\ns_cbranch_scc1 K3_KEEP{p}")
        e(f"s_add_u32 s48, s53, {p*16*5120}")
        if XB16[0]:
            B = SB + (p % 3) * 20
            PK = B + 8
            for k in range(cnt):
                for r in range(4): e(f"v_accvgpr_read_b32 v{B+(k&1)*4+r}, a{ACC+(q*9+n0+k)*4+r}")
                e(f"v_cvt_pk_bf16_f32 v{PK+2*k}, v{B+(k&1)*4}, v{B+(k&1)*4+1}\nv_cvt_pk_bf16_f32 v{PK+2*k+1}, v{B+(k&1)*4+2}, v{B+(k&1)*4+3}")
                if k == 1: e(f"buffer_store_dwordx4 {vr(PK,4)}, v{L16}, s[{SRD_WS}:{SRD_WS+3}], s48 offen {SC}")
                if k == 3: e(f"buffer_store_dwordx4 {vr(PK+4,4)}, v{L16}, s[{SRD_WS}:{SRD_WS+3}], s48 offen offset:1024 {SC}")
                if k == 4: e(f"buffer_store_dwordx2 {vr(PK+8,2)}, v{L8}, s[{SRD_WS}:{SRD_WS+3}], s48 offen offset:2048 {SC}")
        else:
            for k in range(cnt):
                if k == 4: e("s_add_u32 s48, s48, 4096")
                e(f"buffer_store_dwordx4 {ar(ACC+(q*9+n0+k)*4,4)}, v{L16}, s[{SRD_WS}:{SRD_WS+3}], s48 offen offset:{(k&3)*1024} {SC}")
        e(f"s_branch K3_NEXT{p}")
        em.label(f"K3_KEEP{p}")
        for k in range(cnt):
            for r in range(4): e(f"v_accvgpr_read_b32 v{E0+4*k+r}, a{ACC+(q*9+n0+k)*4+r}")
        em.label(f"K3_NEXT{p}")
    e("s_mov_b32 s54, 0xbfb8aa3b\ns_mov_b32 s55, 0xffff0000")
    e("s_waitcnt vmcnt(0)")
    e(f"s_lshl_b32 s48, s{P_TILE}, 2\ns_add_u32 s48, s48, s{P_KQ}\ns_lshl_b32 s48, s48, 2\ns_add_u32 s48, s48, s{S_WAVE}\ns_lshl_b32 s48, s48, 2\ns_add_u32 s48, s48, {hex(WS_FLAGS2)}")
    e("v_mov_b32 v5, 0\nv_mov_b32 v6, 1\ns_mov_b64 exec, 1")
    e(f"buffer_store_dword v6, v5, s[{SRD_WS}:{SRD_WS+3}], s48 offen {SC}")
    e("s_mov_b64 exec, -1")
    e(f"v_mov_b32 v255, v{U+11}")
    if YMODE[0] == "end": ytask(em)
    YL = RC
    for k in range(20): e(f"v_mov_b32 v{YL+k}, 0")
    for t in range(8): e(f"v_readlane_b32 s{P_IDX+t}, v255, {t}")
    e(f"s_lshl_b32 s48, s{P_Q16}, 4\nv_add_u32 v5, s48, v3\nv_mov_b32 v6, 8")
    for t in range(8):
        e(f"v_cmp_eq_u32 vcc, s{P_IDX+t}, v5\nv_mov_b32 v7, {t}\ns_nop 0\nv_cndmask_b32 v6, v6, v7, vcc")
    e("v_cmp_gt_u32 vcc, 8, v6\ns_cbranch_vccz K3_NOMOE")
    if NOYP[0]: e("s_branch K3_NOMOE")
    e("s_and_b64 exec, exec, vcc")
    e("v_mov_b32 v7, 0")
    em.label("K3_YPOLL")
    e(f"s_mov_b32 s49, {hex(C_YRED)}\nbuffer_load_dword v5, v7, s[{SRD_WS}:{SRD_WS+3}], s49 offen {SC}\ns_waitcnt vmcnt(0)")
    e(f"v_readfirstlane_b32 s48, v5\ns_cmp_ge_u32 s48, {YTGT[0]}\ns_cbranch_scc1 K3_YOK\ns_sleep 8\ns_branch K3_YPOLL")
    em.label("K3_YOK")
    if YTGT[0] == 432:
        e(f"v_lshlrev_b32 v5, 2, v6\ns_mov_b32 s48, {hex(WS_RSEL)}\nbuffer_load_dword v{U+10}, v5, s[{SRD_WS}:{SRD_WS+3}], s48 offen {SC}")
        e(f"v_mul_u32_u24 v6, 2304, v6\nv_lshl_add_u32 v6, v4, 4, v6")
        e(f"s_mul_i32 s48, s{P_NB}, 576\ns_lshl_b32 s49, s{P_N0}, 6\ns_add_u32 s48, s48, s49\ns_add_u32 s48, s48, {hex(WS_YF3)}")
        for th in range(3):
            for k in range(5):
                e(f"buffer_load_dwordx4 {vr(YL+20*th+4*k,4)}, v6, s[{SRD_WS}:{SRD_WS+3}], s48 offen offset:{k*64} {SC}")
            e(f"s_add_u32 s48, s48, {8*2304}")
        e("s_waitcnt vmcnt(0)")
        for k in range(20):
            y = YL + k
            e(f"v_add_f32 v{y}, v{y}, v{YL+20+k}\nv_add_f32 v{y}, v{y}, v{YL+40+k}")
            e(f"v_cvt_pk_bf16_f32 v{y}, v{y}, v{y}\nv_lshlrev_b32 v{y}, 16, v{y}\nv_mul_f32 v{y}, v{y}, v{U+10}\nv_cvt_pk_bf16_f32 v{y}, v{y}, v{y}\nv_lshlrev_b32 v{y}, 16, v{y}")
    else:
        e(f"v_mul_u32_u24 v6, 2304, v6\nv_lshl_add_u32 v6, v4, 4, v6")
        e(f"s_mul_i32 s48, s{P_NB}, 576\ns_lshl_b32 s49, s{P_N0}, 6\ns_add_u32 s48, s48, s49\ns_add_u32 s48, s48, {hex(WS_YF)}")
        for k in range(5):
            e(f"buffer_load_dwordx4 {vr(YL+4*k,4)}, v6, s[{SRD_WS}:{SRD_WS+3}], s48 offen offset:{k*64} {SC}")
        e("s_waitcnt vmcnt(0)")
    e("s_mov_b64 exec, -1")
    em.label("K3_NOMOE")
    for k in range(5):
        t = GG + 4 * k
        e(f"v_lshlrev_b32 v{t}, 16, v{XN+2*k}\nv_and_b32 v{t+1}, s55, v{XN+2*k}\nv_lshlrev_b32 v{t+2}, 16, v{XN+2*k+1}\nv_and_b32 v{t+3}, s55, v{XN+2*k+1}")
        for r in range(4): e(f"v_add_f32 v{t+r}, v{t+r}, v{YL+4*k+r}")
        e(f"v_cvt_pk_bf16_f32 v{U}, v{t}, v{t+1}\nv_cvt_pk_bf16_f32 v{U+1}, v{t+2}, v{t+3}")
        e(f"v_lshlrev_b32 v{t}, 16, v{U}\nv_and_b32 v{t+1}, s55, v{U}\nv_lshlrev_b32 v{t+2}, 16, v{U+1}\nv_and_b32 v{t+3}, s55, v{U+1}")
        for r in range(4): e(f"v_mul_f32 v{U+2+r}, s54, v{t+r}")
        for r in range(4): e(f"v_exp_f32 v{U+2+r}, v{U+2+r}")
        e("s_nop 0")
        for r in range(4): e(f"v_add_f32 v{U+2+r}, 1.0, v{U+2+r}")
        for r in range(4): e(f"v_rcp_f32 v{U+2+r}, v{U+2+r}")
        e("s_nop 0")
        for r in range(4): e(f"v_mul_f32 v{t+r}, v{t+r}, v{U+2+r}")
        e(f"v_cvt_pk_bf16_f32 v{U}, v{t}, v{t+1}\nv_cvt_pk_bf16_f32 v{U+1}, v{t+2}, v{t+3}")
        e(f"v_lshlrev_b32 v{t}, 16, v{U}\nv_and_b32 v{t+1}, s55, v{U}\nv_lshlrev_b32 v{t+2}, 16, v{U+1}\nv_and_b32 v{t+3}, s55, v{U+1}")
    e("s_mov_b64 exec, 15")
    e(f"s_lshl_b32 s48, s{P_TILE}, 6\ns_lshl_b32 s49, s{S_WAVE}, 2\ns_add_u32 s48, s48, s49\ns_add_u32 s48, s48, {hex(WS_FLAGS2)}\nv_lshlrev_b32 v5, 4, v1")
    em.label("K3_POLL")
    e(f"buffer_load_dword v6, v5, s[{SRD_WS}:{SRD_WS+3}], s48 offen {SC}\ns_waitcnt vmcnt(0)")
    e("v_cmp_ne_u32 vcc, 1, v6\ns_cbranch_vccz K3_POLLED\ns_sleep 3\ns_branch K3_POLL")
    em.label("K3_POLLED")
    e("s_mov_b64 exec, -1")
    stamp(em)
    for i in range(1, 4):
        e(f"s_add_u32 s48, s{P_KQ}, {i}\ns_and_b32 s48, s48, 3\ns_lshl_b32 s49, s{P_TILE}, 2\ns_add_u32 s49, s49, s{P_KQ}\ns_lshl_b32 s49, s49, 2\ns_add_u32 s49, s49, s48\ns_lshl_b32 s49, s49, 2\ns_add_u32 s49, s49, s{S_WAVE}\ns_mul_i32 s49, s49, 5120\ns_add_u32 s49, s49, {hex(WS_PART2)}")
        if XB16[0]:
            b = RC + (i - 1) * 12
            e(f"buffer_load_dwordx4 {vr(b,4)}, v{L16}, s[{SRD_WS}:{SRD_WS+3}], s49 offen {SC}")
            e(f"buffer_load_dwordx4 {vr(b+4,4)}, v{L16}, s[{SRD_WS}:{SRD_WS+3}], s49 offen offset:1024 {SC}")
            e(f"buffer_load_dwordx2 {vr(b+8,2)}, v{L8}, s[{SRD_WS}:{SRD_WS+3}], s49 offen offset:2048 {SC}")
        else:
            for k in range(5):
                if k == 4: e("s_add_u32 s49, s49, 4096")
                e(f"buffer_load_dwordx4 {vr(RC+((i-1)*5+k)*4,4)}, v{L16}, s[{SRD_WS}:{SRD_WS+3}], s49 offen offset:{(k&3)*1024} {SC}")
    if XB16[0]: e("s_waitcnt vmcnt(0)")
    for k in range(5):
        if k == 4: e(f"s_bitcmp1_b32 s{P_KQ}, 0\ns_cbranch_scc1 K3_FIN")
        a = E0 + 4 * k; g = GG + 4 * k
        if XB16[0]:
            for i in range(3):
                b = RC + i * 12 + 2 * k
                e(f"v_lshlrev_b32 v{U}, 16, v{b}\nv_and_b32 v{U+1}, s55, v{b}\nv_lshlrev_b32 v{U+2}, 16, v{b+1}\nv_and_b32 v{U+3}, s55, v{b+1}")
                e(f"v_pk_add_f32 {vr(a,2)}, {vr(a,2)}, {vr(U,2)}\nv_pk_add_f32 {vr(a+2,2)}, {vr(a+2,2)}, {vr(U+2,2)}")
        else:
            e("s_waitcnt vmcnt(4)")
            for i in range(3):
                for r in range(0, 4, 2):
                    e(f"v_pk_add_f32 {vr(a+r,2)}, {vr(a+r,2)}, {vr(RC+(i*5+k)*4+r,2)}")
        e(f"v_cvt_pk_bf16_f32 v{U}, v{a}, v{a+1}\nv_cvt_pk_bf16_f32 v{U+1}, v{a+2}, v{a+3}")
        e(f"v_lshlrev_b32 v{a}, 16, v{U}\nv_and_b32 v{a+1}, s55, v{U}\nv_lshlrev_b32 v{a+2}, 16, v{U+1}\nv_and_b32 v{a+3}, s55, v{U+1}")
        for r in range(4): e(f"v_mul_f32 v{a+r}, v{a+r}, v{g+r}")
        e(f"v_cvt_pk_bf16_f32 v{U}, v{a}, v{a+1}\nv_cvt_pk_bf16_f32 v{U+1}, v{a+2}, v{a+3}")
        e(f"v_lshlrev_b32 v{a}, 16, v{U}\nv_and_b32 v{a+1}, s55, v{U}\nv_lshlrev_b32 v{a+2}, 16, v{U+1}\nv_and_b32 v{a+3}, s55, v{U+1}")
        e(f"v_lshlrev_b32 v{g}, 16, v{XL+2*k}\nv_and_b32 v{g+1}, s55, v{XL+2*k}\nv_lshlrev_b32 v{g+2}, 16, v{XL+2*k+1}\nv_and_b32 v{g+3}, s55, v{XL+2*k+1}")
        for r in range(4): e(f"v_add_f32 v{a+r}, v{a+r}, v{g+r}")
        e(f"v_cvt_pk_bf16_f32 v{U+6+2*(k&1)}, v{a}, v{a+1}\nv_cvt_pk_bf16_f32 v{U+7+2*(k&1)}, v{a+2}, v{a+3}")
        e(f"s_add_u32 s48, s{P_N0}, {k}\ns_lshl_b32 s48, s48, 5")
        e(f"buffer_store_dwordx2 {vr(U+6+2*(k&1),2)}, v{XV}, s[{SRD_OUT}:{SRD_OUT+3}], s48 offen")
    em.label("K3_FIN")
```

```python
from asmlib import *
import struct
MF = "v_mfma_f32_16x16x32_bf16"
def f2u(f): return struct.unpack("<I", struct.pack("<f", f))[0]
WS_IDX = WS_MOE
WS_RSEL = WS_MOE + 32
WS_YF = WS_MOE + 0x1000

def wave_umax(em, v, t):
    e = em.e
    for rot in (8, 4, 2, 1):
        e("s_nop 1")
        e(f"v_max_u32_dpp v{t}, v{v}, v{v} row_ror:{rot} row_mask:0xf bank_mask:0xf")
        v, t = t, v
    e(f"v_mov_b32 v{t}, v{v}\ns_nop 1\nv_permlane16_swap_b32 v{v}, v{t}\nv_max_u32 v{v}, v{v}, v{t}")
    e(f"v_mov_b32 v{t}, v{v}\ns_nop 1\nv_permlane32_swap_b32 v{v}, v{t}\nv_max_u32 v{v}, v{v}, v{t}")
    return v

def emit_topk(em, srd_ws, lane, B, sc="", ldsc="", pre_a=None):
    e = em.e
    Kq = B
    A = B + 32
    if pre_a is None:
        e(f"v_lshlrev_b32 v{A}, 4, v{lane}")
        for i in range(8):
            e(f"s_mov_b32 s29, {hex(WS_R + i*1024)}")
            e(f"buffer_load_dwordx4 {vr(Kq+4*i,4)}, v{A}, s[{srd_ws}:{srd_ws+3}], s29 offen {ldsc}")
    e(f"v_lshlrev_b32 v{A+1}, 2, v{lane}")
    e("s_waitcnt vmcnt(0)")
    if pre_a is not None:
        for i in range(32): e(f"v_accvgpr_read_b32 v{Kq+i}, a{pre_a+i}")
    for i in range(8):
        for k in range(4):
            r = Kq + 4 * i + k
            e(f"v_ashrrev_i32 v{A+2}, 31, v{r}")
            e(f"v_or_b32 v{A+2}, 0x80000000, v{A+2}")
            e(f"v_xor_b32 v{r}, v{r}, v{A+2}")
            e(f"v_and_b32 v{r}, 0xffff0000, v{r}")
            e(f"v_sub_u32 v{A+3}, {0xFFFF - (256*i + k)}, v{A+1}")
            e(f"v_or_b32 v{r}, v{r}, v{A+3}")
    e(f"v_mov_b32 v{A+4}, 0")
    for t in range(8):
        m = A + 5
        e(f"v_max3_u32 v{m}, v{Kq}, v{Kq+1}, v{Kq+2}")
        for i in range(3, 31, 2):
            e(f"v_max3_u32 v{m}, v{m}, v{Kq+i}, v{Kq+i+1}")
        e(f"v_max_u32 v{m}, v{m}, v{Kq+31}")
        wave_umax(em, m, A + 6)
        e(f"v_add_u32 v{A+4}, v{A+4}, v{m}")
        e(f"v_mov_b32 v{A+8+t}, v{A+4}")
        if t < 7:
            for i in range(32): e(f"v_sub_u32 v{Kq+i}, v{Kq+i}, v{m}")
    e(f"v_mov_b32 v{A+5}, v{A+8}")
    for t in range(1, 8):
        e(f"v_cmp_eq_u32 vcc, {t}, v{lane}\ns_nop 1\nv_cndmask_b32 v{A+5}, v{A+5}, v{A+8+t}, vcc")
    e(f"v_and_b32 v{A+6}, 0xffff, v{A+5}\nv_sub_u32 v{A+6}, 0xffff, v{A+6}")
    e(f"v_and_b32 v{A+7}, 0xffff0000, v{A+5}")
    e(f"v_ashrrev_i32 v{A+16}, 31, v{A+7}")
    e(f"v_not_b32 v{A+16}, v{A+16}")
    e(f"v_or_b32 v{A+16}, 0x80000000, v{A+16}")
    e(f"v_xor_b32 v{A+7}, v{A+7}, v{A+16}\nv_and_b32 v{A+7}, 0xffff0000, v{A+7}")
    e(f"v_mul_f32 v{A+7}, 0xbfb8aa3b, v{A+7}\nv_exp_f32 v{A+7}, v{A+7}\ns_nop 0\nv_add_f32 v{A+7}, 1.0, v{A+7}\nv_rcp_f32 v{A+7}, v{A+7}\ns_nop 0")
    e(f"v_cvt_pk_bf16_f32 v{A+7}, v{A+7}, v{A+7}\nv_lshlrev_b32 v{A+7}, 16, v{A+7}")
    e(f"v_lshlrev_b32 v{A+16}, 2, v{lane}")
    e(f"v_cmp_gt_u32 vcc, 8, v{lane}")
    e("s_and_saveexec_b64 s[76:77], vcc")
    e(f"s_mov_b32 s29, {hex(WS_IDX)}")
    e(f"buffer_store_dword v{A+6}, v{A+16}, s[{srd_ws}:{srd_ws+3}], s29 offen {sc}")
    e(f"buffer_store_dword v{A+7}, v{A+16}, s[{srd_ws}:{srd_ws+3}], s29 offen offset:32 {sc}")
    e("s_mov_b64 exec, s[76:77]")

def k4(name="k4_topk_kernel"):
    em = Em(); e = em.e
    kernel_head(em, name)
    e("s_cmp_ge_u32 s2, 1\ns_cbranch_scc1 K4_END")
    e(f"s_load_dwordx2 s[4:5], s[0:1], {KA_WS}\ns_waitcnt lgkmcnt(0)")
    srd(em, 8, 4, 5, WS_SIZE)
    emit_topk(em, 8, 0, 8)
    em.label("K4_END"); e("s_endpgm")
    return em.text(), kernel_desc(name, 72, 80, 72), f"; @launch kernel={name} grid=(1,1,1) block=(64,1,1) lds=0"

MG, MU, MD, MX = 0, 36864, 73728, 110592
MOE_LDS = 110592 + 4096

def emit_gd(em, j_s, wave_s, lane, B, AB, srd_ws, srd_g, srd_u, srd_d, st):
    e = em.e
    g = B; q = B + 1; t0 = B + 2
    e(f"v_lshrrev_b32 v{g}, 4, v{lane}\nv_and_b32 v{q}, 15, v{lane}")
    dv = B + 4
    e(f"v_lshrrev_b32 v{t0}, 2, v{lane}\nv_mul_u32_u24 v{t0}, 0x2400, v{t0}\nv_and_b32 v{t0+1}, 3, v{lane}\nv_lshl_add_u32 v{dv}, v{t0+1}, 4, v{t0}")
    e(f"s_lshl_b32 s{st}, s{j_s}, 6\ns_mul_i32 s{st+1}, s{wave_s}, {16*9216}\ns_add_u32 s{st}, s{st}, s{st+1}")
    e(f"s_lshl_b32 s{st+1}, s{wave_s}, 10")
    for k in range(9):
        e(f"s_add_u32 m0, s{st+1}, {MG + k*4096}\ns_nop 0")
        e(f"buffer_load_dwordx4 v{dv}, s[{srd_g}:{srd_g+3}], s{st} offen lds")
        e(f"s_add_u32 m0, s{st+1}, {MU + k*4096}\ns_nop 0")
        e(f"buffer_load_dwordx4 v{dv}, s[{srd_u}:{srd_u+3}], s{st} offen lds")
        e(f"s_add_u32 s{st}, s{st}, {64*9216}")
    e(f"v_lshlrev_b32 v{t0}, 4, v{lane}")
    e(f"s_mul_i32 s{st}, s{j_s}, 36864\ns_add_u32 s{st}, s{st}, s{st+1}")
    for k in range(9):
        e(f"s_add_u32 m0, s{st+1}, {MD + k*4096}\ns_nop 0")
        e(f"buffer_load_dwordx4 v{t0}, s[{srd_d}:{srd_d+3}], s{st} offen lds")
        e(f"s_add_u32 s{st}, s{st}, 4096")
    e(f"v_and_b32 v{t0+1}, 7, v{q}\nv_lshlrev_b32 v{t0+1}, 2, v{t0+1}")
    e(f"s_mov_b32 s{st}, {hex(WS_IDX)}")
    e(f"buffer_load_dword v{dv+1}, v{t0+1}, s[{srd_ws}:{srd_ws+3}], s{st} offen sc0 sc1")
    e("s_waitcnt vmcnt(0)")
    e(f"v_lshrrev_b32 v{t0}, 4, v{dv+1}\nv_mul_u32_u24 v{t0}, 0x4800, v{t0}")
    e(f"v_and_b32 v{t0+1}, 15, v{dv+1}\nv_lshl_add_u32 v{t0+1}, v{g}, 4, v{t0+1}\nv_lshl_add_u32 v{dv+2}, v{t0+1}, 4, v{t0}")
    XF = B + 8
    for sg in range(18):
        e(f"s_mov_b32 s{st}, {hex(WS_XNF + (sg & ~3) * 1024)}")
        e(f"buffer_load_dwordx4 {vr(XF+4*sg,4)}, v{dv+2}, s[{srd_ws}:{srd_ws+3}], s{st} offen offset:{(sg&3)*1024}")
    ta = B + 80
    e(f"v_bfe_u32 v{t0}, v{lane}, 2, 2\nv_lshl_add_u32 v{t0}, v{g}, 2, v{t0}\nv_lshlrev_b32 v{t0}, 6, v{t0}")
    e(f"v_and_b32 v{t0+1}, 3, v{lane}\nv_lshl_add_u32 v{ta}, v{t0+1}, 3, v{t0}")
    e(f"s_and_b32 s{st}, s{wave_s}, 1\ns_lshl_b32 s{st}, s{st}, 5\ns_lshr_b32 s{st+1}, s{wave_s}, 1\ns_mul_i32 s{st+1}, s{st+1}, 36864\ns_add_u32 s{st}, s{st}, s{st+1}")
    e(f"v_add_u32 v{ta}, s{st}, v{ta}")
    e("s_waitcnt vmcnt(0)\ns_barrier")
    AF = B + 84
    AC = B + 100
    for sg in range(18):
        a = AF + (sg & 3) * 4
        e(f"ds_read_b64_tr_b16 {vr(a,2)}, v{ta} offset:{sg*2048}")
        e(f"ds_read_b64_tr_b16 {vr(a+2,2)}, v{ta} offset:{sg*2048+1024}")
        if sg >= 2:
            s2 = sg - 2
            e("s_waitcnt lgkmcnt(4)")
            e(f"{MF} {vr(AC,4)}, {vr(AF+(s2&3)*4,4)}, {vr(XF+4*s2,4)}, {'0' if s2 == 0 else vr(AC,4)}")
    for s2 in (16, 17):
        e(f"s_waitcnt lgkmcnt({2 if s2 == 16 else 0})")
        e(f"{MF} {vr(AC,4)}, {vr(AF+(s2&3)*4,4)}, {vr(XF+4*s2,4)}, {vr(AC,4)}")
    e("s_nop 7\ns_nop 1")
    U = B + 104
    e(f"v_cvt_pk_bf16_f32 v{U}, v{AC}, v{AC+1}\nv_cvt_pk_bf16_f32 v{U+1}, v{AC+2}, v{AC+3}")
    e(f"v_lshlrev_b32 v{AC}, 16, v{U}\nv_and_b32 v{AC+1}, 0xffff0000, v{U}\nv_lshlrev_b32 v{AC+2}, 16, v{U+1}\nv_and_b32 v{AC+3}, 0xffff0000, v{U+1}")
    lab = f"GD_NOSILU_{id(em) & 0xffff}"
    e(f"s_cmp_lt_u32 s{wave_s}, 2\ns_cbranch_scc0 {lab}")
    for r in range(4): e(f"v_mul_f32 v{U+r}, 0xbfb8aa3b, v{AC+r}")
    for r in range(4): e(f"v_exp_f32 v{U+r}, v{U+r}")
    e("s_nop 0")
    for r in range(4): e(f"v_add_f32 v{U+r}, 1.0, v{U+r}")
    for r in range(4): e(f"v_rcp_f32 v{U+r}, v{U+r}")
    e("s_nop 0")
    for r in range(4): e(f"v_mul_f32 v{AC+r}, v{AC+r}, v{U+r}")
    e(f"v_cvt_pk_bf16_f32 v{U}, v{AC}, v{AC+1}\nv_cvt_pk_bf16_f32 v{U+1}, v{AC+2}, v{AC+3}")
    e(f"v_lshlrev_b32 v{AC}, 16, v{U}\nv_and_b32 v{AC+1}, 0xffff0000, v{U}\nv_lshlrev_b32 v{AC+2}, 16, v{U+1}\nv_and_b32 v{AC+3}, 0xffff0000, v{U+1}")
    em.label(lab)
    e(f"v_lshlrev_b32 v{t0}, 4, v{lane}\nv_add_u32 v{t0}, {MX}, v{t0}\ns_lshl_b32 s{st}, s{wave_s}, 10\nv_add_u32 v{t0+1}, s{st}, v{t0}")
    e(f"ds_write_b128 v{t0+1}, {vr(AC,4)}")
    e("s_waitcnt lgkmcnt(0)\ns_barrier")
    H = XF
    for k in range(4): e(f"ds_read_b128 {vr(H+4*k,4)}, v{t0} offset:{k*1024}")
    e("s_waitcnt lgkmcnt(0)")
    for r in range(8): e(f"v_mul_f32 v{H+r}, v{H+r}, v{H+8+r}")
    HF = XF + 16
    for k in range(4): e(f"v_cvt_pk_bf16_f32 v{HF+k}, v{H+2*k}, v{H+2*k+1}")
    e(f"v_bfe_u32 v{t0}, v{lane}, 2, 2\nv_lshl_add_u32 v{t0}, v{g}, 2, v{t0}\nv_mul_u32_u24 v{t0}, 0x480, v{t0}")
    e(f"v_and_b32 v{t0+1}, 3, v{lane}\nv_lshl_add_u32 v{ta}, v{t0+1}, 3, v{t0}")
    e(f"s_mul_i32 s{st}, s{wave_s}, 288\ns_add_u32 s{st}, s{st}, {MD}\nv_add_u32 v{ta}, s{st}, v{ta}")
    DA = XF + 20
    for N in range(9):
        e(f"ds_read_b64_tr_b16 {vr(DA+4*N,2)}, v{ta} offset:{N*32}")
        e(f"ds_read_b64_tr_b16 {vr(DA+4*N+2,2)}, v{ta} offset:{16*1152 + N*32}")
    e("s_waitcnt lgkmcnt(0)")
    Y = B + 84
    Y = XF + 56
    for N in range(9):
        e(f"{MF} {vr(Y+4*N,4)}, {vr(DA+4*N,4)}, {vr(HF,4)}, 0")
    e("s_nop 7\ns_nop 1")
    e(f"v_and_b32 v{t0}, 7, v{q}\nv_mul_u32_u24 v{t0}, 2304, v{t0}\nv_lshl_add_u32 v{t0}, v{g}, 4, v{t0}")
    e(f"s_mul_i32 s{st}, s{j_s}, {8*2304}\ns_mul_i32 s{st+1}, s{wave_s}, 576\ns_add_u32 s{st}, s{st}, s{st+1}\ns_add_u32 s{st}, s{st}, {hex(WS_YP)}")
    for N in range(9):
        e(f"buffer_store_dwordx4 {vr(Y+4*N,4)}, v{t0}, s[{srd_ws}:{srd_ws+3}], s{st} offen offset:{N*64}")

def k5(name="k5_gd_kernel"):
    em = Em(); e = em.e
    kernel_head(em, name)
    e("s_cmp_ge_u32 s2, 144\ns_cbranch_scc1 K5_END")
    e(f"s_load_dwordx2 s[4:5], s[0:1], {KA_WS}\ns_load_dwordx2 s[6:7], s[0:1], {KA_WG}\ns_load_dwordx2 s[24:25], s[0:1], {KA_WU}\ns_load_dwordx2 s[26:27], s[0:1], {KA_WD}")
    e("v_and_b32 v1, 63, v0\nv_lshrrev_b32 v2, 6, v0\ns_nop 0\nv_readfirstlane_b32 s30, v2")
    e("s_waitcnt lgkmcnt(0)")
    srd(em, 8, 4, 5, WS_SIZE); srd(em, 12, 6, 7, 576 * 9216); srd(em, 16, 24, 25, 576 * 9216); srd(em, 20, 26, 27, 4608 * 1152)
    emit_gd(em, 2, 30, 1, 8, None, 8, 12, 16, 20, 40)
    em.label("K5_END"); e("s_endpgm")
    return em.text(), kernel_desc(name, 160, 64, 160), f"; @launch kernel={name} grid=(144,1,1) block=(256,1,1) lds={MOE_LDS}"

def k6(name="k6_red_kernel"):
    em = Em(); e = em.e
    kernel_head(em, name)
    e("s_cmp_ge_u32 s2, 21\ns_cbranch_scc1 K6_END")
    e(f"s_load_dwordx2 s[4:5], s[0:1], {KA_WS}")
    e("s_lshl_b32 s3, s2, 8\nv_add_u32 v1, s3, v0")
    e("s_waitcnt lgkmcnt(0)")
    srd(em, 8, 4, 5, WS_SIZE)
    e("v_lshlrev_b32 v2, 2, v1")
    e(f"s_mov_b32 s20, {hex(WS_YP)}")
    for k in range(4): e(f"v_mov_b32 v{10+k}, 0")
    e("s_mov_b32 s21, 18")
    em.label("K6_LOOP")
    for k in range(8):
        e(f"buffer_load_dword v{16+k}, v2, s[8:11], s20 offen")
        e(f"s_add_u32 s20, s20, {8*2304}")
    for k in range(8):
        e(f"s_waitcnt vmcnt({7-k})\nv_add_f32 v{10+(k&3)}, v{10+(k&3)}, v{16+k}")
    e("s_sub_u32 s21, s21, 1\ns_cmp_lg_u32 s21, 0\ns_cbranch_scc1 K6_LOOP")
    e("v_add_f32 v10, v10, v11\nv_add_f32 v12, v12, v13\nv_add_f32 v10, v10, v12")
    e("s_mov_b32 s22, 0x71c72\nv_mul_lo_u32 v3, v1, s22\nv_lshrrev_b32 v3, 28, v3")
    e(f"v_min_u32 v4, 7, v3\nv_lshlrev_b32 v4, 2, v4\ns_mov_b32 s20, {hex(WS_RSEL)}")
    e("buffer_load_dword v5, v4, s[8:11], s20 offen\ns_waitcnt vmcnt(0)")
    e("v_cvt_pk_bf16_f32 v10, v10, v10\nv_lshlrev_b32 v10, 16, v10\nv_mul_f32 v10, v10, v5\nv_cvt_pk_bf16_f32 v10, v10, v10\nv_lshlrev_b32 v10, 16, v10")
    e("v_cmp_gt_u32 vcc, 8, v3\ns_nop 1\nv_cndmask_b32 v10, 0, v10, vcc")
    e("v_cmp_gt_u32 vcc, 0x1440, v1")
    e("s_and_saveexec_b64 s[24:25], vcc\ns_cbranch_execz K6_END")
    e(f"s_mov_b32 s20, {hex(WS_YF)}")
    e("buffer_store_dword v10, v2, s[8:11], s20 offen")
    em.label("K6_END"); e("s_endpgm")
    return em.text(), kernel_desc(name, 32, 32, 32), f"; @launch kernel={name} grid=(21,1,1) block=(256,1,1) lds=0"
```

```python
from asmlib import *
from moe import WS_IDX, WS_RSEL, WS_YF, wave_umax, emit_topk
import k2 as K
from k2 import *
MF = "v_mfma_f32_16x16x32_bf16"

SRD_G, SRD_U, SRD_D = 56, 60, 88
SRD_DBG = 68
FUSED = [True]
WOFPF = [False]
S_WPF = 49
NGD = [144]
SRD_XS = 16
S_J = 72
S_GOFF = 73
S_DOFF = 74
S_W1K = 75
GV = 132
FLG = 133
IDXV = 134
XSB = 135
TA = 12
TA2 = 13
PFV = 252
S_PF = 86
PFD = 248
def XFR(sg):
    if K.PV2[0]:
        if sg < 8: return ar(144 + 4 * sg, 4)
        if sg < 12: return vr(136 + 4 * (sg - 8), 4)
        if sg < 15: return ar(244 + 4 * (sg - 12), 4)
        return vr(72 + 4 * (sg - 15), 4)
    return ar(212 + 4 * sg, 4) if sg < 11 else vr(104 + 4 * (sg - 11), 4)
def set_pv2():
    global GV, FLG, IDXV, XSB
    GV, FLG, IDXV, XSB = 240, 241, 242, 243
L_WG, L_WU, L_WD = 65536, 131072, 0
L_WG2, L_WU2 = 36864, 40960
L_MX = 45056
DBG_IDXFLAG = 4
WS_XSF = WS_MOE + 0x8000
DBG_XSFLAG = 8
XSWG = 200


def setup_front(em):
    e = em.e
    e(f"s_and_b32 s{S_J}, s2, 7\ns_mul_i32 s{S_J}, s{S_J}, 18\ns_lshr_b32 s{S_T}, s2, 3\ns_add_u32 s{S_J}, s{S_J}, s{S_T}")
    e(f"s_lshl_b32 s{S_GOFF}, s{S_J}, 6\ns_mul_i32 s{S_T}, s{S_WAVE}, {16*9216}\ns_add_u32 s{S_GOFF}, s{S_GOFF}, s{S_T}")
    e(f"s_lshl_b32 s{S_W1K}, s{S_WAVE}, 10")
    e(f"s_mul_i32 s{S_DOFF}, s{S_J}, 36864\ns_add_u32 s{S_DOFF}, s{S_DOFF}, s{S_W1K}")
    e(f"v_lshrrev_b32 v{PFV}, 3, v1\nv_mul_u32_u24 v{PFV}, 0x2400, v{PFV}\nv_and_b32 v{PFV+1}, 7, v1\nv_lshl_add_u32 v{PFV}, v{PFV+1}, 4, v{PFV}")
    e(f"s_and_b32 s{S_PF}, s2, 7\ns_mul_i32 s{S_PF}, s{S_PF}, 1152\ns_lshr_b32 s{S_T}, s2, 3\ns_lshl_b32 s{S_T}, s{S_T}, 2\ns_add_u32 s{S_T}, s{S_T}, s{S_WAVE}\ns_mul_i32 s{S_T}, s{S_T}, {8*9216}\ns_add_u32 s{S_PF}, s{S_PF}, s{S_T}")
    e(f"s_cmp_lt_u32 s2, {NGD[0]}\ns_cselect_b32 s{S_T}, {576*9216}, 0\ns_cselect_b32 s{S_T2}, {4608*1152}, 0")
    srd(em, SRD_G, 80, 81, f"s{S_T}")
    srd(em, SRD_U, 82, 83, f"s{S_T}")
    srd(em, SRD_D, 84, 85, f"s{S_T2}")

def prefetch_items():
    r = []
    for srd_ in (SRD_G, SRD_U):
        for cb in range(9):
            r.append(("vmem", f"buffer_load_dwordx4 {vr(PFD,4)}, v{PFV}, s[{srd_}:{srd_+3}], s{S_PF} offen offset:{cb*128}"))
    for k in range(9):
        r.append(("salu", f"s_add_u32 s{S_T2}, s{S_DOFF}, {k*4096}"))
        r.append(("vmem", f"buffer_load_dwordx4 {vr(PFD,4)}, v{L16}, s[{SRD_D}:{SRD_D+3}], s{S_T2} offen"))
    return r

def setup_early(em):
    e = em.e
    e(f"v_lshrrev_b32 v{GV}, 2, v1\nv_mul_u32_u24 v{GV}, 0x2400, v{GV}\nv_and_b32 v{FLG}, 3, v1\nv_lshl_add_u32 v{GV}, v{FLG}, 4, v{GV}")

def gpf(srd_, soff_add):
    return ("vmem", f"s_add_u32 s{S_T}, s{S_GOFF}, {soff_add}\nbuffer_load_dwordx4 {vr(PFD,4)}, v{GV}, s[{srd_}:{srd_+3}], s{S_T} offen")
def dpf(k):
    return ("vmem", f"s_add_u32 s{S_T}, s{S_DOFF}, {k*4096}\nbuffer_load_dwordx4 {vr(PFD,4)}, v{L16}, s[{SRD_D}:{SRD_D+3}], s{S_T} offen")

def extras_first(u):
    RB = 64 * 9216
    dma = []
    if u == 5: dma += [flag_item()]
    import k2new
    if k2new.EARLY[0]:
        if u < 4: dma += [gdma(SRD_U, L_WU + k * 4096, k * RB) for k in (2 * u, 2 * u + 1)]
    else:
        if u == 6: dma += [gdma(SRD_U, L_WU + k * 4096, k * RB) for k in range(0, 4)]
        if u == 7: dma += [gdma(SRD_U, L_WU + k * 4096, k * RB) for k in range(4, 8)]
    return dma, []

def flag_item():
    return ("vmem", f"v_mov_b32 v{IDXV}, 0\nbuffer_load_dword v{FLG}, v{IDXV}, s[{SRD_DBG}:{SRD_DBG+3}], 0 offen offset:{DBG_IDXFLAG} sc0 sc1")

def after_first(em, gather=True):
    e = em.e
    e(f"v_readfirstlane_b32 s{S_T}, v{FLG}\ns_cmp_lg_u32 s{S_T}, 0\ns_cbranch_scc1 K2_IDXOK")
    em.label("K2_IDXSPIN")
    e(f"s_sleep 4\nbuffer_load_dword v{FLG}, v{IDXV}, s[{SRD_DBG}:{SRD_DBG+3}], 0 offen offset:{DBG_IDXFLAG} sc0 sc1\ns_waitcnt vmcnt(0)")
    e(f"v_readfirstlane_b32 s{S_T}, v{FLG}\ns_cmp_lg_u32 s{S_T}, 0\ns_cbranch_scc0 K2_IDXSPIN")
    em.label("K2_IDXOK")
    if gather:
        e(f"s_cmp_eq_u32 s2, {XSWG}\ns_cbranch_scc0 K2_NOXS0")
        xs_gather(em)
        em.label("K2_NOXS0")

def xs_gather(em, wait_wof=False):
    e = em.e
    if wait_wof:
        e(f"v_mov_b32 v104, 0\ns_mov_b32 s{S_T}, {hex(WS_FLAGS + 0x1000)}")
        em.label("K2_XSW")
        e(f"buffer_load_dword v105, v104, s[{SRD_WS}:{SRD_WS+3}], s{S_T} offen sc0 sc1\ns_waitcnt vmcnt(0)")
        e(f"v_readfirstlane_b32 s{S_T2}, v105\ns_cmp_ge_u32 s{S_T2}, 256\ns_cbranch_scc1 K2_XSW_OK\ns_sleep 4\ns_branch K2_XSW")
        em.label("K2_XSW_OK")
    T = 234 if K.PV2[0] else 104
    def DR(k): return (ar(244 + 4 * (k % 3), 4) if K.PV2[0] else vr(T + 4 + 4 * k, 4))
    e(f"v_and_b32 v{T}, 7, v1\nv_lshlrev_b32 v{T}, 2, v{T}\ns_mov_b32 s{S_T}, {hex(WS_IDX)}")
    e(f"buffer_load_dword v{T+1}, v{T}, s[{SRD_WS}:{SRD_WS+3}], s{S_T} offen sc0 sc1\ns_waitcnt vmcnt(0)")
    e(f"v_lshrrev_b32 v{T+2}, 4, v{T+1}\nv_mul_u32_u24 v{T+2}, 0x4800, v{T+2}")
    e(f"v_and_b32 v{T+3}, 15, v{T+1}\nv_lshl_add_u32 v{T+3}, v4, 4, v{T+3}\nv_lshl_add_u32 v{T+2}, v{T+3}, 4, v{T+2}")
    e(f"s_lshl_b32 s{S_T}, s{S_WAVE}, 10\nv_add_u32 v{T+2}, s{S_T}, v{T+2}")
    e(f"v_and_b32 v{T+3}, 7, v1\nv_lshl_add_u32 v{T+3}, v4, 3, v{T+3}\nv_lshlrev_b32 v{T+3}, 4, v{T+3}\ns_lshl_b32 s{S_T}, s{S_WAVE}, 9\nv_add_u32 v{T+3}, s{S_T}, v{T+3}")
    rounds = ((0, 1, 2), (3, 4)) if K.PV2[0] else ((0, 1, 2, 3, 4),)
    for rd in rounds:
        for k in rd:
            e(f"s_mov_b32 s{S_T}, {k*4096}")
            e(f"buffer_load_dwordx4 {DR(k)}, v{T+2}, s[{SRD_WS}:{SRD_WS+3}], s{S_T} offen sc0 sc1")
        e("s_waitcnt vmcnt(0)")
        for k in rd:
            if k < 4: e(f"s_mov_b32 s{S_T}, {hex(WS_XSF + k*2048)}")
            else: e(f"s_cmp_lt_u32 s{S_WAVE}, 2\ns_mov_b32 s{S_T}, 0x7ffffff0\ns_cselect_b32 s{S_T}, {hex(WS_XSF + k*2048)}, s{S_T}")
            e(f"buffer_store_dwordx4 {DR(k)}, v{T+3}, s[{SRD_WS}:{SRD_WS+3}], s{S_T} offen sc0 sc1")
        if len(rounds) > 1: e("s_nop 1")
    e("s_waitcnt vmcnt(0)\ns_barrier")
    e(f"s_cmp_eq_u32 s{S_WAVE}, 0\ns_cbranch_scc0 K2_NOXS")
    e(f"v_mov_b32 v{T}, 0\nv_mov_b32 v{T+1}, 1\ns_mov_b64 exec, 1")
    e(f"buffer_store_dword v{T+1}, v{T}, s[{SRD_DBG}:{SRD_DBG+3}], 0 offen offset:{DBG_XSFLAG} sc0 sc1")
    e("s_mov_b64 exec, -1")
    em.label("K2_NOXS")

def loop_head_flag(em):
    em.e(f"v_mov_b32 v{IDXV}, 0\nbuffer_load_dword v{FLG}, v{IDXV}, s[{SRD_DBG}:{SRD_DBG+3}], 0 offen offset:{DBG_XSFLAG} sc0 sc1")
    em.e(f"s_mov_b32 s{S_T}, {hex(WS_FLAGS + 0x1000)}\nbuffer_load_dword v{XSB}, v{IDXV}, s[{SRD_WS}:{SRD_WS+3}], s{S_T} offen sc0 sc1")

def setup_before_last(em):
    e = em.e
    e(f"v_readfirstlane_b32 s{S_T}, v{FLG}\ns_cmp_lg_u32 s{S_T}, 0\ns_cbranch_scc1 K2_XSOK")
    em.label("K2_XSSPIN")
    e(f"s_sleep 4\nbuffer_load_dword v{FLG}, v{IDXV}, s[{SRD_DBG}:{SRD_DBG+3}], 0 offen offset:{DBG_XSFLAG} sc0 sc1\ns_waitcnt vmcnt(0)")
    e(f"v_readfirstlane_b32 s{S_T}, v{FLG}\ns_cmp_lg_u32 s{S_T}, 0\ns_cbranch_scc0 K2_XSSPIN")
    em.label("K2_XSOK")
    e(f"v_readfirstlane_b32 s{S_T}, v{XSB}\ns_cmp_ge_u32 s{S_T}, 256\ns_cbranch_scc1 K2_WOFOK")
    em.label("K2_WOFSPIN")
    e(f"s_sleep 4\ns_mov_b32 s{S_T}, {hex(WS_FLAGS + 0x1000)}\nbuffer_load_dword v{XSB}, v{IDXV}, s[{SRD_WS}:{SRD_WS+3}], s{S_T} offen sc0 sc1\ns_waitcnt vmcnt(0)")
    e(f"v_readfirstlane_b32 s{S_T}, v{XSB}\ns_cmp_ge_u32 s{S_T}, 256\ns_cbranch_scc0 K2_WOFSPIN")
    em.label("K2_WOFOK")
    e(f"v_and_b32 v{XSB}, 7, v1\nv_lshl_add_u32 v{XSB}, v4, 3, v{XSB}\nv_lshlrev_b32 v{XSB}, 4, v{XSB}\nv_add_u32 v{XSB}, {hex(WS_XSF)}, v{XSB}")
    e(f"s_mov_b32 s{SRD_XS}, s{SRD_WS}\ns_mov_b32 s{SRD_XS+1}, s{SRD_WS+1}\ns_cmp_lt_u32 s2, {NGD[0]}\ns_cselect_b32 s{SRD_XS+2}, {hex(WS_OF)}, 0\ns_mov_b32 s{SRD_XS+3}, 0x00020000")
    e(f"s_mov_b32 s96, 0x00ff00ff\ns_mov_b32 s97, 0x00ff00ff")
    e(f"s_and_b32 s{S_WPF}, s2, 1\ns_mul_i32 s{S_WPF}, s{S_WPF}, {64*36864}\ns_lshr_b32 s{S_T}, s2, 3\ns_lshl_b32 s{S_T}, s{S_T}, 2\ns_add_u32 s{S_T}, s{S_T}, s{S_WAVE}\ns_mul_i32 s{S_T}, s{S_T}, 18432\ns_add_u32 s{S_WPF}, s{S_WPF}, s{S_T}\ns_add_u32 s{S_WPF}, s{S_WPF}, {hex(WS_WOF)}")

def xsel_item(sg):
    return ("vmem", f"buffer_load_dwordx4 {XFR(sg)}, v{XSB}, s[{SRD_XS}:{SRD_XS+3}], s{S_X4+(sg>>3)} offen offset:{(sg&7)*512} sc0 sc1")

def gdma(srd_, lds, soff_add, tagname=None):
    return ("vmem", f"s_add_u32 m0, s{S_W1K}, {lds}\ns_add_u32 s{S_T}, s{S_GOFF}, {soff_add}\nbuffer_load_dwordx4 v{GV}, s[{srd_}:{srd_+3}], s{S_T} offen lds")
def ddma(k):
    return ("vmem", f"s_add_u32 m0, s{S_W1K}, {L_WD + k*4096}\ns_add_u32 s{S_T}, s{S_DOFF}, {k*4096}\nbuffer_load_dwordx4 v{L16}, s[{SRD_D}:{SRD_D+3}], s{S_T} offen lds")

def extras_last(u):
    dma = []
    RB = 64 * 9216
    if K.PV2[0] and u == 7:
        for sg in range(15): dma.append(xsel_item(sg))
    if u < 4 and not K.PV2[0]:
        for sg in range([0, 5, 10, 14][u], [5, 10, 14, 18][u]): dma.append(xsel_item(sg))
    if WOFPF[0] and u < 6:
        for k in range(3 * u, 3 * u + 3):
            dma.append(("vmem", f"s_add_u32 s{S_T}, s{S_WPF}, {k*1024}\nbuffer_load_dwordx4 {vr(PFD,4)}, v{L16}, s[{SRD_WS}:{SRD_WS+3}], s{S_T} offen sc0 sc1"))
    if u == 4:
        for k in range(0, 4): dma.append(ddma(k))
        for k in (0, 1): dma.append(gdma(SRD_G, L_WG + k * 4096, k * RB))
    if u == 5:
        for k in range(4, 8): dma.append(ddma(k))
        for k in (2, 3): dma.append(gdma(SRD_G, L_WG + k * 4096, k * RB))
    if u == 6:
        for k in range(4, 8): dma.append(gdma(SRD_G, L_WG + k * 4096, k * RB))
        dma.append(ddma(8))
    if u == 7:
        dma.append(gdma(SRD_G, L_WG2, 8 * RB)); dma.append(gdma(SRD_U, L_WU2, 8 * RB))
    return dma, []

def emit_tail(em, ts=False, fused=False, mid=None):
    e = em.e
    if ts:
        for k in (3, 4): e(f"s_mov_b32 s{80+2*k}, 0\ns_mov_b32 s{81+2*k}, 0")
    if not fused: e("s_cmp_lt_u32 s2, {NGD[0]}\ns_cbranch_scc0 K2_TAILEND")
    t0 = 8
    g = 4
    e(f"v_bfe_u32 v{t0}, v1, 2, 2\nv_lshl_add_u32 v{t0}, v{g}, 2, v{t0}\nv_lshlrev_b32 v{t0+2}, 6, v{t0}")
    e(f"v_and_b32 v{t0+1}, 3, v1\nv_lshl_add_u32 v{t0+2}, v{t0+1}, 3, v{t0+2}")
    e(f"s_and_b32 s{S_T}, s{S_WAVE}, 1\ns_lshl_b32 s{S_T}, s{S_T}, 5")
    e(f"s_cmp_lt_u32 s{S_WAVE}, 2\ns_mov_b32 s{S_T2}, {L_WU}\ns_cselect_b32 s{S_T2}, {L_WG}, s{S_T2}\ns_add_u32 s{S_T2}, s{S_T2}, s{S_T}\nv_add_u32 v{TA}, s{S_T2}, v{t0+2}")
    e(f"s_cmp_lt_u32 s{S_WAVE}, 2\ns_mov_b32 s{S_T2}, {L_WU2}\ns_cselect_b32 s{S_T2}, {L_WG2}, s{S_T2}\ns_add_u32 s{S_T2}, s{S_T2}, s{S_T}\nv_add_u32 v{TA2}, s{S_T2}, v{t0+2}")
    e(f"v_mul_u32_u24 v{t0+3}, 0x480, v{t0}\nv_lshl_add_u32 v{t0+3}, v{t0+1}, 3, v{t0+3}\ns_mul_i32 s{S_T}, s{S_WAVE}, 288\nv_add_u32 v{t0+3}, s{S_T}, v{t0+3}")
    if not fused: e("s_waitcnt vmcnt(0)\ns_barrier")
    if ts: K.stamp(em, True)
    AF = (152 if K.PV2[0] else 136); AC = 32
    def ald(sg):
        a = AF + (sg & 7) * 4
        if sg < 16:
            e(f"ds_read_b64_tr_b16 {vr(a,2)}, v{TA} offset:{sg*2048}\nds_read_b64_tr_b16 {vr(a+2,2)}, v{TA} offset:{sg*2048+1024}")
        else:
            e(f"ds_read_b64_tr_b16 {vr(a,2)}, v{TA2} offset:{(sg-16)*2048}\nds_read_b64_tr_b16 {vr(a+2,2)}, v{TA2} offset:{(sg-16)*2048+1024}")
    for sg in range(7): ald(sg)
    DA = 40
    for sg in range(18):
        if sg + 7 < 18: ald(sg + 7)
        left = min(sg + 7, 17) - sg
        if K.PV2[0] and fused and sg == 15: e("s_waitcnt vmcnt(4)")
        e(f"s_waitcnt lgkmcnt({2*left})")
        e(f"{MF} {vr(AC,4)}, {vr(AF+(sg&7)*4,4)}, {XFR(sg)}, {'0' if sg == 0 else vr(AC,4)}")
    for N in range(9):
        e(f"ds_read_b64_tr_b16 {vr(DA+4*N,2)}, v{t0+3} offset:{L_WD + N*32}")
        e(f"ds_read_b64_tr_b16 {vr(DA+4*N+2,2)}, v{t0+3} offset:{L_WD + 16*1152 + N*32}")
    if mid is not None: mid()
    e("s_nop 3")
    U = 36
    e(f"v_cvt_pk_bf16_f32 v{U}, v{AC}, v{AC+1}\nv_cvt_pk_bf16_f32 v{U+1}, v{AC+2}, v{AC+3}")
    e(f"v_lshlrev_b32 v{AC}, 16, v{U}\nv_and_b32 v{AC+1}, 0xffff0000, v{U}\nv_lshlrev_b32 v{AC+2}, 16, v{U+1}\nv_and_b32 v{AC+3}, 0xffff0000, v{U+1}")
    e(f"s_cmp_lt_u32 s{S_WAVE}, 2\ns_cbranch_scc0 K2_NOSILU")
    for r in range(4): e(f"v_mul_f32 v{U+r}, 0xbfb8aa3b, v{AC+r}")
    for r in range(4): e(f"v_exp_f32 v{U+r}, v{U+r}")
    e("s_nop 0")
    for r in range(4): e(f"v_add_f32 v{U+r}, 1.0, v{U+r}")
    for r in range(4): e(f"v_rcp_f32 v{U+r}, v{U+r}")
    e("s_nop 0")
    for r in range(4): e(f"v_mul_f32 v{AC+r}, v{AC+r}, v{U+r}")
    e(f"v_cvt_pk_bf16_f32 v{U}, v{AC}, v{AC+1}\nv_cvt_pk_bf16_f32 v{U+1}, v{AC+2}, v{AC+3}")
    e(f"v_lshlrev_b32 v{AC}, 16, v{U}\nv_and_b32 v{AC+1}, 0xffff0000, v{U}\nv_lshlrev_b32 v{AC+2}, 16, v{U+1}\nv_and_b32 v{AC+3}, 0xffff0000, v{U+1}")
    em.label("K2_NOSILU")
    e(f"v_add_u32 v{t0}, {L_MX}, v{L16}\nv_add_u32 v{t0+1}, s{S_W1K}, v{t0}")
    e(f"ds_write_b128 v{t0+1}, {vr(AC,4)}")
    e("s_waitcnt lgkmcnt(0)\ns_barrier")
    if ts: K.stamp(em, True)
    H = 80
    for k in range(4): e(f"ds_read_b128 {vr(H+4*k,4)}, v{t0} offset:{k*1024}")
    e("s_waitcnt lgkmcnt(0)")
    for r in range(8): e(f"v_mul_f32 v{H+r}, v{H+r}, v{H+8+r}")
    HF = 96
    for k in range(4): e(f"v_cvt_pk_bf16_f32 v{HF+k}, v{H+2*k}, v{H+2*k+1}")
    e("s_nop 1")
    Y = (184 if K.PV2[0] else 168)
    for N in range(9): e(f"{MF} {vr(Y+4*N,4)}, {vr(DA+4*N,4)}, {vr(HF,4)}, 0")
    e(f"v_lshl_add_u32 v{t0}, v{g}, 3, v3\nv_lshlrev_b32 v{t0}, 4, v{t0}")
    e(f"s_mul_i32 s{S_T}, s2, 18432\ns_mul_i32 s{S_T2}, s{S_WAVE}, 4608\ns_add_u32 s{S_T}, s{S_T}, s{S_T2}\ns_add_u32 s{S_T}, s{S_T}, {hex(WS_YP)}")
    e("s_mov_b64 exec, s[96:97]\ns_nop 4")
    for N in range(9):
        e(f"buffer_store_dwordx4 {vr(Y+4*N,4)}, v{t0}, s[{SRD_WS}:{SRD_WS+3}], s{S_T} offen offset:{(N*512)%4096}" + (" sc0 sc1" if fused else ""))
        if N == 7: e(f"s_add_u32 s{S_T}, s{S_T}, 4096")
    e("s_mov_b64 exec, -1")
    if not fused: em.label("K2_TAILEND")

TKA = 212
def topk_async1(em):
    e = em.e
    e(f"s_cmp_eq_u32 s2, 255\ns_cbranch_scc0 K2_TKA1\ns_cmp_eq_u32 s{S_WAVE}, 1\ns_cbranch_scc0 K2_TKA1")
    e(f"v_and_b32 v{TMP+6}, 7, v1\nv_lshlrev_b32 v{TMP+6}, 5, v{TMP+6}")
    e(f"buffer_load_dword v{TMP+7}, v{TMP+6}, s[{SRD_DBG}:{SRD_DBG+3}], 0 offen sc0 sc1")
    em.label("K2_TKA1")
    return em.vm
def topk_async2(em, pos):
    e = em.e
    e(f"s_cmp_eq_u32 s2, 255\ns_cbranch_scc0 K2_TKA2\ns_cmp_eq_u32 s{S_WAVE}, 1\ns_cbranch_scc0 K2_TKA2")
    e(f"v_and_b32 v{TMP+6}, 7, v1\nv_lshlrev_b32 v{TMP+6}, 5, v{TMP+6}")
    e(f"s_waitcnt vmcnt({min(em.vm - pos, 63)})")
    e(f"v_cmp_gt_u32 vcc, 32, v{TMP+7}\ns_cbranch_vccz K2_TKGO")
    em.label("K2_TKPOLL")
    e(f"s_sleep 2\nbuffer_load_dword v{TMP+7}, v{TMP+6}, s[{SRD_DBG}:{SRD_DBG+3}], 0 offen sc0 sc1\ns_waitcnt vmcnt(0)")
    e(f"v_cmp_gt_u32 vcc, 32, v{TMP+7}\ns_cbranch_vccnz K2_TKPOLL")
    em.label("K2_TKGO")
    e(f"v_lshlrev_b32 v{TMP+6}, 4, v1")
    for i in range(8):
        e(f"s_mov_b32 s29, {hex(WS_R + i*1024)}")
        e(f"buffer_load_dwordx4 {ar(TKA+4*i,4)}, v{TMP+6}, s[{SRD_WS}:{SRD_WS+3}], s29 offen sc0 sc1")
    em.label("K2_TKA2")
    e("s_nop 3")

def emit_front_topk(em):
    e = em.e
    e(f"s_cmp_eq_u32 s2, 255\ns_cbranch_scc0 K2_NOTOPK\ns_cmp_eq_u32 s{S_WAVE}, 1\ns_cbranch_scc0 K2_NOTOPK")
    emit_topk(em, SRD_WS, 1, 8, sc="sc0 sc1", ldsc="sc0 sc1", pre_a=TKA)
    e("s_waitcnt vmcnt(0)")
    e(f"v_mov_b32 v66, 0\nv_mov_b32 v67, 1\ns_mov_b64 s[76:77], exec\ns_mov_b64 exec, 1")
    e(f"buffer_store_dword v67, v66, s[{SRD_DBG}:{SRD_DBG+3}], 0 offen offset:{DBG_IDXFLAG} sc0 sc1")
    e("s_mov_b64 exec, s[76:77]")
    em.label("K2_NOTOPK")

def loop_head_prefetch(em):
    e = em.e
    for val, which in ((6, "G"), (5, "U"), (4, "D")):
        e(f"s_cmp_eq_u32 s{S_LOOP}, {val}\ns_cbranch_scc0 K2_LHP{val}")
        if which in "GU":
            srd_ = SRD_G if which == "G" else SRD_U
            e(f"v_lshrrev_b32 v104, 3, v1\nv_mul_u32_u24 v104, 0x2400, v104\nv_and_b32 v105, 7, v1\nv_lshl_add_u32 v104, v105, 4, v104")
            for cb in range(9): e(f"buffer_load_dwordx4 v[108:111], v104, s[{srd_}:{srd_+3}], s{S_PF} offen offset:{cb*128}")
        else:
            for k in range(9): e(f"s_add_u32 s{S_T2}, s{S_DOFF}, {k*4096}\nbuffer_load_dwordx4 v[108:111], v{L16}, s[{SRD_D}:{SRD_D+3}], s{S_T2} offen")
        em.label(f"K2_LHP{val}")
```

```python
from asmlib import *
from moe import WS_IDX, WS_RSEL, WS_YF, emit_topk
import k2 as K
from k2 import *
import moe2 as M
from moe2 import SRD_G, SRD_U, SRD_D, SRD_DBG, SRD_XS, S_J, S_GOFF, S_DOFF, S_W1K, NGD, WS_XSF, DBG_IDXFLAG, DBG_XSFLAG, XSWG
MF = "v_mfma_f32_16x16x32_bf16"
GVE = 150
L_WG, L_WU, L_WD, L_WG2, L_WU2, L_MX = 32768, 81920, 114688, 151552, 155648, 159744
RB = 64 * 9216
C_WOF, C_Y, C_YRED = WS_FLAGS + 0x1000, WS_FLAGS + 0x1000 + 128, WS_FLAGS + 0x1000 + 256
YT0 = 220
def XFR(sg): return ar(32 + 4 * sg, 4)
POS = {}
PROF = [False]

def gdma(srd_, lds, soff):
    return [("vmem", f"s_add_u32 m0, s{S_W1K}, {lds}\ns_add_u32 s{S_T}, s{S_GOFF}, {soff}\nbuffer_load_dwordx4 v{GVE}, s[{srd_}:{srd_+3}], s{S_T} offen lds")]
def ddma(k):
    return [("vmem", f"s_add_u32 m0, s{S_W1K}, {L_WD + k*4096}\ns_add_u32 s{S_T}, s{S_DOFF}, {k*4096}\nbuffer_load_dwordx4 v{L16}, s[{SRD_D}:{SRD_D+3}], s{S_T} offen lds")]
def dpf(k):
    return [("vmem", f"s_add_u32 s{S_T}, s{S_DOFF}, {k*4096}\nbuffer_load_dwordx4 v[144:147], v{L16}, s[{SRD_D}:{SRD_D+3}], s{S_T} offen")]

def front_setup(em):
    e = em.e
    e(f"v_lshrrev_b32 v{GVE}, 2, v1\nv_mul_u32_u24 v{GVE}, 0x2400, v{GVE}\nv_and_b32 v{GVE+1}, 3, v1\nv_lshl_add_u32 v{GVE}, v{GVE+1}, 4, v{GVE}")
    e(f"s_mov_b32 s{SRD_XS}, s{SRD_WS}" if False else "s_nop 0")

def only(em, wg, wave, lab):
    em.e(f"s_cmp_eq_u32 s2, {wg}\ns_cbranch_scc0 {lab}" + (f"\ns_cmp_eq_u32 s{S_WAVE}, {wave}\ns_cbranch_scc0 {lab}" if wave is not None else ""))

def qproj_pre(em, sg):
    e = em.e
    T = 152
    if sg == 0:
        only(em, 255, 1, "GE_TK0")
        e(f"v_and_b32 v{TMP+6}, 7, v1\nv_lshlrev_b32 v{TMP+6}, 5, v{TMP+6}")
        e(f"buffer_load_dword v{TMP+7}, v{TMP+6}, s[{SRD_DBG}:{SRD_DBG+3}], 0 offen sc0 sc1")
        em.label("GE_TK0"); POS["tk0"] = em.vm
    if sg == 1:
        only(em, 255, 1, "GE_TK1")
        e(f"v_and_b32 v{TMP+6}, 7, v1\nv_lshlrev_b32 v{TMP+6}, 5, v{TMP+6}")
        e(f"s_waitcnt vmcnt({min(em.vm - POS['tk0'], 63)})")
        e(f"v_cmp_gt_u32 vcc, 32, v{TMP+7}\ns_cbranch_vccz GE_TKGO")
        em.label("GE_TKPOLL")
        e(f"s_sleep 2\nbuffer_load_dword v{TMP+7}, v{TMP+6}, s[{SRD_DBG}:{SRD_DBG+3}], 0 offen sc0 sc1\ns_waitcnt vmcnt(0)")
        e(f"v_cmp_gt_u32 vcc, 32, v{TMP+7}\ns_cbranch_vccnz GE_TKPOLL")
        em.label("GE_TKGO")
        e(f"v_lshlrev_b32 v{TMP+6}, 4, v1")
        for i in range(8):
            e(f"s_mov_b32 s29, {hex(WS_R + i*1024)}")
            e(f"buffer_load_dwordx4 {ar(212+4*i,4)}, v{TMP+6}, s[{SRD_WS}:{SRD_WS+3}], s29 offen sc0 sc1")
        em.label("GE_TK1"); e("s_nop 3")
    if sg == 3:
        only(em, 255, 1, "GE_TK3")
        emit_topk(em, SRD_WS, 1, T, sc="sc0 sc1", ldsc="sc0 sc1", pre_a=212)
        e("s_waitcnt vmcnt(0)")
        e(f"v_mov_b32 v{T}, 0\nv_mov_b32 v{T+1}, 1\ns_mov_b64 exec, 1")
        e(f"buffer_store_dword v{T+1}, v{T}, s[{SRD_DBG}:{SRD_DBG+3}], 0 offen offset:{DBG_IDXFLAG} sc0 sc1")
        e("s_mov_b64 exec, -1")
        em.label("GE_TK3"); e("s_nop 3")
    if sg == 8:
        only(em, XSWG, None, "GE_X8")
        e(f"v_mov_b32 v{T}, 0\nbuffer_load_dword v{T+1}, v{T}, s[{SRD_DBG}:{SRD_DBG+3}], 0 offen offset:{DBG_IDXFLAG} sc0 sc1")
        em.label("GE_X8"); POS["x8"] = em.vm
    if sg == 9:
        only(em, XSWG, None, "GE_X9")
        e(f"v_mov_b32 v{T}, 0\ns_waitcnt vmcnt({min(em.vm - POS['x8'], 63)})")
        e(f"v_readfirstlane_b32 s28, v{T+1}\ns_cmp_lg_u32 s28, 0\ns_cbranch_scc1 GE_X9OK")
        em.label("GE_X9SPIN")
        e(f"s_sleep 2\nbuffer_load_dword v{T+1}, v{T}, s[{SRD_DBG}:{SRD_DBG+3}], 0 offen offset:{DBG_IDXFLAG} sc0 sc1\ns_waitcnt vmcnt(0)")
        e(f"v_readfirstlane_b32 s28, v{T+1}\ns_cmp_lg_u32 s28, 0\ns_cbranch_scc0 GE_X9SPIN")
        em.label("GE_X9OK")
        e(f"v_and_b32 v{T}, 7, v1\nv_lshlrev_b32 v{T}, 2, v{T}\ns_mov_b32 s28, {hex(WS_IDX)}")
        e(f"buffer_load_dword v{T+1}, v{T}, s[{SRD_WS}:{SRD_WS+3}], s28 offen sc0 sc1")
        em.label("GE_X9"); POS["x9"] = em.vm
    if sg == 11:
        only(em, XSWG, None, "GE_X11")
        e(f"s_waitcnt vmcnt({min(em.vm - POS['x9'], 63)})")
        e(f"v_lshrrev_b32 v{T+2}, 4, v{T+1}\nv_mul_u32_u24 v{T+2}, 0x4800, v{T+2}")
        e(f"v_and_b32 v{T+3}, 15, v{T+1}\nv_lshl_add_u32 v{T+3}, v4, 4, v{T+3}\nv_lshl_add_u32 v{T+2}, v{T+3}, 4, v{T+2}")
        e(f"s_lshl_b32 s28, s{S_WAVE}, 10\nv_add_u32 v{T+2}, s28, v{T+2}")
        for k in range(5):
            e(f"s_mov_b32 s28, {k*4096}")
            e(f"buffer_load_dwordx4 {vr(T+4+4*k,4)}, v{T+2}, s[{SRD_WS}:{SRD_WS+3}], s28 offen sc0 sc1")
        em.label("GE_X11"); POS["x11"] = em.vm
    if sg == 13:
        only(em, XSWG, None, "GE_X13")
        e(f"v_and_b32 v{T+3}, 7, v1\nv_lshl_add_u32 v{T+3}, v4, 3, v{T+3}\nv_lshlrev_b32 v{T+3}, 4, v{T+3}\ns_lshl_b32 s28, s{S_WAVE}, 9\nv_add_u32 v{T+3}, s28, v{T+3}")
        e(f"s_waitcnt vmcnt({min(em.vm - POS['x11'], 63)})")
        for k in range(5):
            if k < 4: e(f"s_mov_b32 s28, {hex(WS_XSF + k*2048)}")
            else: e(f"s_cmp_lt_u32 s{S_WAVE}, 2\ns_mov_b32 s28, 0x7ffffff0\ns_cselect_b32 s28, {hex(WS_XSF + k*2048)}, s28")
            e(f"buffer_store_dwordx4 {vr(T+4+4*k,4)}, v{T+3}, s[{SRD_WS}:{SRD_WS+3}], s28 offen sc0 sc1")
        em.label("GE_X13"); POS["x13"] = em.vm
    if sg == 14:
        only(em, XSWG, None, "GE_X14")
        e(f"s_waitcnt vmcnt({min(em.vm - POS['x13'], 63)})")
        em.label("GE_X14")
    if sg == 15:
        only(em, XSWG, 0, "GE_X15")
        e(f"v_mov_b32 v{T}, 0\nv_mov_b32 v{T+1}, 1\ns_mov_b64 exec, 1")
        e(f"buffer_store_dword v{T+1}, v{T}, s[{SRD_DBG}:{SRD_DBG+3}], 0 offen offset:{DBG_XSFLAG} sc0 sc1")
        e("s_mov_b64 exec, -1")
        em.label("GE_X15"); e("s_nop 3")
    if sg == 15:
        e(f"v_mov_b32 v148, 0")
        POS["xf"] = em.vmem(f"buffer_load_dword v149, v148, s[{SRD_DBG}:{SRD_DBG+3}], 0 offen offset:{DBG_XSFLAG} sc0 sc1")
    if sg == 17:
        K.stamp(em, PROF[0], 24)
        e(f"s_cmp_lt_u32 s2, {NGD[0]}\ns_cbranch_scc0 GE_NOXL")
        em.wait_vm(POS["xf"])
        e(f"v_readfirstlane_b32 s28, v149\ns_cmp_lg_u32 s28, 0\ns_cbranch_scc1 GE_XFOK")
        em.label("GE_XFSPIN")
        e(f"s_sleep 2\nbuffer_load_dword v149, v148, s[{SRD_DBG}:{SRD_DBG+3}], 0 offen offset:{DBG_XSFLAG} sc0 sc1\ns_waitcnt vmcnt(0)")
        e(f"v_readfirstlane_b32 s28, v149\ns_cmp_lg_u32 s28, 0\ns_cbranch_scc0 GE_XFSPIN")
        em.label("GE_XFOK")
        K.stamp(em, PROF[0], 23)
        e(f"v_and_b32 v149, 7, v1\nv_lshl_add_u32 v149, v4, 3, v149\nv_lshlrev_b32 v149, 4, v149\nv_add_u32 v149, {hex(WS_XSF)}, v149")
        for s2 in range(18):
            e(f"buffer_load_dwordx4 {XFR(s2)}, v149, s[{SRD_WS}:{SRD_WS+3}], s{S_X4+(s2>>3)} offen offset:{(s2&7)*512} sc0 sc1")
        em.label("GE_NOXL"); e("s_nop 3")

def qproj_vm(sg):
    r = []
    if sg == 6: r += gdma(SRD_G, L_WG2, 8 * RB) + gdma(SRD_U, L_WU2, 8 * RB)
    if 8 <= sg <= 11:
        for k in (2 * (sg - 8), 2 * (sg - 8) + 1): r += gdma(SRD_G, L_WG + k * 4096, k * RB)
    if sg in (10, 11, 12):
        for k in range(3 * (sg - 10), 3 * (sg - 10) + 3): r += dpf(k)
    if sg == 14:
        for k in range(0, 4): r += gdma(SRD_U, L_WU + k * 4096, k * RB)
    if sg == 15:
        for k in range(4, 8): r += gdma(SRD_U, L_WU + k * 4096, k * RB)
    if sg == 17:
        for k in range(9): r += ddma(k)
    return r

def emit_gd(em):
    e = em.e
    K.stamp(em, PROF[0], 22)
    e(f"s_cmp_lt_u32 s2, {NGD[0]}\ns_cbranch_scc0 GE_NOGD")
    t0 = 8; g = 4; TA, TA2 = 12, 13
    e(f"v_bfe_u32 v{t0}, v1, 2, 2\nv_lshl_add_u32 v{t0}, v{g}, 2, v{t0}\nv_lshlrev_b32 v{t0+2}, 6, v{t0}")
    e(f"v_and_b32 v{t0+1}, 3, v1\nv_lshl_add_u32 v{t0+2}, v{t0+1}, 3, v{t0+2}")
    e(f"s_and_b32 s{S_T}, s{S_WAVE}, 1\ns_lshl_b32 s{S_T}, s{S_T}, 5")
    e(f"s_cmp_lt_u32 s{S_WAVE}, 2\ns_mov_b32 s{S_T2}, {L_WU}\ns_cselect_b32 s{S_T2}, {L_WG}, s{S_T2}\ns_add_u32 s{S_T2}, s{S_T2}, s{S_T}\nv_add_u32 v{TA}, s{S_T2}, v{t0+2}")
    e(f"s_cmp_lt_u32 s{S_WAVE}, 2\ns_mov_b32 s{S_T2}, {L_WU2}\ns_cselect_b32 s{S_T2}, {L_WG2}, s{S_T2}\ns_add_u32 s{S_T2}, s{S_T2}, s{S_T}\nv_add_u32 v{TA2}, s{S_T2}, v{t0+2}")
    e(f"v_mul_u32_u24 v{t0+3}, 0x480, v{t0}\nv_lshl_add_u32 v{t0+3}, v{t0+1}, 3, v{t0+3}\ns_mul_i32 s{S_T}, s{S_WAVE}, 288\ns_add_u32 s{S_T}, s{S_T}, {L_WD}\nv_add_u32 v{t0+3}, s{S_T}, v{t0+3}")
    e("s_waitcnt vmcnt(0)\ns_barrier")
    K.stamp(em, PROF[0], 20)
    AF = 104; AC = 32
    def ald(sg):
        a = AF + (sg & 7) * 4
        if sg < 16:
            e(f"ds_read_b64_tr_b16 {vr(a,2)}, v{TA} offset:{sg*2048}\nds_read_b64_tr_b16 {vr(a+2,2)}, v{TA} offset:{sg*2048+1024}")
        else:
            e(f"ds_read_b64_tr_b16 {vr(a,2)}, v{TA2} offset:{(sg-16)*2048}\nds_read_b64_tr_b16 {vr(a+2,2)}, v{TA2} offset:{(sg-16)*2048+1024}")
    for sg in range(7): ald(sg)
    DA = 40
    for sg in range(18):
        if sg + 7 < 18: ald(sg + 7)
        left = min(sg + 7, 17) - sg
        e(f"s_waitcnt lgkmcnt({2*left})")
        e(f"{MF} {vr(AC,4)}, {vr(AF+(sg&7)*4,4)}, {XFR(sg)}, {'0' if sg == 0 else vr(AC,4)}")
    for N in range(9):
        e(f"ds_read_b64_tr_b16 {vr(DA+4*N,2)}, v{t0+3} offset:{N*32}")
        e(f"ds_read_b64_tr_b16 {vr(DA+4*N+2,2)}, v{t0+3} offset:{16*1152 + N*32}")
    e("s_nop 3")
    U = 36
    e(f"v_cvt_pk_bf16_f32 v{U}, v{AC}, v{AC+1}\nv_cvt_pk_bf16_f32 v{U+1}, v{AC+2}, v{AC+3}")
    e(f"v_lshlrev_b32 v{AC}, 16, v{U}\nv_and_b32 v{AC+1}, 0xffff0000, v{U}\nv_lshlrev_b32 v{AC+2}, 16, v{U+1}\nv_and_b32 v{AC+3}, 0xffff0000, v{U+1}")
    e(f"s_cmp_lt_u32 s{S_WAVE}, 2\ns_cbranch_scc0 GE_NOSILU")
    for r in range(4): e(f"v_mul_f32 v{U+r}, 0xbfb8aa3b, v{AC+r}")
    for r in range(4): e(f"v_exp_f32 v{U+r}, v{U+r}")
    e("s_nop 0")
    for r in range(4): e(f"v_add_f32 v{U+r}, 1.0, v{U+r}")
    for r in range(4): e(f"v_rcp_f32 v{U+r}, v{U+r}")
    e("s_nop 0")
    for r in range(4): e(f"v_mul_f32 v{AC+r}, v{AC+r}, v{U+r}")
    e(f"v_cvt_pk_bf16_f32 v{U}, v{AC}, v{AC+1}\nv_cvt_pk_bf16_f32 v{U+1}, v{AC+2}, v{AC+3}")
    e(f"v_lshlrev_b32 v{AC}, 16, v{U}\nv_and_b32 v{AC+1}, 0xffff0000, v{U}\nv_lshlrev_b32 v{AC+2}, 16, v{U+1}\nv_and_b32 v{AC+3}, 0xffff0000, v{U+1}")
    em.label("GE_NOSILU")
    e(f"v_add_u32 v{t0}, {L_MX}, v{L16}\nv_add_u32 v{t0+1}, s{S_W1K}, v{t0}")
    e(f"ds_write_b128 v{t0+1}, {vr(AC,4)}")
    e("s_waitcnt lgkmcnt(0)\ns_barrier")
    H = 80
    for k in range(4): e(f"ds_read_b128 {vr(H+4*k,4)}, v{t0} offset:{k*1024}")
    e("s_waitcnt lgkmcnt(0)")
    for r in range(8): e(f"v_mul_f32 v{H+r}, v{H+r}, v{H+8+r}")
    HF = 96
    for k in range(4): e(f"v_cvt_pk_bf16_f32 v{HF+k}, v{H+2*k}, v{H+2*k+1}")
    e("s_nop 1")
    Y = 104
    for N in range(9): e(f"{MF} {vr(Y+4*N,4)}, {vr(DA+4*N,4)}, {vr(HF,4)}, 0")
    e(f"v_lshl_add_u32 v{t0}, v{g}, 3, v3\nv_lshlrev_b32 v{t0}, 4, v{t0}")
    e(f"s_mul_i32 s{S_T}, s2, 18432\ns_mul_i32 s{S_T2}, s{S_WAVE}, 4608\ns_add_u32 s{S_T}, s{S_T}, s{S_T2}\ns_add_u32 s{S_T}, s{S_T}, {hex(WS_YP)}")
    e("s_mov_b32 s96, 0x00ff00ff\ns_mov_b32 s97, 0x00ff00ff\ns_mov_b64 exec, s[96:97]\ns_nop 4")
    for N in range(9):
        e(f"buffer_store_dwordx4 {vr(Y+4*N,4)}, v{t0}, s[{SRD_WS}:{SRD_WS+3}], s{S_T} offen offset:{(N*512)%4096} sc0 sc1")
        if N == 7: e(f"s_add_u32 s{S_T}, s{S_T}, 4096")
    e("s_mov_b64 exec, -1")
    e("s_barrier")
    K.stamp(em, PROF[0], 21)
    em.label("GE_NOGD")

def after_first(em):
    import k3f
    e = em.e
    e(f"s_cmp_lt_u32 s2, {NGD[0]}\ns_cbranch_scc0 GE_YC\ns_cmp_eq_u32 s{S_PASS}, 0\ns_cbranch_scc0 GE_YC")
    k3f.atomic_inc(em, C_Y, "GE_YC", vt=104, st=S_T)

def loop_head(em):
    import k3f
    e = em.e
    def YR(i, r=None):
        return (f"v[{104+4*i}:{107+4*i}]" if i < 7 else f"a[{212+4*(i-7)}:{215+4*(i-7)}]")
    e(f"s_cmp_ge_u32 s2, {YT0}\ns_cbranch_scc0 GE_LH\ns_cmp_eq_u32 s{S_PASS}, 0\ns_cbranch_scc0 GE_LH")
    e(f"s_cmp_eq_u32 s{S_LOOP}, 5\ns_cbranch_scc0 GE_LH4")
    e(f"v_mov_b32 v132, 0\ns_mov_b32 s{S_T}, {hex(C_Y)}")
    em.label("GE_YP")
    e(f"buffer_load_dword v133, v132, s[{SRD_WS}:{SRD_WS+3}], s{S_T} offen sc0 sc1\ns_waitcnt vmcnt(0)")
    e(f"v_readfirstlane_b32 s{S_T2}, v133\ns_cmp_ge_u32 s{S_T2}, {NGD[0]}\ns_cbranch_scc1 GE_YPOK\ns_sleep 8\ns_branch GE_YP")
    em.label("GE_YPOK")
    e(f"s_sub_u32 s{S_T2}, s2, {YT0}\ns_lshl_b32 s{S_T2}, s{S_T2}, 9\ns_lshl_b32 s{S_T}, s{S_WAVE}, 7\ns_add_u32 s{S_T2}, s{S_T2}, s{S_T}")
    e(f"v_lshrrev_b32 v132, 3, v1\nv_mul_u32_u24 v132, 18432, v132\nv_and_b32 v133, 7, v1\nv_lshl_add_u32 v132, v133, 4, v132\nv_add_u32 v132, s{S_T2}, v132")
    e(f"s_mov_b32 s{S_T}, {hex(WS_YP)}")
    for i in range(18):
        e(f"buffer_load_dwordx4 {YR(i)}, v132, s[{SRD_WS}:{SRD_WS+3}], s{S_T} offen sc0 sc1")
        if i < 17: e(f"s_add_u32 s{S_T}, s{S_T}, {8*18432}")
    e(f"v_lshlrev_b32 v133, 2, v133\ns_mov_b32 s{S_T}, {hex(WS_RSEL)}")
    e(f"buffer_load_dword v134, v133, s[{SRD_WS}:{SRD_WS+3}], s{S_T} offen sc0 sc1")
    e("s_branch GE_LH")
    em.label("GE_LH4")
    e(f"s_cmp_eq_u32 s{S_LOOP}, 4\ns_cbranch_scc0 GE_LH3")
    for i in range(1, 7):
        for r in range(4): e(f"v_add_f32 v{104+r}, v{104+r}, v{104+4*i+r}")
    for i in range(11):
        for r in range(4): e(f"v_accvgpr_read_b32 v{108+r}, a{212+4*i+r}")
        for r in range(4): e(f"v_add_f32 v{104+r}, v{104+r}, v{108+r}")
    for r in range(4):
        y, tt = 104 + r, 108 + r
        e(f"s_nop 1\nv_add_f32_dpp v{tt}, v{y}, v{y} row_ror:8 row_mask:0xf bank_mask:0xf")
        e(f"v_mov_b32 v{y}, v{tt}\ns_nop 1\nv_permlane16_swap_b32 v{y}, v{tt}\nv_add_f32 v{y}, v{y}, v{tt}")
        e(f"v_mov_b32 v{tt}, v{y}\ns_nop 1\nv_permlane32_swap_b32 v{y}, v{tt}\nv_add_f32 v{y}, v{y}, v{tt}")
        e(f"v_cvt_pk_bf16_f32 v{y}, v{y}, v{y}\nv_lshlrev_b32 v{y}, 16, v{y}\nv_mul_f32 v{y}, v{y}, v134\nv_cvt_pk_bf16_f32 v{y}, v{y}, v{y}\nv_lshlrev_b32 v{y}, 16, v{y}")
    e(f"s_sub_u32 s{S_T2}, s2, {YT0}\ns_lshl_b32 s{S_T2}, s{S_T2}, 6\ns_lshl_b32 s{S_T}, s{S_WAVE}, 4\ns_add_u32 s{S_T2}, s{S_T2}, s{S_T}\ns_add_u32 s{S_T2}, s{S_T2}, {hex(WS_YF)}")
    e("v_and_b32 v132, 7, v1\nv_mul_u32_u24 v132, 2304, v132")
    e("s_mov_b64 exec, 0xff")
    e(f"buffer_store_dwordx4 v[104:107], v132, s[{SRD_WS}:{SRD_WS+3}], s{S_T2} offen sc0 sc1")
    e("s_mov_b64 exec, -1")
    e("s_branch GE_LH")
    em.label("GE_LH3")
    e(f"s_cmp_eq_u32 s{S_LOOP}, 3\ns_cbranch_scc0 GE_LH")
    e(f"v_mov_b32 v132, 0\nv_mov_b32 v133, 1\ns_mov_b64 exec, 1\ns_mov_b32 s{S_T}, {hex(C_YRED)}")
    e(f"buffer_atomic_add v133, v132, s[{SRD_WS}:{SRD_WS+3}], s{S_T} offen sc1")
    e("s_mov_b64 exec, -1")
    em.label("GE_LH")
```

```python
import sys, os
sys.path.insert(0, os.path.dirname(__file__))
from asmlib import *
from k1 import k1
from k2 import k2
from k3 import k3
from k3b import k3b
from moe import k4, k5, k6

HDR = open(os.path.join(os.path.dirname(__file__), "header.txt")).read()

def build(out, kernels):
    launches = [k[2] for k in kernels]
    s = HDR + "\n".join(launches) + "\n"
    s += '.amdgcn_target "amdgcn-amd-amdhsa--gfx950"\n.text\n'
    for k in kernels: s += k[0]
    s += '.section .rodata,"a"\n'
    for k in kernels: s += ".p2align 6\n" + k[1]
    open(out, "w").write(s)

if __name__ == "__main__":
    out = sys.argv[1] if len(sys.argv) > 1 else "dev.s"
    opts = dict(a.split("=") for a in sys.argv[2:])
    prof = opts.get("prof", "0") == "1"
    import k2new
    k2new.XNSC[0] = {'ss': 'sc0 sc1', 's1': 'sc1', 'pl': ''}[opts.get('xnsc', 'ss')]
    k2new.NPRE[0] = int(opts.get('npre0', 8)); k2new.NPRE[1] = int(opts.get('npre1', 14))
    k2new.QSTAMP[0] = opts.get('qstamp', '0') == '1'
    k2new.F3N[0] = int(opts.get('f3a', 5)); k2new.F3N[1] = int(opts.get('f3b', 8))
    k2new.FRONT[0] = int(opts.get('front', 2))
    k2new.GDE[0] = opts.get('gde', '0') == '1' and k2new.FRONT[0] == 2
    k2new.TSTAMP[0] = opts.get('tstamp', '0') == '1'
    k2new.CPF[0] = opts.get('cpf', '1') == '1'
    k2new.CPF3[0] = int(opts.get('cpf3', 0))
    k2new.CPF0[0] = opts.get('cpf0', '0') == '1'
    k2new.MAP[0] = opts.get('map', 'kv')
    ost = {"": "", "sc1": "sc0 sc1", "nt": "nt"}[opts.get("ost", "")]
    import k2 as k2mod
    k2mod.FINFUSE[0] = opts.get("finfuse", "1") == "1"
    k2mod.TOUCH[0] = opts.get("touch", "0") == "1"
    k2mod.CPF2[0] = opts.get("cpf2", "1") == "1"
    k2mod.PV2[0] = opts.get("pv2", "0") == "1"
    k2mod.SUMMODE[0] = opts.get("sum", "mfma"); k2mod.CVTMODE[0] = opts.get("cvt", "cvt")
    k2mod.DBGOUT[0] = opts.get("dbg", "0") == "1"
    fused = opts.get("fused", "1") == "1"
    import moe2, k3f
    if 'yts' in opts: k3f.YTS[:] = [int(x) for x in opts['yts'].split(',')]
    k3f.XB16[0] = opts.get('xb16', '1') == '1'
    moe2.WOFPF[0] = opts.get("wofpf", "0") == "1"
    if opts.get("nomoe", "0") == "1":
        import moe2, k3f
        moe2.NGD[0] = 0; k3f.YT0V[0] = 1000; k3f.NOYP[0] = True
    KN = "recurrent_scan__gqa_block_cached__moe_arch_mod__prompt_kernel"
    K2 = k2(name=(KN if fused else "k2_attn_kernel"), order=opts.get("order", "C"), prof=prof, ost=ost, fused=fused)
    if fused:
        K2 = (K2[0], K2[1], "; @launch grid=(256,1,1) block=(256,1,1) lds=163840")
        build(out, [K2])
    else:
        build(out, [K2, k3b(moe=True, prof=False, cpf=opts.get("cpf", "1") == "1")])
```

```python
from defs import *
from front import dma_k, dma_v, kaddr, vaddr, kv_init
import copy

def qk(bw, kt, s, qs, c0=None):
    D = Sreg(bw, qs, kt)
    C = (vr(NM + qs * 4, 4) if c0 is None else c0) if s == 0 else vr(D, 4)
    return f"{MF} {vr(D,4)}, {ar(Kf(kt,s),4)}, {vr(Qf(qs,s),4)}, {C}"
def pv(pr, T, qs):
    O = Oacc(T, qs)
    return f"{MF} {ar(O,4)}, {ar(Vf(T),4)}, {vr(Preg(pr,qs),4)}, {ar(O,4)}"
def smf(pr, h): return f"{SMF} {ar(AL+h*4,4)}, {ar(AONE,4)}, {vr(Preg(pr,2*h),8)}, v{SIDX}"
def kld(blk, i): return f"ds_read_b128 {ar(Kf(i>>2,i&3),4)}, v{KA+(i&3)} offset:{kaddr(blk) + (i>>2)*4096}"
def vld(blk, T, j): return f"ds_read_b64_tr_b16 {ar(Vf(T)+2*j,2)}, v{VA+T} offset:{vaddr(blk) + j*4096}"

def step_mf(u, do_qk=True, do_pv=True):
    bw = (u + 1) & 1; pr = (u + 1) & 1
    mf = []; fr = []
    for i in range(8):
        if do_qk:
            kt, qs = i >> 2, i & 3
            for s in range(4):
                mf.append(qk(bw, kt, s, qs))
                if qs == 3: fr.append((len(mf) - 1, "K", kt * 4 + s))
        if do_pv:
            for qs in range(4): mf.append(pv(pr, i, qs))
            fr.append((len(mf) - 1, "V", i))
            if (i & 3) == 1: mf.append(smf(pr, i >> 2))
    return mf, fr

def emit_step(em, u, do_qk=True, do_pv=True, ld_k=True, vm=(), post=(), bar=False, hook=None, nxt=None, vmspan=None):
    br = u & 1
    mf, fr = step_mf(u, do_qk, do_pv)
    n = len(mf)
    BG = OPT["barg"]
    lo = BG + 1 if bar else 0
    dsl = []
    for g, kind, i in fr:
        if kind == "K" and ld_k: dsl.append((g, kld(u + 2, i)))
        if kind == "V": dsl += [(g, vld(u, i, 0)), (g, vld(u, i, 1))]
    if not do_pv:
        for i in range(8): dsl += [((i * n) // 10, vld(u, i, j)) for j in range(2)]
    dsl.sort(key=lambda x: x[0])
    st = {"ds": [It("ds", t, at=max(g, lo)) for g, t in dsl]}
    vm = list(vm)
    nv = sum(1 for x in vm if x.kind == "vm"); k = 0
    for x in vm:
        x.at = lo + 1 + (k * ((vmspan or n) - 4 - lo)) // max(nv, 1)
        if x.kind == "vm": k += 1
    st["vm"] = vm
    st["post"] = [It("s", t, at=n - 2 - len(post) + k) for k, t in enumerate(post)]
    budget = 8 if n > 40 else 16
    ex = [(x * (n - 4)) // 32 for x in range(32)]
    st["exp"] = [It("x", f"v_exp_f32 v{S0+br*32+x}, v{S0+br*32+x}", at=ex[x]) for x in range(32)]
    est = [ex[2 * j + 1] + 1 for j in range(16)]
    for itn in range(30):
        st["cvt"] = [It("v", f"v_cvt_pk_bf16_f32 v{P0+br*16+j}, v{S0+br*32+2*j}, v{S0+br*32+2*j+1}", at=est[j]) for j in range(16)]
        packed = pack(n, st, ["exp", "vm", "ds", "cvt", "post"], budget=budget)
        eg = [g for g, items in enumerate(packed) for it in items if it.kind == "x"]
        new = [eg[2 * j + 1] + 1 for j in range(16)]
        if all(a <= b for a, b in zip(new, est)): break
        est = [max(a, b) for a, b in zip(new, est)]
    else: raise RuntimeError("no fixpoint")
    assert not any(it.kind == "x" for it in packed[n])
    em.c(f"--- step {u}")
    if bar:
        emit_packed(em, mf[:BG + 1], packed[:BG + 1] + [[]], None)
        em.ds_all("vmcnt(0)")
        em.e("s_barrier")
        if hook: hook(em)
        emit_packed(em, mf[BG + 1:], packed[BG + 1:], nxt)
    else:
        emit_packed(em, mf, packed, nxt)

def rowmax_groups(em, v, t):
    e = em.e
    e(f"v_mov_b32 v{t}, v{v}\ns_nop 1\nv_permlane16_swap_b32 v{v}, v{t}\nv_max_f32 v{v}, v{v}, v{t}")
    e(f"v_mov_b32 v{t}, v{v}\ns_nop 1\nv_permlane32_swap_b32 v{v}, v{t}\nv_max_f32 v{v}, v{v}, v{t}")

def emit_pre(em):
    e = em.e
    em.label("K_PRE")
    for qs in range(4):
        for kt in range(2):
            for s in range(4):
                em.mfma(qk(0, kt, s, qs, c0="0"))
                if qs == 3: em.dsr(kld(1, kt * 4 + s))
    e(f"s_cmp_eq_u32 s{S_PASS}, 0\ns_cbranch_scc0 K_HAVEMAX")
    for qs in range(4):
        b = S0 + qs * 8; m = NM + 4 * qs
        e(f"v_max3_f32 v{m}, v{b}, v{b+1}, v{b+2}\nv_max3_f32 v{m}, v{m}, v{b+3}, v{b+4}\nv_max3_f32 v{m}, v{m}, v{b+5}, v{b+6}\nv_max_f32 v{m}, v{m}, v{b+7}")
        e(f"v_mov_b32 v{m+1}, v{m}")
    for op in ("v_permlane16_swap_b32", "v_permlane32_swap_b32"):
        for qs in range(4): e(f"{op} v{NM+4*qs}, v{NM+4*qs+1}")
        for qs in range(4):
            m = NM + 4 * qs
            e(f"v_max_f32 v{m}, v{m}, v{m+1}")
            if "16" in op: e(f"v_mov_b32 v{m+1}, v{m}")
    for qs in range(4):
        m = NM + 4 * qs
        for r in (3, 2, 1, 0): e(f"v_sub_f32 v{m+r}, 0, v{m}")
    em.label("K_HAVEMAX")
    e("s_nop 3")
    for qs in range(4):
        for x in range(0, 8, 2):
            e(f"v_pk_add_f32 {vr(S0+qs*8+x,2)}, {vr(S0+qs*8+x,2)}, {vr(NM+qs*4,2)}")

def period_dma(p):
    its = dma_v(LDS_V + vaddr(4 * p + 4)) + dma_k(kaddr(4 * p + 6)) + dma_v(LDS_V + vaddr(4 * p + 6)) + dma_k(kaddr(4 * p + 8))
    ns = OPT["dmasteps"]
    per = [[] for _ in range(4)]
    k = 0
    for x in its:
        per[min((k * ns) // 16, ns - 1)].append(x)
        if x.kind == "vm": k += 1
    return per

def snap(em): return (em.ds, em.ds_done, dict(em.ldmap))
def restore(em, s): em.ds, em.ds_done, em.ldmap = s[0], s[1], dict(s[2])

def emit_loop(em, side_hook, last_vm):
    e = em.e
    first = lambda u: step_mf(u)[0][0]
    emit_step(em, 0, do_pv=False, vm=period_dma(0)[0], bar=True)
    em.ds_all()
    e(f"s_mov_b32 s{S_LOOP}, 0")
    keep = em.L; em.L = []
    emit_step(em, 7, vm=period_dma(1)[3]); emit_step(em, 8, vm=period_dma(2)[0], bar=True, nxt=first(9))
    em.L = keep
    e(".p2align 6")
    em.label("K_LOOP")
    for b in (1, 2, 3, 4, 5, 6, 7, 8):
        u = b + 8
        post = ()
        if b == 3: post = (f"s_add_u32 s{S_LOOP}, s{S_LOOP}, 1", f"s_cmp_eq_u32 s{S_LOOP}, 8")
        emit_step(em, u, vm=period_dma(u >> 2)[u & 3], bar=(u & 3) == 0, post=post, hook=((lambda em_, b_=b: side_hook(em_, b_)) if b in (4, 8) else None), nxt=first(u + 1))
        if b == 3:
            e("s_cbranch_scc1 K_LAST"); sv = snap(em)
    e("s_branch K_LOOP")
    restore(em, sv)
    em.label("K_LAST")
    stamp(em, "loop")
    em.vm = 0
    for u in (60, 61, 62, 63):
        emit_step(em, u, do_qk=(u < 63), ld_k=(u < 62), vm=last_vm(em, u), bar=(u == 60), nxt=(first(u + 1) if u < 62 else None))

def emit_fallback(em):
    e = em.e
    em.label("K_FB")
    e(f"s_mov_b32 s{S_PASS}, 1\ns_waitcnt vmcnt(0) lgkmcnt(0)\ns_barrier")
    for qs in range(4): e(f"v_mov_b32 v{NM+4*qs}, 0xff800000")
    e(f"s_mov_b32 s{S_KOFF}, 0\ns_mov_b32 s{S_LOOP}, 32")
    em.label("K_FBLOOP")
    em.items(dma_k(kaddr(4)))
    e("s_waitcnt vmcnt(0)\ns_barrier")
    for half in range(2):
        for i in range(8): e(kld(4 + half, i))
        e("s_waitcnt lgkmcnt(0)")
        for qs in range(4):
            for kt in range(2):
                for s in range(4): e(qk(0, kt, s, qs, c0="0"))
        e("s_nop 7")
        for qs in range(4):
            b = S0 + qs * 8; m = NM + 4 * qs
            e(f"v_max3_f32 v{m}, v{m}, v{b}, v{b+1}\nv_max3_f32 v{m}, v{m}, v{b+2}, v{b+3}\nv_max3_f32 v{m}, v{m}, v{b+4}, v{b+5}\nv_max3_f32 v{m}, v{m}, v{b+6}, v{b+7}")
    e(f"s_barrier\ns_sub_u32 s{S_LOOP}, s{S_LOOP}, 1\ns_cmp_lg_u32 s{S_LOOP}, 0\ns_cbranch_scc1 K_FBLOOP")
    for qs in range(4):
        m = NM + 4 * qs
        rowmax_groups(em, m, m + 1)
        for r in (3, 2, 1, 0): e(f"v_sub_f32 v{m+r}, 0, v{m}")
    k, v = kv_init()
    em.items(k + v)
    e(f"s_mov_b32 s{S_LOOP}, 0")
    for i in range(128): e(f"v_accvgpr_write_b32 a{AO+i}, 0")
    for i in range(8): e(f"v_accvgpr_write_b32 a{AL+i}, 0")
    e("s_waitcnt vmcnt(0)\ns_barrier")
    for i in range(8): e(kld(0, i))
    e("s_waitcnt lgkmcnt(0)\ns_branch K_PRE")
```

```python
from lib import *
MF = "v_mfma_f32_16x16x32_bf16"
SMF = "v_smfmac_f32_16x16x64_bf16"
SC = "sc0 sc1"
OPT = dict(prof=0, dump="", cpf=1, touchq=0, touchw=1, dmasteps=3, barg=5)
S0, P0, NM, Q0 = 8, 72, 136, 152
KA, VA, DK, DV, L16, SIDX = 216, 220, 228, 232, 234, 235
WO9, GO9 = 236, 245
T0V, T1V = 254, 255
QACC = 8
KEYS = 152; WQA = 184
DW = 136; DX = 144; STV = 148
LNK = 214
AO, AK, AV, AONE, AL = 0, 128, 160, 208, 248
QA_, QB_, CS_ = 128, 192, 248
QSLOT = [0, 98304, 49152]
LDS_K, LDS_V = 0, 65536
SCR = 147456
STG = 36864
SL_A, SL_B, SL_C, SL_D = 0, 49152, 49152 + STG, 49152 + 2 * STG
L_WG, L_WU, L_WD, L_WD3 = 0, 98304, 98304 + STG, STG
L_CHK, L_HX, L_YG = 46080, SL_C, STG
SRD_K, SRD_V, SRD_W, SRD_WS, SRD_X, SRD_DBG = 8, 12, 16, 20, 24, 28
SRD_SA, SRD_SB, SRD_WD, SRD_OUT, SRD_XS, SRD_FO = 56, 60, 64, 68, 72, 76
S_WAVE, S_KV, S_QB, S_KQ, S_NB = 32, 33, 34, 35, 36
S_W4K, S_KOFF, S_VOFF, S_LOOP, S_PASS = 37, 38, 39, 40, 41
S_WQO, S_XO, S_MW, S_MX = 42, 43, 44, 45
S_MX2 = 85
S_MB, S_MC, S_SC = 42, 43, 44
S_T, S_T2, S_T3 = 46, 47, 48
S_W9 = 49
S_SA, S_SB = 50, 51
S_GD = 52
S_OB = 53
S_OFL = 54
S_ROW = 55
S_SLOT = 80
S_WOO = 84
S_P = 86
S_SPIN = 100
def Sreg(b, qs, kt): return S0 + b * 32 + qs * 8 + kt * 4
def Preg(b, qs): return P0 + b * 16 + qs * 4
def Qf(qs, s): return Q0 + (qs * 4 + s) * 4
def Oacc(T, qs): return AO + (qs * 8 + T) * 4
def Kf(kt, s): return AK + (kt * 4 + s) * 4
def Vf(T): return AV + T * 4
def R4(d): return f"s[{d}:{d+3}]"
NST = [0]
STN = []
def stamp(em, name):
    if not OPT["prof"]: return
    k = NST[0]; NST[0] += 1; STN.append(name)
    em.e(f"s_memrealtime s[98:99]\ns_waitcnt lgkmcnt(0)\nv_writelane_b32 v2, s98, {k}\ns_memtime s[98:99]\ns_waitcnt lgkmcnt(0)\nv_writelane_b32 v2, s98, {k+32}")
    em.ds_done = em.ds - 1
def spin(em, n):
    em.e(f"s_sleep {n}\ns_add_u32 s{S_SPIN}, s{S_SPIN}, 1\ns_bitcmp1_b32 s{S_SPIN}, 19\ns_cbranch_scc1 K_END")
def code_prefetch(em, start, end, dst, uniq, forward):
    e = em.e
    e(f"s_getpc_b64 s[96:97]")
    em.label(f"PC_{uniq}")
    if forward: e(f"s_add_u32 s96, s96, {start}-PC_{uniq}\ns_addc_u32 s97, s97, 0")
    else: e(f"s_sub_u32 s96, s96, PC_{uniq}-{start}\ns_subb_u32 s97, s97, 0")
    e(f"s_lshr_b32 s{S_T}, s2, 3\ns_lshl_b32 s{S_T}, s{S_T}, 2\ns_add_u32 s{S_T}, s{S_T}, s{S_WAVE}")
    e(f"s_min_u32 s{S_T}, s{S_T}, (({end}-{start})>>10)-1\ns_lshl_b32 s{S_T}, s{S_T}, 10")
    e(f"v_lshlrev_b32 v7, 4, v1\nv_add_u32 v7, s{S_T}, v7")
    return em.vmem(f"global_load_dwordx4 {dst}, v7, s[96:97]")
```

```python
from defs import *

def reduce32(em, v, t):
    e = em.e
    for rot in (8, 4, 2, 1):
        e(f"s_nop 1\nv_add_f32_dpp v{t}, v{v}, v{v} row_ror:{rot} row_mask:0xf bank_mask:0xf")
        v, t = t, v
    e(f"v_mov_b32 v{t}, v{v}\ns_nop 1\nv_permlane16_swap_b32 v{v}, v{t}\nv_add_f32 v{v}, v{v}, v{t}")
def bf16r(em, d, s): em.e(f"v_cvt_pk_bf16_f32 v{d}, v{s}, v{s}\nv_lshlrev_b32 v{d}, 16, v{d}")

def q_dma(c):
    sl = QSLOT[c % 3]
    r = []
    for h in range(2):
        r.append(It("s", f"s_add_u32 m0, s{(S_MX, S_MX2)[h]}, {sl + 32768}"))
        r += [It("vm", f"buffer_load_dwordx4 v{DX+2*h+i}, {R4(SRD_X)}, s{S_XO} offen offset:{i*1024} lds", tag=("q", c)) for i in range(2)]
    r.append(It("s", f"s_add_u32 s{S_XO}, s{S_XO}, 128"))
    for h in range(2):
        r.append(It("s", f"s_add_u32 m0, s{S_MW}, {sl + h*4096}"))
        r += [It("vm", f"buffer_load_dwordx4 v{DW+4*h+i}, {R4(SRD_W)}, s{S_WQO} offen offset:{i*1024} lds", tag=("q", c)) for i in range(4)]
    r.append(It("s", f"s_add_u32 s{S_WQO}, s{S_WQO}, {64*8192}"))
    return r
def dma_k(lds, tag=None):
    return [It("s", f"s_add_u32 m0, s{S_W4K}, {lds}")] + \
           [It("vm", f"buffer_load_dwordx4 v{DK+i}, {R4(SRD_K)}, s{S_KOFF} offen offset:{i*1024} lds", tag=tag) for i in range(4)] + \
           [It("s", f"s_add_u32 s{S_KOFF}, s{S_KOFF}, 16384")]
def dma_v(lds, tag=None):
    return [It("s", f"s_add_u32 m0, s{S_W4K}, {lds}")] + \
           [It("vm", f"buffer_load_dwordx4 v{DV+(i&1)}, {R4(SRD_V)}, s{S_VOFF} offen offset:{i*1024} lds", tag=tag) for i in range(4)] + \
           [It("s", f"s_add_u32 s{S_VOFF}, s{S_VOFF}, 16384")]
def kaddr(b): return LDS_K + (((b - 2) >> 2) & 1) * 32768 + (b & 3) * 8192
def vaddr(b): return (1 - ((b >> 2) & 1)) * 32768 + (b & 3) * 8192
def kv_init():
    k = [It("s", f"s_mov_b32 s{S_KOFF}, 0")] + dma_k(kaddr(0)) + dma_k(kaddr(2)) + dma_k(kaddr(4))
    v = [It("s", f"s_mov_b32 s{S_VOFF}, 0")] + dma_v(LDS_V + vaddr(0)) + dma_v(LDS_V + vaddr(2))
    return k, v

def emit_front(em, kname):
    e = em.e
    P = S_P
    e("s_cmp_ge_u32 s2, 256\ns_cbranch_scc1 K_END")
    stamp(em, "entry")
    e(f"s_load_dwordx8 s[{P+2}:{P+9}], s[0:1], 0")
    e(f"s_load_dwordx2 s[{P}:{P+1}], s[0:1], {KA_WR}")
    e(f"s_load_dwordx4 s[4:7], s[0:1], {KA_DBG}")
    e(f"s_mov_b32 s{S_SPIN}, 0")
    e("v_and_b32 v1, 63, v0\nv_lshrrev_b32 v5, 6, v0")
    e(f"s_bfe_u32 s{S_KQ}, s2, 0x20001\ns_bfe_u32 s{S_NB}, s2, 0x20003")
    e(f"v_readfirstlane_b32 s{S_WAVE}, v5")
    e(f"s_lshl_b32 s{S_KV}, s{S_KQ}, 2\ns_add_u32 s{S_KV}, s{S_KV}, s{S_NB}")
    e(f"s_and_b32 s{S_QB}, s2, 1\ns_lshl_b32 s{S_QB}, s{S_QB}, 3\ns_lshr_b32 s{S_T}, s2, 5\ns_add_u32 s{S_QB}, s{S_QB}, s{S_T}")
    e(f"s_lshl_b32 s{S_T}, s{S_QB}, 7\ns_lshl_b32 s{S_T2}, s{S_KV}, 3\ns_add_u32 s3, s{S_T}, s{S_T2}")
    LR, LT, LO, LW = 8, 9, 10, 11
    e(f"v_lshrrev_b32 v{LR}, 5, v0\nv_add_u32 v{LR}, s3, v{LR}\nv_and_b32 v{LT}, 31, v0\nv_mul_u32_u24 v{LW}, 12, v{LT}")
    e(f"v_mul_u32_u24 v{LO}, 0x480, v{LR}\nv_add_u32 v{LO}, v{LO}, v{LW}")
    e(f"v_lshrrev_b32 v5, 3, v1\nv_and_b32 v6, 7, v1\nv_xor_b32 v6, v6, v5\nv_mul_u32_u24 v5, 0x480, v5\nv_lshl_add_u32 v{DX}, v6, 4, v5")
    e(f"v_add_u32 v{DX+1}, {9216-1024}, v{DX}\nv_add_u32 v{DX+2}, {18432}, v{DX}\nv_add_u32 v{DX+3}, {27648-1024}, v{DX}")
    e(f"s_lshl_b32 s{S_T2}, s{S_WAVE}, 5\ns_add_u32 s{S_ROW}, s{S_T}, s{S_T2}\ns_mul_i32 s{S_XO}, s{S_ROW}, 1152")
    e(f"s_lshl_b32 s{S_W4K}, s{S_WAVE}, 12\ns_lshr_b32 s{S_T}, s{S_KQ}, 1\ns_lshl_b32 s{S_T2}, s{S_T}, 11\ns_or_b32 s{S_MX}, s{S_W4K}, s{S_T2}\ns_xor_b32 s{S_MX2}, s{S_MX}, 2048")
    e(f"s_lshl_b32 s{S_T}, s{S_T}, 4\ns_add_u32 s{S_ROW}, s{S_ROW}, s{S_T}")
    e(f"v_lshrrev_b32 v5, 5, v1\nv_and_b32 v6, 31, v1\nv_lshlrev_b32 v7, 1, v5\nv_xor_b32 v6, v6, v7\nv_lshlrev_b32 v6, 4, v6\nv_lshl_add_u32 v{DW}, v5, 13, v6")
    for i in range(1, 8):
        x = (((2 * i) & 3) | (((i >> 2) & 1) << 2)) << 5
        if x: e(f"v_xor_b32 v{DW+i}, {x}, v{DW}\nv_add_u32 v{DW+i}, {i*16384 - (i&3)*1024}, v{DW+i}")
        else: e(f"v_add_u32 v{DW+i}, {i*16384 - (i&3)*1024}, v{DW}")
    e(f"s_lshl_b32 s{S_WQO}, s{S_KV}, 9\ns_lshl_b32 s{S_T}, s{S_WAVE}, 17\ns_add_u32 s{S_WQO}, s{S_WQO}, s{S_T}\ns_lshl_b32 s{S_MW}, s{S_WAVE}, 13")
    X, W, F = 12, 24, 40
    xr = [X + 4 * (i // 3) + i % 3 for i in range(9)]
    wr = [W + 4 * (i // 3) + i % 3 for i in range(9)]
    e("s_waitcnt lgkmcnt(0)")
    srd(em, SRD_X, P + 2, 2048 * 1152)
    for i in range(3): em.vmem(f"buffer_load_dwordx3 {vr(X+4*i,3)}, v{LO}, {R4(SRD_X)}, 0 offen offset:{i*384}", "lnx")
    srd(em, SRD_DBG, P, 1152)
    for i in range(3): em.vmem(f"buffer_load_dwordx3 {vr(W+4*i,3)}, v{LW}, {R4(SRD_DBG)}, 0 offen offset:{i*384}", "lnw")
    srd(em, SRD_W, P + 8, 576 * 8192)
    em.items(q_dma(0))
    if OPT["cpf"]: code_prefetch(em, kname, "K_CODE_END", "a[0:3]", "a", False)
    em.items(q_dma(1))
    stamp(em, "start")
    e(f"s_load_dwordx2 s[{SRD_OUT}:{SRD_OUT+1}], s[0:1], {KA_WO}")
    e(f"s_load_dwordx4 s[{SRD_SA}:{SRD_SA+3}], s[0:1], {KA_WG}")
    e(f"s_load_dwordx4 s[{SRD_WD}:{SRD_WD+3}], s[0:1], {KA_WD}")
    e("v_and_b32 v3, 15, v1\nv_lshrrev_b32 v4, 4, v1")
    e(f"v_lshlrev_b32 v{L16}, 4, v1")
    e(f"s_lshl_b32 s{S_T}, s{S_KV}, 19")
    srd(em, SRD_K, P + 4, 524288, add=f"s{S_T}")
    srd(em, SRD_V, P + 6, 524288, add=f"s{S_T}")
    srd(em, SRD_WS, 6, WS_SIZE)
    if OPT["touchq"]:
        e(f"s_lshr_b32 s{S_T}, s2, 3\ns_lshl_b32 s{S_T}, s{S_T}, 2\ns_add_u32 s{S_T}, s{S_T}, s{S_WAVE}")
        e(f"v_lshrrev_b32 v5, 3, v1\nv_mul_u32_u24 v5, 0x480, v5\nv_and_b32 v6, 7, v1\nv_lshl_add_u32 v5, v6, 7, v5")
        e(f"s_and_b32 s{S_T2}, s2, 1\ns_lshl_b32 s{S_T2}, s{S_T2}, 7\ns_add_u32 s{S_T2}, s{S_T2}, s{S_T}\ns_mul_i32 s{S_T2}, s{S_T2}, {8*1152}")
        em.vmem(f"buffer_load_dword a4, v5, {R4(SRD_X)}, s{S_T2} offen offset:128")
        e(f"v_lshlrev_b32 v5, 13, v4\nv_lshl_add_u32 v5, v3, 7, v5")
        e(f"s_min_u32 s{S_T}, s{S_T}, 111\ns_lshl_b32 s{S_T}, s{S_T}, 15\ns_lshl_b32 s{S_T2}, s{S_KQ}, 11\ns_add_u32 s{S_T}, s{S_T}, s{S_T2}\ns_add_u32 s{S_T}, s{S_T}, {128*8192}")
        em.vmem(f"buffer_load_dword a5, v5, {R4(SRD_W)}, s{S_T} offen")
    e(f"s_lshl_b32 s{S_T}, s{S_WAVE}, 2\nv_xor_b32 v5, s{S_T}, v4\nv_xor_b32 v5, v5, v3\nv_lshlrev_b32 v5, 4, v5\nv_lshl_add_u32 v{KA}, v3, 8, v5")
    for s in range(1, 4): e(f"v_xor_b32 v{KA+s}, {s*64}, v{KA}")
    RP, CP, RW = 60, 61, 62
    e(f"v_bfe_u32 v{RP}, v1, 2, 2\nv_and_b32 v{CP}, 3, v1\nv_lshl_add_u32 v{RW}, v4, 2, v{RP}")
    e(f"v_and_b32 v5, 7, v{RW}\nv_lshlrev_b32 v5, 5, v5\nv_lshl_add_u32 v5, v{RW}, 8, v5\nv_lshl_add_u32 v5, v{CP}, 3, v5\nv_add_u32 v{VA}, {hex(LDS_V)}, v5")
    for T in range(1, 8): e(f"v_xor_b32 v{VA+T}, {T*32}, v{VA}")
    for i in range(4):
        e(f"v_add_u32 v5, {4*i}, v4\nv_xor_b32 v5, v5, v3\nv_lshlrev_b32 v5, 4, v5\nv_lshl_add_u32 v5, v4, 8, v5\nv_add_u32 v{DK+i}, s{S_W4K}, v5")
    for i in range(2):
        e(f"v_add_u32 v5, {4*i}, v4\nv_lshlrev_b32 v5, 1, v5\nv_xor_b32 v5, v5, v3\nv_lshlrev_b32 v5, 4, v5\nv_lshl_add_u32 v5, v4, 8, v5\nv_add_u32 v{DV+i}, s{S_W4K}, v5")
    e(f"v_and_b32 v5, 1, v4\nv_lshl_add_u32 v5, v5, 2, v{RP}\ns_lshl_b32 s{S_T}, s{S_WAVE}, 1\nv_xor_b32 v5, s{S_T}, v5\nv_lshlrev_b32 v5, 5, v5")
    e(f"v_lshl_add_u32 v6, v4, 3, v{RP}\nv_lshl_add_u32 v5, v6, 9, v5\nv_lshl_add_u32 v{WQA}, v{CP}, 3, v5")
    for t in range(1, 8): e(f"v_xor_b32 v{WQA+t}, {t*32}, v{WQA}")
    e(f"v_and_b32 v5, 7, v3\nv_xor_b32 v5, v5, v4\nv_lshlrev_b32 v5, 4, v5\nv_lshl_add_u32 v5, v3, 7, v5\nv_add_u32 v5, s{S_W4K}, v5\nv_add_u32 v{WQA+8}, 0x8000, v5\nv_xor_b32 v{WQA+9}, 64, v{WQA+8}")
    for k in (1, 2):
        for t in range(10): e(f"v_add_u32 v{WQA+10*k+t}, {hex(QSLOT[k])}, v{WQA+t}")
    e(f"v_bfe_u32 v5, v1, 1, 1\nv_bfe_u32 v6, v1, 5, 1\nv_cmp_eq_u32 vcc, v5, v6\nv_mov_b32 v7, 0x3f803f80\nv_and_b32 v5, 1, v1\nv_cndmask_b32 v7, 0, v7, vcc")
    for i in range(4): e(f"v_accvgpr_write_b32 a{AONE+i}, v7")
    e(f"v_mul_u32_u24 v5, 0xaaaa, v5\nv_add_u32 v{SIDX}, 0x4444, v5")
    for i in range(8): e(f"v_accvgpr_write_b32 a{CS_+i}, 0")
    e(f"s_mov_b32 s{S_PASS}, 0\ns_mul_i32 s{S_W9}, s{S_WAVE}, 9216")
    e(f"s_lshl_b32 s{S_T}, s{S_QB}, 4\ns_add_u32 s{S_T}, s{S_T}, s{S_KV}\ns_lshl_b32 s{S_T}, s{S_T}, 2\ns_add_u32 s{S_T}, s{S_T}, s{S_WAVE}\ns_lshl_b32 s{S_OB}, s{S_T}, 14\ns_add_u32 s{S_OB}, s{S_OB}, {hex(WS_O)}")
    e(f"s_lshl_b32 s{S_T}, s{S_QB}, 2\ns_add_u32 s{S_T}, s{S_T}, s{S_KQ}\ns_lshl_b32 s{S_T}, s{S_T}, 2\ns_add_u32 s{S_T}, s{S_T}, s{S_WAVE}\ns_lshl_b32 s{S_OFL}, s{S_T}, 7\ns_add_u32 s{S_OFL}, s{S_OFL}, {hex(WS_OFL)}")
    C576, EPS, MSK = P, P + 1, P + 2
    e(f"s_mov_b32 s{C576}, 0x3ae38e39\ns_mov_b32 s{EPS}, 0x3727c5ac\ns_mov_b32 s{MSK}, 0xffff0000")
    em.wait_vm("lnx")
    for i in range(9): e(f"v_lshlrev_b32 v{F+2*i}, 16, v{xr[i]}\nv_and_b32 v{F+2*i+1}, s{MSK}, v{xr[i]}")
    A0, A1, A2, A3, A4, A5, A6 = 64, 65, 66, 67, 68, 69, 70
    e(f"v_add_f32 v{A0}, v{F}, v{F+1}\nv_add_f32 v{A1}, v{F+2}, v{F+3}")
    for i in range(4, 18, 2): e(f"v_add_f32 v{A0}, v{A0}, v{F+i}\nv_add_f32 v{A1}, v{A1}, v{F+i+1}")
    e(f"v_add_f32 v{A0}, v{A0}, v{A1}")
    reduce32(em, A0, A1)
    e(f"v_mul_f32 v{A0}, s{C576}, v{A0}")
    e(f"v_sub_f32 v{A2}, v{F}, v{A0}\nv_mul_f32 v{A1}, v{A2}, v{A2}\nv_sub_f32 v{A2}, v{F+1}, v{A0}\nv_mul_f32 v{A3}, v{A2}, v{A2}")
    for i in range(2, 18, 2):
        e(f"v_sub_f32 v{A2}, v{F+i}, v{A0}\nv_sub_f32 v{A4}, v{F+i+1}, v{A0}\nv_fmac_f32 v{A1}, v{A2}, v{A2}\nv_fmac_f32 v{A3}, v{A4}, v{A4}")
    e(f"v_add_f32 v{A1}, v{A1}, v{A3}")
    reduce32(em, A1, A2)
    e(f"v_mul_f32 v{A1}, s{C576}, v{A1}")
    bf16r(em, A0, A0); bf16r(em, A1, A1)
    e(f"v_add_f32 v{A1}, s{EPS}, v{A1}")
    bf16r(em, A1, A1)
    e(f"v_sqrt_f32 v{A1}, v{A1}\ns_nop 0")
    bf16r(em, A1, A1)
    e(f"v_rcp_f32 v{A2}, v{A1}")
    e(f"v_lshlrev_b32 v5, 3, v{LR}\nv_mov_b32 v6, 0\nv_mov_b32 v7, 0\ns_mov_b32 s{S_T}, {hex(WS_STAT)}")
    e(f"s_mov_b32 exec_lo, 1\ns_mov_b32 exec_hi, 1")
    em.vmem(f"buffer_store_dwordx2 v[{A0}:{A1}], v5, {R4(SRD_WS)}, s{S_T} offen {SC}")
    e(f"s_mov_b32 exec_hi, 0\ns_lshl_b32 s{S_T}, s{S_NB}, 3\ns_add_u32 s{S_T}, s{S_T}, s{S_OFL}")
    em.vmem(f"buffer_store_dwordx2 v[6:7], v6, {R4(SRD_WS)}, s{S_T} offen {SC}")
    e(f"s_lshl_b32 s{S_T}, s{S_QB}, 2\ns_add_u32 s{S_T}, s{S_T}, s{S_NB}\ns_lshl_b32 s{S_T}, s{S_T}, 2\ns_add_u32 s{S_T}, s{S_T}, s{S_WAVE}\ns_lshl_b32 s{S_T}, s{S_T}, 5\ns_add_u32 s{S_T}, s{S_T}, s{S_KQ}\ns_lshl_b32 s{S_T}, s{S_T}, 2\ns_add_u32 s{S_T}, s{S_T}, {hex(WS_XFL)}")
    em.vmem(f"buffer_store_dword v6, v6, {R4(SRD_WS)}, s{S_T} offen {SC}")
    e("s_mov_b64 exec, -1")
    e(f"v_mov_b32 v{A3}, 0")
    em.wait_vm("lnw")
    for i in range(9):
        a, b = F + 2 * i, F + 2 * i + 1
        e(f"v_sub_f32 v{a}, v{a}, v{A0}\nv_sub_f32 v{b}, v{b}, v{A0}")
        e(f"v_cvt_pk_bf16_f32 v{A4}, v{a}, v{b}")
        e(f"v_lshlrev_b32 v{a}, 16, v{A4}\nv_and_b32 v{b}, s{MSK}, v{A4}")
        e(f"v_mul_f32 v{A5}, v{a}, v{A2}\nv_mul_f32 v{A6}, v{b}, v{A2}")
        e(f"v_fma_f32 v{a}, -v{A5}, v{A1}, v{a}\nv_fma_f32 v{b}, -v{A6}, v{A1}, v{b}")
        e(f"v_fmac_f32 v{A5}, v{a}, v{A2}\nv_fmac_f32 v{A6}, v{b}, v{A2}")
        e(f"v_cvt_pk_bf16_f32 v{xr[i]}, v{A5}, v{A6}")
        e(f"v_dot2_f32_bf16 v{A3}, v{xr[i]}, v{wr[i]}, v{A3}")
        if i % 3 == 2: em.vmem(f"buffer_store_dwordx3 {vr(X+4*(i//3),3)}, v{LO}, {R4(SRD_WS)}, 0 offen offset:{(i//3)*384} {SC}")
    e("s_nop 1")
    reduce32(em, A3, A2)
    e(f"v_cvt_pk_bf16_f32 v{A3}, v{A3}, v{A3}\nv_ashrrev_i32 v{A2}, 31, v{A3}\nv_or_b32 v{A2}, 0x80000000, v{A2}\nv_xor_b32 v{A3}, v{A3}, v{A2}")
    e(f"v_sub_u32 v{A2}, 2047, v{LR}\nv_and_or_b32 v{LNK}, v{A3}, s{MSK}, v{A2}")
    e(f"v_lshlrev_b32 v5, 2, v{LR}\ns_mov_b32 s{S_T}, {hex(WS_KEY)}\ns_mov_b32 exec_lo, 1\ns_mov_b32 exec_hi, 1")
    em.vmem(f"buffer_store_dword v{LNK}, v5, {R4(SRD_WS)}, s{S_T} offen {SC}", "lnst")
    e("s_mov_b64 exec, -1")
    em.items(q_dma(2))
    srd(em, SRD_DBG, 4, 256)
    e("s_waitcnt lgkmcnt(0)")
    e(f"s_mov_b32 s{S_T2}, 3641")
    for i in range(9):
        e(f"v_add_u32 v5, {64*i}, v1\nv_mul_u32_u24 v6, s{S_T2}, v5\nv_lshrrev_b32 v6, 16, v6\nv_mul_u32_u24 v7, 18, v6\nv_sub_u32 v5, v5, v7\nv_mul_u32_u24 v6, 0x480, v6\nv_lshl_add_u32 v{WO9+i}, v5, 4, v6")
        if i & 3: e(f"v_subrev_u32 v{WO9+i}, {(i&3)*1024}, v{WO9+i}")
    e(f"s_cmp_lt_u32 s2, 144\ns_cselect_b32 s{S_GD}, 1, 0")
    e(f"s_mul_i32 s{S_WOO}, s{S_WAVE}, {32*1152}\ns_mul_i32 s{S_T}, s{S_NB}, 288\ns_add_u32 s{S_WOO}, s{S_WOO}, s{S_T}\ns_mul_i32 s{S_T}, s{S_KQ}, {1024*1152}\ns_add_u32 s{S_WOO}, s{S_WOO}, s{S_T}")
    e(f"s_mov_b64 s[{P}:{P+1}], s[{SRD_OUT}:{SRD_OUT+1}]\ns_mov_b64 s[{P+2}:{P+3}], s[{SRD_SA}:{SRD_SA+1}]\ns_mov_b64 s[{P+4}:{P+5}], s[{SRD_SA+2}:{SRD_SA+3}]\ns_mov_b64 s[{P+8}:{P+9}], s[{SRD_WD+2}:{SRD_WD+3}]")
    srd(em, SRD_WD, SRD_WD, 4608 * 1152)
    srd(em, SRD_OUT, P + 8, 2048 * 1152)
    srd(em, SRD_XS, 6, 0)
    srd(em, SRD_FO, 6, 0)
    e(f"s_cmp_lg_u32 s{S_GD}, 0\ns_cbranch_scc1 K_SETGD")
    srd(em, SRD_SA, P, 4096 * 1152)
    srd(em, SRD_SB, P, 4096 * 1152)
    for i in range(9): e(f"v_mov_b32 v{GO9+i}, v{WO9+i}")
    e(f"s_mul_i32 s{S_SA}, s{S_NB}, {256*1152}\ns_add_u32 s{S_SA}, s{S_SA}, s{S_WOO}\ns_add_u32 s{S_SB}, s{S_SA}, {128*1152}")
    for k, sl in enumerate((SL_A, SL_D, SL_B, SL_C)): e(f"s_mov_b32 s{S_SLOT+k}, {sl}")
    e("s_branch K_SETDONE")
    em.label("K_SETGD")
    srd(em, SRD_SA, P + 2, 576 * 9216)
    srd(em, SRD_SB, P + 4, 576 * 9216)
    e(f"s_mov_b32 s{SRD_XS+2}, {hex(WS_STAT)}")
    e(f"v_lshrrev_b32 v5, 2, v1\nv_mul_u32_u24 v5, 0x2400, v5\nv_lshl_add_u32 v{GO9}, v{CP}, 4, v5")
    for i in range(1, 9): e(f"v_add_u32 v{GO9+i}, {i*16*9216 - (i&3)*1024}, v{GO9}")
    e(f"s_and_b32 s{S_T}, s2, 7\ns_mul_i32 s{S_T}, s{S_T}, 18\ns_lshr_b32 s{S_T2}, s2, 3\ns_add_u32 s{S_GD}, s{S_T}, s{S_T2}")
    e(f"s_lshl_b32 s{S_SA}, s{S_GD}, 6\ns_mul_i32 s{S_T}, s{S_WAVE}, {144*9216}\ns_add_u32 s{S_SA}, s{S_SA}, s{S_T}\ns_mov_b32 s{S_SB}, s{S_SA}")
    e(f"s_add_u32 s{S_GD}, s{S_GD}, 1")
    for k, sl in enumerate((SL_B, SL_A, SL_C, SL_D)): e(f"s_mov_b32 s{S_SLOT+k}, {sl}")
    em.label("K_SETDONE")
    stamp(em, "ln")

def emit_qproj(em):
    e = em.e
    def aset(tau): return QA_ + tau * 4
    def bset(ks, lam): return QB_ + ((ks & 1) * 2 + lam) * 4
    def a_ld(ks, tau):
        c, s = ks >> 1, ks & 1
        return [f"ds_read_b64_tr_b16 {ar(aset(tau)+2*j,2)}, v{WQA+10*(c%3)+(tau&7)} offset:{s*16384 + j*2048 + (tau>>3)*256}" for j in range(2)]
    def b_ld(ks, lam):
        c, s = ks >> 1, ks & 1
        return f"ds_read_b128 {ar(bset(ks,lam),4)}, v{WQA+10*(c%3)+8+s} offset:{lam*2048}"
    kin, vin = kv_init()
    em.wait_vm(("q", 0))
    e("s_barrier")
    for lam in range(2): em.dsr(b_ld(0, lam))
    for tau in range(16):
        for t in a_ld(0, tau): em.dsr(t)
    zero = [It("v", f"v_accvgpr_write_b32 a{AO+i}, 0") for i in range(128)]
    pend = []
    BG = 6
    order = [0, 1, 8, 9] + [t for t in range(16) if t not in (0, 1, 8, 9)]
    def mflist(ks):
        mf = []; fr = {}
        for tau in order:
            for lam in range(2):
                acc = QACC + (tau * 2 + lam) * 4
                mf.append(f"{MF} {vr(acc,4)}, {ar(aset(tau),4)}, {ar(bset(ks,lam),4)}, {'0' if ks == 0 else vr(acc,4)}")
            if tau in (1, 9):
                mf.append(f"{SMF} {ar(CS_+4*(tau>>3),4)}, {ar(AONE,4)}, {ar(aset(tau-1),8)}, v{SIDX}")
                fr[tau - 1] = len(mf) - 1
            if tau not in (0, 8): fr[tau] = len(mf) - 1
        return mf, fr
    for ks in range(18):
        c, s = ks >> 1, ks & 1
        mf, fr = mflist(ks)
        n = len(mf)
        st = {}
        lo = 0
        bar = (s == 1 and c < 8)
        if bar: lo = BG + 1
        ds = []
        if ks + 1 < 18:
            ds += [It("ds", b_ld(ks + 1, lam), at=lo) for lam in range(2)]
            for tau in order: ds += [It("ds", t, at=max(lo, fr[tau])) for t in a_ld(ks + 1, tau)]
        st["ds"] = ds
        if bar:
            new = []
            if c + 3 < 9: new = q_dma(c + 3)
            elif c == 6: new = kin
            elif c == 7: new = vin
            assert not pend
            pend = new
        nv = sum(1 for x in pend if x.kind == "vm")
        take = nv if not bar else (nv * 5) // 12
        cur = []; k = 0
        while pend and (k < take or pend[0].kind == "s" and not bar):
            x = pend.pop(0); cur.append(x)
            if x.kind == "vm": k += 1
        k = 0
        for x in cur:
            x.at = lo + (k * (n - 2 - lo)) // max(take, 1)
            if x.kind == "vm": k += 1
        st["dma"] = cur
        side = []
        if ks == 11: side = [It("vm", f"buffer_load_dword v{T0V}, v{T1V}, {R4(SRD_DBG)}, 0 offen {SC}", at=lo, tag="cnt")]
        if ks == 10: side = [It("v", f"v_lshlrev_b32 v{T1V}, 4, v3")]
        st["side"] = side
        if 2 <= ks and zero:
            st["zero"] = zero[:16]; zero = zero[16:]
        if ks == 13: emit_cnt_check(em)
        if ks == 17: emit_rank(em)
        packed = pack(n, st, ["dma", "side", "ds", "zero"], reserve=({BG: 8} if bar else None))
        if bar:
            txt = f"s_waitcnt vmcnt(@{c+1}) lgkmcnt(0)"
            packed[BG] = [It("bar", c)] + [x for x in packed[BG]]
        nxt = mflist(ks + 1)[0][0] if ks + 1 < 18 else None
        emit_packed_bar(em, mf, packed, nxt)
    assert not zero and not pend

def emit_packed_bar(em, mf, packed, nxt):
    n = len(mf)
    cut = [g for g in range(n) if packed[g] and packed[g][0].kind == "bar"]
    if not cut: return emit_packed(em, mf, packed, nxt)
    g = cut[0]; c = packed[g][0].text
    emit_packed(em, mf[:g + 1], packed[:g] + [[], []], None)
    need = em.tags[("q", c + 1)]
    if c == 0: need = max(need, em.tags["lnst"])
    em.ds_all(f"vmcnt({em.vm_n(need)})")
    em.e("s_barrier")
    if c == 0:
        em.e(f"s_cmp_lg_u32 s{S_WAVE}, 0\ns_cbranch_scc1 K_NOPUB")
        em.e(f"v_mov_b32 v{T0V}, 0\nv_mov_b32 v{T1V}, 1\ns_lshl_b32 s{S_T}, s{S_QB}, 4\ns_mov_b64 exec, 1")
        em.e(f"buffer_atomic_add v{T1V}, v{T0V}, {R4(SRD_DBG)}, s{S_T} offen sc1\ns_mov_b64 exec, -1")
        em.label("K_NOPUB")
    em.items(packed[g][1:])
    emit_packed(em, mf[g + 1:], packed[g + 1:], nxt)

def emit_cnt_check(em):
    e = em.e
    em.wait_vm("cnt")
    e(f"v_cmp_ne_u32 vcc, 16, v{T0V}\ns_cbranch_vccz K_CNTOK")
    em.label("K_CNTSPIN")
    spin(em, 2)
    e(f"buffer_load_dword v{T0V}, v{T1V}, {R4(SRD_DBG)}, 0 offen {SC}\ns_waitcnt vmcnt(0)\nv_cmp_ne_u32 vcc, 16, v{T0V}\ns_cbranch_vccnz K_CNTSPIN")
    em.label("K_CNTOK")
    e(f"s_mov_b32 s{S_T}, {hex(WS_KEY)}\ns_mov_b32 s{S_T2}, {hex(WS_KEY+4096)}")
    for i in range(8): em.vmem(f"buffer_load_dwordx4 {vr(KEYS+4*i,4)}, v{L16}, {R4(SRD_WS)}, s{(S_T, S_T2)[i>>2]} offen offset:{(i&3)*1024} {SC}", "keys")
    e(f"v_lshlrev_b32 v{T1V}, 3, v3\ns_lshl_b32 s{S_T}, s{S_ROW}, 3\ns_add_u32 s{S_T}, s{S_T}, {hex(WS_STAT)}\ns_xor_b32 s{S_T2}, s{S_T}, 128")
    em.vmem(f"buffer_load_dwordx2 {vr(STV,2)}, v{T1V}, {R4(SRD_WS)}, s{S_T} offen {SC}")
    em.vmem(f"buffer_load_dwordx2 {vr(STV+2,2)}, v{T1V}, {R4(SRD_WS)}, s{S_T2} offen {SC}", "stat")

def emit_rank(em):
    e = em.e
    em.wait_vm("stat")
    e(f"v_readlane_b32 s{S_T}, v{LNK}, 0\nv_readlane_b32 s{S_T2}, v{LNK}, 32")
    e(f"v_max3_u32 v{T0V}, v{KEYS}, v{KEYS+1}, v{KEYS+2}")
    for i in range(3, 31, 2): e(f"v_max3_u32 v{T0V}, v{T0V}, v{KEYS+i}, v{KEYS+i+1}")
    e(f"v_max_u32 v{T0V}, v{T0V}, v{KEYS+31}\ns_max_u32 s{S_T3}, s{S_T}, s{S_T2}")
    e(f"v_cmp_lt_u32 vcc, s{S_T3}, v{T0V}\ns_bcnt1_i32_b64 s{S_T3}, vcc\ns_cmp_lt_u32 s{S_T3}, 8\ns_cbranch_scc1 K_RANK")
    em.label("K_RANKED")

def emit_rank_slow(em):
    e = em.e
    em.label("K_RANK")
    e(f"s_mov_b32 s{S_P+6}, 2")
    em.label("K_RANK1")
    e(f"s_mov_b32 s{S_T3}, 0")
    for i in range(32):
        e(f"v_cmp_lt_u32 vcc, s{S_T}, v{KEYS+i}\ns_bcnt1_i32_b64 s{S_P+7}, vcc\ns_add_u32 s{S_T3}, s{S_T3}, s{S_P+7}")
    e(f"s_cmp_lt_u32 s{S_T3}, 8\ns_cbranch_scc0 K_RANK2")
    e(f"s_and_b32 s{S_P+7}, s{S_T}, 0xffff\ns_sub_u32 s{S_P+7}, 2048, s{S_P+7}")
    e(f"s_ashr_i32 s{S_P+8}, s{S_T}, 31\ns_not_b32 s{S_P+8}, s{S_P+8}\ns_or_b32 s{S_P+8}, s{S_P+8}, 0x80000000\ns_xor_b32 s{S_P+8}, s{S_P+8}, s{S_T}\ns_and_b32 s{S_P+8}, s{S_P+8}, 0xffff0000")
    e(f"v_mov_b32 v7, s{S_P+8}\nv_mul_f32 v7, 0xbfb8aa3b, v7\nv_exp_f32 v7, v7\ns_nop 0\nv_add_f32 v7, 1.0, v7\nv_rcp_f32 v7, v7\ns_nop 0")
    e(f"v_cvt_pk_bf16_f32 v7, v7, v7\nv_lshlrev_b32 v7, 16, v7\nv_mov_b32 v6, s{S_P+7}\nv_mov_b32 v5, 0\ns_lshl_b32 s{S_T3}, s{S_T3}, 4\ns_mov_b64 exec, 1")
    e(f"buffer_store_dwordx2 v[6:7], v5, {R4(SRD_DBG)}, s{S_T3} offen offset:8 {SC}\ns_mov_b64 exec, -1")
    em.label("K_RANK2")
    e(f"s_mov_b32 s{S_T}, s{S_T2}\ns_sub_u32 s{S_P+6}, s{S_P+6}, 1\ns_cmp_lg_u32 s{S_P+6}, 0\ns_cbranch_scc1 K_RANK1\ns_branch K_RANKED")

def emit_qfin(em):
    e = em.e
    c = f2u(128 ** -0.5 * 1.4426950408889634)
    CB = 136
    e(f"v_rcp_f32 v{STV+1}, v{STV+1}\nv_rcp_f32 v{STV+3}, v{STV+3}\nv_sub_f32 v{STV}, 0, v{STV}\nv_sub_f32 v{STV+2}, 0, v{STV+2}")
    e(f"v_mul_f32 v{STV+1}, {hex(c)}, v{STV+1}\nv_mul_f32 v{STV+3}, {hex(c)}, v{STV+3}")
    for i in range(8): e(f"v_accvgpr_read_b32 v{Q0+i}, a{CS_+i}")
    for i in range(4): e(f"v_add_f32 v{Q0+2*i}, v{Q0+2*i}, v{Q0+2*i+1}")
    e(f"s_lshl_b32 s{S_T}, s{S_WAVE}, 7\ns_add_u32 s{S_T}, s{S_T}, {SCR}\nv_lshl_add_u32 v5, v3, 2, s{S_T}")
    for i in range(4): em.dsw(f"ds_write_b32 v5, v{Q0+2*i} offset:{(i>>1)*512 + (i&1)*64}")
    e(f"v_lshl_add_u32 v5, v4, 4, s{S_T}")
    for s in range(1, 4): e(f"v_xor_b32 v{(5,6,7,T0V)[s]}, {s*128}, v5")
    em.ds_all("vmcnt(0)")
    e("s_barrier")
    def cs_ld(tau): return f"ds_read_b128 {vr(CB+(tau%3)*4,4)}, v{(5,6,7,T0V)[(tau>>1)&3]} offset:{(tau>>3)*512 + (tau&1)*64}"
    em.dsr(cs_ld(0)); em.dsr(cs_ld(1))
    for i in range(8):
        kt, s = i >> 2, i & 3
        em.dsr(f"ds_read_b128 {ar(Kf(kt,s),4)}, v{KA+s} offset:{kaddr(0) + kt*4096}")
    for i in range(8): e(f"v_accvgpr_write_b32 a{AL+i}, 0")
    for tau in range(16):
        hh, s, half = tau >> 3, (tau >> 1) & 3, tau & 1
        if tau + 2 < 16: em.dsr(cs_ld(tau + 2))
        cb = CB + (tau % 3) * 4
        em.need(regs_of(vr(cb, 4)), loose=15)
        for lam in range(2):
            acc = QACC + (tau * 2 + lam) * 4
            st = vr(STV + 2 * lam, 2)
            for k in range(2): e(f"v_pk_fma_f32 {vr(acc+2*k,2)}, {vr(cb+2*k,2)}, {st}, {vr(acc+2*k,2)} op_sel:[0,0,0] op_sel_hi:[1,0,1]")
            for k in range(2): e(f"v_pk_mul_f32 {vr(acc+2*k,2)}, {vr(acc+2*k,2)}, {st} op_sel:[0,1] op_sel_hi:[1,1]")
            q = Qf(hh * 2 + lam, s) + 2 * half
            e(f"v_cvt_pk_bf16_f32 v{q}, v{acc}, v{acc+1}\nv_cvt_pk_bf16_f32 v{q+1}, v{acc+2}, v{acc+3}")
        if half == 1:
            e("s_nop 0")
            for lam in range(2):
                q = Qf(hh * 2 + lam, s)
                e(f"v_permlane32_swap_b32 v{q}, v{q+2}\nv_permlane32_swap_b32 v{q+1}, v{q+3}")
            e("s_nop 0") if False else None
            for lam in range(2):
                q = Qf(hh * 2 + lam, s)
                e(f"v_permlane16_swap_b32 v{q}, v{q+2}\nv_permlane16_swap_b32 v{q+1}, v{q+3}")
```

```python
import re, struct

def f2u(f): return struct.unpack("<I", struct.pack("<f", f))[0]
def vr(a, n=1): return f"v{a}" if n == 1 else f"v[{a}:{a+n-1}]"
def ar(a, n=1): return f"a{a}" if n == 1 else f"a[{a}:{a+n-1}]"
def sr(a, n=1): return f"s{a}" if n == 1 else f"s[{a}:{a+n-1}]"
def regs_of(op):
    op = op.strip()
    m = re.fullmatch(r"([av])\[(\d+):(\d+)\]", op)
    if m: return [m.group(1) + str(r) for r in range(int(m.group(2)), int(m.group(3)) + 1)]
    m = re.fullmatch(r"([av])(\d+)", op)
    if m: return [op]
    return []

class It:
    def __init__(self, kind, text, at=0, tag=None, needs=(), after_vm=None):
        self.kind, self.text, self.at, self.tag, self.needs, self.after_vm = kind, text, at, tag, list(needs), after_vm
    def cost(self): return {"s": 4, "ds": 4, "vm": 8, "v": 4, "x": 8}[self.kind]

class Em:
    def __init__(self):
        self.L = []
        self.vm = 0
        self.ds = 0
        self.ds_done = -1
        self.ldmap = {}
        self.tags = {}
        self.stat = {}
    def e(self, s):
        for line in s.split("\n"):
            line = line.strip()
            if line: self.L.append(line)
    def c(self, s): self.L.append("; " + s)
    def label(self, n): self.L.append(n + ":")
    def vmem(self, s, tag=None):
        self.e(s); self.vm += 1
        if tag is not None: self.tags[tag] = self.vm - 1
        return self.vm - 1
    def dsw(self, s):
        self.e(s); self.ds += 1; return self.ds - 1
    def dsr(self, s):
        dst = s.split(None, 1)[1].split(",")[0]
        idx = self.dsw(s)
        for r in regs_of(dst): self.ldmap[r] = idx
        return idx
    def ds_all(self, extra=""):
        self.e("s_waitcnt " + (extra + " " if extra else "") + "lgkmcnt(0)"); self.ds_done = self.ds - 1
    def need_n(self, regs):
        idx = max([self.ldmap.get(r, -1) for r in regs] + [-1])
        return None if idx <= self.ds_done else self.ds - 1 - idx
    def need(self, regs, loose=6):
        n = self.need_n(regs)
        if n is None: return False
        n = min(n, loose)
        self.e(f"s_waitcnt lgkmcnt({n})"); self.ds_done = self.ds - 1 - n
        return True
    def vm_n(self, tag):
        idx = self.tags[tag] if not isinstance(tag, int) else tag
        n = self.vm - 1 - idx
        assert n >= 0
        return min(n, 63)
    def wait_vm(self, tag): self.e(f"s_waitcnt vmcnt({self.vm_n(tag)})")
    def item(self, it):
        if it.needs: self.need(it.needs)
        if it.after_vm is not None: self.wait_vm(it.after_vm)
        if it.kind == "ds":
            if it.text.startswith("ds_read"): self.dsr(it.text)
            else: self.dsw(it.text)
        elif it.kind == "vm": self.vmem(it.text, it.tag)
        else: self.e(it.text)
    def items(self, its):
        prev = None
        for it in its:
            if it.kind == "vm" and " lds" in it.text and prev is not None and prev.kind == "s" and " m0," in prev.text: self.e("s_nop 0")
            self.item(it); prev = it
    @staticmethod
    def mf_srcs(s):
        ops = s.split(None, 1)[1].split(",")
        return regs_of(ops[1]) + regs_of(ops[2])
    def mfma(self, s):
        self.need(self.mf_srcs(s)); self.e(s)
    def text(self): return "\n".join(self.L) + "\n"

def pack(n, streams, prio, budget=8, reserve=None):
    out = [[] for _ in range(n + 1)]
    pos = {s: 0 for s in streams}
    lastm0 = {}
    for g in range(n + 1):
        used = (reserve or {}).get(g, 0); sfree = True
        b = budget if g < n else 10 ** 6
        prog = True
        while prog:
            prog = False
            for s in prio:
                if s not in streams or pos[s] >= len(streams[s]): continue
                it = streams[s][pos[s]]
                if it.at > g: continue
                if it.kind == "s":
                    same = any(x in streams[s] and x.kind != "s" for x in out[g])
                    if g < n and (not sfree or same): continue
                    sfree = False
                    if " m0," in it.text: lastm0[s] = g
                else:
                    if used + it.cost() > b: continue
                    if it.kind == "vm" and " lds" in it.text and lastm0.get(s, -9) == g and g < n: continue
                    used += it.cost()
                out[g].append(it); pos[s] += 1; prog = True
                break
    for s in streams: assert pos[s] == len(streams[s]), s
    order = {"s": 0, "ds": 1, "vm": 1, "v": 2, "x": 3}
    return [sorted(g, key=lambda it: order[it.kind]) for g in out[:n]] + [out[n]]

def emit_packed(em, mf, packed, nxt=None):
    n = len(mf)
    for g in range(n):
        em.mfma(mf[g])
        look = mf[g + 1] if g + 1 < n else nxt
        if look is not None:
            has_s = any(it.kind == "s" for it in packed[g])
            w = em.need(Em.mf_srcs(look))
            if not w and not has_s and g + 2 < n and any(it.kind == "s" for it in packed[g + 1]):
                nn = em.need_n(Em.mf_srcs(mf[g + 2]))
                if nn is not None and nn >= 4: em.need(Em.mf_srcs(mf[g + 2]))
        em.items(packed[g])
    em.items(packed[n])
    em.stat["left"] = em.stat.get("left", 0) + len(packed[n])

def srd(em, d, lo, size, add=None):
    if add is None:
        em.e(f"s_mov_b32 s{d}, s{lo}\ns_and_b32 s{d+1}, s{lo+1}, 0xffff")
    else:
        em.e(f"s_add_u32 s{d}, s{lo}, {add}\ns_addc_u32 s{d+1}, s{lo+1}, 0\ns_and_b32 s{d+1}, s{d+1}, 0xffff")
    em.e(f"s_mov_b32 s{d+2}, {size if isinstance(size, str) else hex(size)}\ns_mov_b32 s{d+3}, 0x00020000")

KA_X, KA_K, KA_V, KA_WQ, KA_WO, KA_BX, KA_WR, KA_WG, KA_WU, KA_WD, KA_OUT, KA_DBG, KA_WS = [8 * i for i in range(13)]
WS_XN = 0x0
WS_STAT = 0x240000
WS_KEY = 0x244000
WS_OFL = 0x250000
WS_XFL = 0x258000
WS_O = 0x400000
WS_XB = 0x1400000
WS_YP = 0x2400000
WS_DUMP = 0x2800000
WS_PROF = 0x3800000
WS_SIZE = 0x4000000
```

```python
from defs import *
from attn import pv, smf
IDXV, RSV = T0V, T1V
def XFR(s): return vr(104 + 4 * s, 4) if s < 8 else (ar(192 + 4 * (s - 8), 4) if s < 12 else ar(212 + 4 * (s - 12), 4))
def OB(hh, ks, lam): return 8 + ((hh * 4 + ks) * 2 + lam) * 4
def FB(i, hh, ks, lam): return ((hh * 3 + i - 1) * 8 + ks * 2 + lam) * 4
def ACC(lam, j): return 72 + (lam * 9 + j) * 4
AF = 212
PA = 144
LV = 136
S_PW, S_PO = 86, 89
S_VAL = 92
S_X0, S_X1 = 93, 94
DBG_Y = 4

def dma9(srd_, vo, soff, m0base, m0imm, tag=None):
    r = []
    for i in range(9):
        if (i & 3) == 0: r.append(It("s", f"s_add_u32 m0, s{m0base}, {m0imm + (i>>2)*4096}"))
        r.append(It("vm", f"buffer_load_dwordx4 v{vo+i}, {R4(srd_)}, s{soff} offen offset:{(i&3)*1024} lds", tag=tag))
    return r

def side_hook(em, b):
    em.e(f"s_cmp_ge_u32 s{S_LOOP}, 5\ns_cbranch_scc1 K_SIDE{b}")
    em.label(f"K_SIDED{b}")
def emit_side(em):
    e = em.e
    def widx(): e(f"s_lshr_b32 s{S_T}, s2, 3\ns_lshl_b32 s{S_T}, s{S_T}, 2\ns_add_u32 s{S_T}, s{S_T}, s{S_WAVE}")
    def gu(ptr, ret):
        srd(em, SRD_FO, ptr, 576 * 9216)
        widx()
        e(f"s_lshl_b32 s{S_T}, s{S_T}, 6\nv_add_u32 v6, s{S_T}, v1\nv_mul_u32_u24 v7, 7282, v6\nv_lshrrev_b32 v7, 16, v7\nv_lshlrev_b32 v6, 7, v6\nv_mul_u32_u24 v7, {9216-1152}, v7\nv_add_u32 v6, v6, v7")
        e(f"s_and_b32 s{S_T2}, s2, 7\ns_mul_i32 s{S_T2}, s{S_T2}, 1152")
        e(f"buffer_load_dword v108, v6, {R4(SRD_FO)}, s{S_T2} offen\ns_branch {ret}")
    em.label("K_SIDE4")
    e(f"s_cmp_eq_u32 s{S_LOOP}, 6\ns_cbranch_scc1 K_SIDE4B\ns_cmp_eq_u32 s{S_LOOP}, 7\ns_cbranch_scc1 K_SIDE4C")
    if OPT["touchw"]: gu(S_P + 2, "K_SIDED4")
    else: e("s_branch K_SIDED4")
    em.label("K_SIDE4B")
    if OPT["touchw"]:
        widx()
        e(f"s_min_u32 s{S_T}, s{S_T}, 80\ns_lshl_b32 s{S_T}, s{S_T}, 13\ns_and_b32 s{S_T2}, s2, 7\ns_mul_i32 s{S_T2}, s{S_T2}, {18*36864}\ns_add_u32 s{S_T}, s{S_T}, s{S_T2}\nv_lshlrev_b32 v6, 7, v1")
        e(f"buffer_load_dword v108, v6, {R4(SRD_WD)}, s{S_T} offen")
    e("s_branch K_SIDED4")
    em.label("K_SIDE4C")
    e(f"v_and_b32 v5, 7, v1\nv_lshlrev_b32 v5, 4, v5")
    e(f"buffer_load_dwordx2 v[{IDXV}:{RSV}], v5, {R4(SRD_DBG)}, 0 offen offset:8 {SC}")
    if OPT["cpf"]: code_prefetch(em, "K_LAST", "K_CODE_END", "v[104:107]", "b", False)
    srd(em, SRD_FO, 6, 0)
    e(f"s_add_u32 s{S_MB}, s{S_W9}, {SL_D}\ns_mov_b32 s{S_MC}, 0x30000\ns_mov_b32 s{S_SC}, 0x7fff0000\ns_cmp_eq_u32 s{S_GD}, 0\ns_cbranch_scc1 K_SIDED4")
    e(f"s_add_u32 s{S_MB}, s{S_W9}, {L_WU}\ns_add_u32 s{S_MC}, s{S_W9}, {L_WD}\ns_cmp_eq_u32 s{S_WAVE}, 3\ns_cselect_b32 s{S_MC}, {L_WD3}, s{S_MC}")
    e(f"s_sub_u32 s{S_SC}, s{S_GD}, 1\ns_mul_i32 s{S_SC}, s{S_SC}, 36864\ns_add_u32 s{S_SC}, s{S_SC}, s{S_W9}\ns_branch K_SIDED4")
    em.label("K_SIDE8")
    e(f"s_cmp_eq_u32 s{S_LOOP}, 7\ns_cbranch_scc1 K_SIDED8\ns_cmp_eq_u32 s{S_LOOP}, 6\ns_cbranch_scc1 K_SIDE8B")
    if OPT["touchw"]: gu(S_P + 4, "K_SIDED8")
    else: e("s_branch K_SIDED8")
    em.label("K_SIDE8B")
    srd(em, SRD_W, S_P, 4096 * 1152)
    if OPT["touchw"]:
        widx()
        e(f"s_mul_i32 s{S_T2}, s{S_T}, {8*1152}\ns_mul_i32 s{S_T3}, s{S_KQ}, {1024*1152}\ns_add_u32 s{S_T2}, s{S_T2}, s{S_T3}")
        e(f"v_lshlrev_b32 v6, 7, v1\nv_and_b32 v7, 0x380, v6")
        e(f"buffer_load_dword v108, v6, {R4(SRD_W)}, s{S_T2} offen\ns_add_u32 s{S_T2}, s{S_T2}, 8192\nbuffer_load_dword v109, v7, {R4(SRD_W)}, s{S_T2} offen")
    e("s_branch K_SIDED8")

LASTQ = []
def last_vm(em, u):
    e = em.e
    if u == 60:
        e(f"v_cmp_eq_u32 vcc, 0, v{IDXV}\ns_cbranch_vccz K_IDXOK")
        em.label("K_IDXSPIN")
        spin(em, 4)
        e(f"buffer_load_dwordx2 v[{IDXV}:{RSV}], v5, {R4(SRD_DBG)}, 0 offen offset:8 {SC}\ns_waitcnt vmcnt(0)\nv_cmp_eq_u32 vcc, 0, v{IDXV}\ns_cbranch_vccnz K_IDXSPIN")
        em.label("K_IDXOK")
        e(f"v_subrev_u32 v6, 1, v{IDXV}\nv_mul_u32_u24 v6, 0x480, v6\nv_lshl_add_u32 v6, v4, 4, v6")
        wd = []
        for i in range(9):
            if (i & 3) == 0:
                wd.append(It("s", f"s_add_u32 m0, s{S_MC}, {(i>>2)*4096}"))
                wd.append(It("s", f"s_add_u32 s{S_T}, s{S_SC}, {(i>>2)*4096}"))
            wd.append(It("vm", f"buffer_load_dwordx4 v{L16}, {R4(SRD_WD)}, s{S_T} offen offset:{(i&3)*1024} lds"))
        LASTQ[:] = dma9(SRD_SA, GO9, S_SA, S_W9, SL_A) + dma9(SRD_SB, GO9, S_SB, S_MB, 0) + wd + \
            [It("vm", f"buffer_load_dwordx4 {XFR(s)}, v6, {R4(SRD_XS)}, 0 offen offset:{s*64} {SC}") for s in range(18)]
    take = {60: 12, 61: 13, 62: 16, 63: 4}[u]
    r = []; k = 0
    while LASTQ and k < take:
        x = LASTQ.pop(0); r.append(x)
        if x.kind == "vm": k += 1
    return r

def oflag(em, h):
    em.e(f"v_mov_b32 v5, 1\ns_lshl_b32 s{S_T}, s{S_NB}, 3\ns_add_u32 s{S_T}, s{S_T}, s{S_OFL}\ns_mov_b64 exec, 1")
    em.vmem(f"buffer_store_dword v5, v{L16}, {R4(SRD_WS)}, s{S_T} offen offset:{4*h} {SC}")
    em.e("s_mov_b64 exec, -1")

def interleave(em, mf, fill, per=2):
    fill = list(fill)
    for m in mf:
        em.mfma(m)
        for _ in range(per):
            if fill: em.e(fill.pop(0))
    for f in fill: em.e(f)

def emit_final(em):
    e = em.e
    pr = 1
    T2 = 144
    chk = ["s_nop 0"] * 8
    for qs in range(4): chk += [f"v_accvgpr_read_b32 v{LV+2*qs}, a{AL+2*qs}", f"v_accvgpr_read_b32 v{LV+2*qs+1}, a{AL+2*qs+1}"]
    for qs in range(4): chk += [f"v_add_f32 v{LV+2*qs}, v{LV+2*qs}, v{LV+2*qs+1}"]
    chk += [f"v_max3_f32 v{T2}, v{LV}, v{LV+2}, v{LV+4}", f"v_add_f32 v{T2+1}, v{LV}, v{LV+2}", f"v_max_f32 v{T2}, v{T2}, v{LV+6}", f"v_add_f32 v{T2+1}, v{T2+1}, v{LV+4}",
            f"v_cmp_nge_f32 vcc, 0x5f800000, v{T2}", f"v_add_f32 v{T2+1}, v{T2+1}, v{LV+6}", f"v_cmp_u_f32 s[{S_X0+1}:{S_X0+2}], v{T2+1}, v{T2+1}"]
    chk = chk[4:]
    mf = [smf(pr, 0), smf(pr, 1)] + [pv(pr, T, qs) for qs in (0, 1) for T in range(8)]
    em.mfma(mf[0]); em.mfma(mf[1]); em.mfma(mf[2]); em.mfma(mf[3])
    interleave(em, mf[4:], chk)
    e(f"s_or_b64 vcc, vcc, s[{S_X0+1}:{S_X0+2}]\ns_cmp_lg_u64 vcc, 0\ns_cselect_b32 s{S_T}, 1, 0")
    e(f"v_mov_b32 v{T2}, s{S_T}\ns_lshl_b32 s{S_T2}, s{S_WAVE}, 2\ns_add_u32 s{S_T2}, s{S_T2}, {L_CHK}\nv_mov_b32 v{T2+1}, s{S_T2}")
    em.dsw(f"ds_write_b32 v{T2+1}, v{T2}")
    for qs in range(4): e(f"v_rcp_f32 v{LV+2*qs}, v{LV+2*qs}")
    e(f"v_mov_b32 v{T2+1}, {L_CHK}")
    em.ds_all("vmcnt(0)")
    e("s_barrier")
    em.vm = 0
    em.dsr(f"ds_read_b128 {vr(T2+4,4)}, v{T2+1}")
    e(f"s_cmp_eq_u32 s{S_GD}, 0\ns_cbranch_scc1 K_NOGD1")
    e(f"s_mul_i32 s{S_T3}, s{S_NB}, {256*1152}\ns_add_u32 s{S_T3}, s{S_T3}, s{S_WOO}")
    em.items(dma9(SRD_W, WO9, S_T3, S_W9, SL_B))
    em.vm = 0
    em.label("K_NOGD1")
    def rd(qs, t): return [f"v_accvgpr_read_b32 v{t+4*T+r}, a{Oacc(T,qs)+r}" for T in range(8) for r in range(4)]
    def fin(qs, t):
        hh, lam = qs >> 1, qs & 1
        for ks in range(4):
            a = t + 8 * ks; d = OB(hh, ks, lam)
            for k in range(4): e(f"v_pk_mul_f32 {vr(a+2*k,2)}, {vr(a+2*k,2)}, {vr(LV+2*qs,2)} op_sel_hi:[1,0]")
            for k in range(4): e(f"v_cvt_pk_bf16_f32 v{d+k}, v{a+2*k}, v{a+2*k+1}")
            f = (hh * 4 + ks) * 2 + lam
            if (ks & 1) == 0: e(f"s_add_u32 s{S_T}, s{S_OB}, {(f>>2)*4096}")
            em.vmem(f"buffer_store_dwordx4 {vr(d,4)}, v{L16}, {R4(SRD_WS)}, s{S_T} offen offset:{(f&3)*1024} {SC}", ("ost", hh))
    interleave(em, [pv(pr, T, qs) for qs in (2, 3) for T in range(8)], rd(0, 40))
    fin(0, 40)
    for x in rd(1, 72): e(x)
    fin(1, 72)
    em.need(regs_of(vr(T2 + 4, 4)))
    e(f"v_or3_b32 v{T2+4}, v{T2+4}, v{T2+5}, v{T2+6}\nv_or_b32 v{T2+4}, v{T2+4}, v{T2+7}\ns_nop 0\nv_readfirstlane_b32 s{S_T}, v{T2+4}")
    e(f"s_andn2_b32 s{S_T}, s{S_T}, s{S_PASS}\ns_cbranch_scc1 K_FB")
    for i in range(1, 4):
        e(f"s_add_u32 s{S_T}, s{S_NB}, {i}\ns_and_b32 s{S_T}, s{S_T}, 3\ns_mul_i32 s{S_PW+i-1}, s{S_T}, {256*1152}\ns_add_u32 s{S_PW+i-1}, s{S_PW+i-1}, s{S_WOO}")
        e(f"s_sub_u32 s{S_T}, s{S_T}, s{S_NB}\ns_lshl_b32 s{S_T}, s{S_T}, 16\ns_add_u32 s{S_PO+i-1}, s{S_OB}, s{S_T}")
    e(f"v_bfe_u32 v5, v1, 2, 2\nv_lshl_add_u32 v5, v4, 2, v5\nv_mul_u32_u24 v5, 288, v5\nv_and_b32 v6, 3, v1\nv_lshl_add_u32 v5, v6, 3, v5")
    e(f"s_and_b32 s{S_X0}, s{S_KQ}, 1\ns_mul_i32 s{S_X0}, s{S_X0}, 160\ns_sub_u32 s{S_T}, 160, s{S_X0}\nv_add_u32 v6, s{S_X0}, v5\nv_add_u32 v7, s{S_T}, v5")
    for k in range(4):
        e(f"v_add_u32 v{PA+3*k}, s{S_SLOT+k}, v6\nv_add_u32 v{PA+3*k+1}, s{S_SLOT+k}, v7\nv_add_u32 v{PA+3*k+2}, s{S_SLOT+k}, v5\ns_add_u32 s{S_SLOT+k}, s{S_SLOT+k}, s{S_W9}")
    for x in rd(2, 72): e(x)
    fin(2, 72)
    for x in rd(3, 72): e(x)
    fin(3, 72)

def emit_gd(em):
    e = em.e
    e(f"s_mov_b32 s{S_VAL}, 0\ns_cmp_eq_u32 s{S_GD}, 0\ns_cbranch_scc1 K_P2")
    sv = (em.vm, dict(em.tags))
    TA, TD, AC, U = 156, 157, 160, 164
    e(f"v_bfe_u32 v5, v1, 2, 2\nv_and_b32 v6, 3, v1\nv_lshl_add_u32 v7, v4, 3, v5\nv_lshlrev_b32 v7, 6, v7\nv_lshl_add_u32 v7, v6, 3, v7")
    e(f"s_and_b32 s{S_T}, s{S_WAVE}, 1\ns_lshl_b32 s{S_T}, s{S_T}, 5\ns_cmp_lt_u32 s{S_WAVE}, 2\ns_cselect_b32 s{S_T2}, {L_WG}, {L_WU}\ns_add_u32 s{S_T}, s{S_T}, s{S_T2}\nv_add_u32 v{TA}, s{S_T}, v7")
    GF = 168
    def ald(s):
        for j in range(2): em.dsr(f"ds_read_b64_tr_b16 {vr(GF+(s&7)*4+2*j,2)}, v{TA} offset:{s*2048 + j*256}")
    for s in range(7): ald(s)
    e(f"v_lshl_add_u32 v7, v4, 2, v5\nv_mul_u32_u24 v7, 0x480, v7\nv_lshl_add_u32 v7, v6, 3, v7\ns_lshl_b32 s{S_T}, s{S_WAVE}, 6\ns_add_u32 s{S_T}, s{S_T}, {L_WD}\nv_add_u32 v{TD}, s{S_T}, v7")
    e(f"v_add_u32 v{TD+1}, {16*1152}, v{TD}\nv_subrev_u32 v7, {L_WD + 24*1152 - L_WD3}, v{TD+1}\nv_cmp_lt_u32 vcc, 31, v1\ns_nop 1\nv_cndmask_b32 v{TD+1}, v{TD+1}, v7, vcc")
    for s in range(18):
        if s + 7 < 18: ald(s + 7)
        em.need(regs_of(vr(GF + (s & 7) * 4, 4)), loose=15)
        e(f"{MF} {vr(AC,4)}, {vr(GF+(s&7)*4,4)}, {XFR(s)}, {'0' if s == 0 else vr(AC,4)}")
    e("s_waitcnt vmcnt(8)")
    oflag(em, 0)
    e("s_nop 1")
    def rnd4():
        e(f"v_cvt_pk_bf16_f32 v{U}, v{AC}, v{AC+1}\nv_cvt_pk_bf16_f32 v{U+1}, v{AC+2}, v{AC+3}")
        e(f"v_lshlrev_b32 v{AC}, 16, v{U}\nv_and_b32 v{AC+1}, 0xffff0000, v{U}\nv_lshlrev_b32 v{AC+2}, 16, v{U+1}\nv_and_b32 v{AC+3}, 0xffff0000, v{U+1}")
    rnd4()
    e(f"s_cmp_lt_u32 s{S_WAVE}, 2\ns_cbranch_scc0 K_NOSILU")
    for r in range(4): e(f"v_mul_f32 v{U+r}, 0xbfb8aa3b, v{AC+r}")
    for r in range(4): e(f"v_exp_f32 v{U+r}, v{U+r}")
    e("s_nop 0")
    for r in range(4): e(f"v_add_f32 v{U+r}, 1.0, v{U+r}")
    for r in range(4): e(f"v_rcp_f32 v{U+r}, v{U+r}")
    e("s_nop 0")
    for r in range(4): e(f"v_mul_f32 v{AC+r}, v{AC+r}, v{U+r}")
    rnd4()
    em.label("K_NOSILU")
    e(f"s_lshl_b32 s{S_T}, s{S_WAVE}, 10\nv_add_u32 v5, {L_HX}, v{L16}\nv_add_u32 v6, s{S_T}, v5")
    em.dsw(f"ds_write_b128 v6, {vr(AC,4)}")
    em.ds_all()
    e("s_barrier")
    H = 168; DA = 72; Y = 112
    for k in range(4): em.dsr(f"ds_read_b128 {vr(H+4*k,4)}, v5 offset:{k*1024}")
    for N in range(10):
        for j in range(2): em.dsr(f"ds_read_b64_tr_b16 {vr(DA+4*N+2*j,2)}, v{TD+j} offset:{(N>>1)*256 + (N&1)*32}")
    e(f"s_add_u32 s{S_SA}, s{S_T3}, {128*1152}")
    em.items(dma9(SRD_W, WO9, S_SA, S_SLOT + 1, 0))
    em.need(regs_of(vr(H, 16)), loose=15)
    for r in range(8): e(f"v_mul_f32 v{H+r}, v{H+r}, v{H+8+r}")
    HF = 184
    for k in range(4): e(f"v_cvt_pk_bf16_f32 v{HF+k}, v{H+2*k}, v{H+2*k+1}")
    e(f"v_and_b32 v5, 7, v1\nv_mul_u32_u24 v5, 2304, v5\nv_bfe_u32 v6, v1, 3, 1\nv_lshl_add_u32 v5, v6, 6, v5\nv_lshl_add_u32 v5, v4, 4, v5\nv_cmp_eq_u32 vcc, 1, v6")
    YR = 188
    yreg = lambda N: (188 + 4 * N) if N < 7 else (112 + 4 * (N - 7))
    for N in range(10): em.mfma(f"{MF} {vr(yreg(N),4)}, {vr(DA+4*N,4)}, {vr(HF,4)}, 0")
    e(f"s_sub_u32 s{S_T}, s{S_GD}, 1\ns_mul_i32 s{S_T}, s{S_T}, 18432\ns_lshl_b32 s{S_T2}, s{S_WAVE}, 7\ns_add_u32 s{S_T}, s{S_T}, s{S_T2}\ns_add_u32 s{S_T}, s{S_T}, {hex(WS_YP)}")
    e(f"v_and_b32 v6, 7, v1\nv_lshlrev_b32 v6, 2, v6")
    e(f"buffer_load_dword v7, v6, {R4(SRD_WS)}, s{S_OFL} offen {SC}")
    for k in range(5):
        for r in range(4): e(f"v_cndmask_b32 v{yreg(2*k)+r}, v{yreg(2*k)+r}, v{yreg(2*k+1)+r}, vcc")
        if k == 4: e(f"s_cmp_lt_u32 s{S_WAVE}, 2\ns_cselect_b32 s{S_T}, s{S_T}, 0x7ffffff0")
        e(f"buffer_store_dwordx4 {vr(yreg(2*k),4)}, v5, {R4(SRD_WS)}, s{S_T} offen offset:{k*512} {SC}")
    e("s_waitcnt vmcnt(15)")
    oflag(em, 1)
    e("s_waitcnt vmcnt(6)\ns_barrier")
    e(f"v_cmp_ne_u32 vcc, 1, v7\ns_and_b32 s{S_T}, vcc_lo, 0x55\ns_cselect_b32 s{S_VAL}, 0, 1")
    em.vm, em.tags = sv
    em.ds_done = em.ds - 1
    em.label("K_P2")

def fo_ld(hh):
    r = []
    for i in range(1, 4):
        for f in range(8):
            if (f & 3) == 0: r.append(It("s", f"s_add_u32 s{S_X1}, s{S_PO+i-1}, {hh*8192 + (f>>2)*4096}"))
            r.append(It("vm", f"buffer_load_dwordx4 {ar(FB(i,hh,f>>1,f&1),4)}, v{L16}, {R4(SRD_FO)}, s{S_X1} offen offset:{(f&3)*1024} {SC}", tag=("fo", hh, i)))
    return r
def wo_dma(st):
    i, hh = ((st - 2) % 3 + 1, (st - 2) // 3)
    return [It("s", f"s_add_u32 s{S_SA}, s{S_PW+i-1}, {hh*128*1152}")] + dma9(SRD_W, WO9, S_SA, S_SLOT + (st & 3), 0, tag=("wo", st))
XL, XN, XV = 156, 166, 176
def emit_p2(em):
    from front import emit_packed_bar
    e = em.e
    stamp(em, "gd")
    e(f"s_cmp_lg_u32 s{S_VAL}, 0\ns_cselect_b32 s{SRD_FO+2}, {hex(WS_SIZE)}, 0")
    e(f"v_and_b32 v6, 7, v1\nv_lshlrev_b32 v6, 2, v6")
    e(f"v_add_u32 v5, s{S_ROW}, v3\nv_mul_u32_u24 v5, 0x480, v5\nv_lshl_add_u32 v5, v4, 3, v5\ns_mul_i32 s{S_T}, s{S_NB}, 288\nv_add_u32 v{XV}, s{S_T}, v5")
    def a_rd(t, j):
        st, kk = t >> 2, t & 3
        reg = PA + 3 * (st & 3) + (j >> 2); off = (j & 3) * 32 if j < 8 else 128
        return [f"ds_read_b64_tr_b16 {ar(AF+4*j+2*h,2)}, v{reg} offset:{kk*9216 + h*4608 + off}" for h in range(2)]
    def bfrag(t, lam):
        st, kk = t >> 2, t & 3
        if st < 2: return vr(OB(st, kk, lam), 4)
        return ar(FB((st - 2) % 3 + 1, (st - 2) // 3, kk, lam), 4)
    def mfl(t): return [f"{MF} {vr(ACC(lam,j),4)}, {ar(AF+4*j,4)}, {bfrag(t,lam)}, {'0' if t == 0 else vr(ACC(lam,j),4)}" for j in range(9) for lam in range(2)]
    for j in range(9):
        for x in a_rd(0, j): em.dsr(x)
    snapld = lambda tag: It("vm", f"buffer_load_dword v7, v6, {R4(SRD_WS)}, s{S_OFL} offen {SC}", tag=tag)
    def xld():
        r = []
        for k in range(5):
            so, off = (f"s{S_X0}", k * 32) if k < 4 else ("0", 128)
            r.append(It("vm", f"buffer_load_dwordx2 {vr(XL+2*k,2)}, v{XV}, {R4(SRD_X)}, {so} offen offset:{off}"))
            r.append(It("vm", f"buffer_load_dwordx2 {vr(XN+2*k,2)}, v{XV}, {R4(SRD_WS)}, {so} offen offset:{off} {SC}"))
        return r
    def mix(a, b):
        def groups(l):
            g = []
            for x in l:
                if x.kind == "s" and (not g or g[-1][-1].kind == "vm"): g.append([])
                if not g: g.append([])
                g[-1].append(x)
            return g
        ga, gb = groups(a), groups(b); r = []
        while ga or gb:
            if gb: r += gb.pop(0)
            if ga: r += ga.pop(0)
        return r
    pend = mix(wo_dma(2) + wo_dma(3), fo_ld(0)) + [snapld("sn0")]
    BG = 4
    for t in range(32):
        st, kk = t >> 2, t & 3
        mf = mfl(t); n = 18
        bar = t in (7, 15, 23)
        lo = BG + 1 if bar else 0
        if t == 4:
            e(f"s_cmp_lg_u32 s{S_GD}, 0\ns_cbranch_scc1 K_NOF0")
            em.wait_vm(("ost", 0)); oflag(em, 0); em.vm -= 1
            em.label("K_NOF0")
        if kk == 0 and st >= 2: em.wait_vm(("fo", (st - 2) // 3, (st - 2) % 3 + 1))
        if t == 8: stamp(em, "p2own")
        if t == 11:
            em.wait_vm("sn1")
            e(f"v_cmp_ne_u32 vcc, 1, v7\ns_and_b32 s{S_T}, vcc_lo, 0xaa\ns_cbranch_scc0 K_F1OK")
            em.label("K_F1SPIN")
            spin(em, 2)
            e(f"buffer_load_dword v7, v6, {R4(SRD_WS)}, s{S_OFL} offen {SC}\ns_waitcnt vmcnt(0)\nv_cmp_ne_u32 vcc, 1, v7\ns_and_b32 s{S_T}, vcc_lo, 0xaa\ns_cbranch_scc1 K_F1SPIN")
            em.label("K_F1OK")
            pend = mix(pend, fo_ld(1)) if pend and pend[0].kind == "s" else pend + fo_ld(1)
        ds = []
        if t + 1 < 32:
            for j in range(9): ds += [It("ds", x, at=max(lo, 2 * j + 1)) for x in a_rd(t + 1, j)]
        pre = []
        if bar:
            if t == 7: assert not pend
            new = (wo_dma(st + 3) + wo_dma(st + 4)) if t < 23 else xld()
            if t == 7: new = new[:13] + [snapld("sn1")] + new[13:]
            pend = pend + new if t != 15 else mix(pend, new) if pend and pend[0].kind == "s" else pend + new
        take = 7 if not bar else 4
        cur = []; k = 0
        while pend and k < take:
            x = pend.pop(0); cur.append(x)
            if x.kind == "vm": k += 1
        k = 0
        for x in cur:
            x.at = lo + (k * (n - lo)) // take
            if x.kind == "vm": k += 1
        packed = pack(n, {"vm": cur, "ds": ds}, ["vm", "ds"], reserve=({BG: 8} if bar else None))
        nxt = mfl(t + 1)[0] if t + 1 < 32 else None
        if not bar:
            emit_packed(em, mf, packed, nxt)
        else:
            emit_packed(em, mf[:BG + 1], packed[:BG] + [[], []], None)
            em.ds_all("vmcnt(0)" if t == 7 else f"vmcnt({em.vm_n(('wo', st + 2))})")
            e("s_barrier")
            if t == 7:
                e(f"s_cmp_lg_u32 s{S_GD}, 0\ns_cbranch_scc1 K_YPUB")
                oflag(em, 1); em.vm -= 1
                em.label("K_YPUBD")
                e(f"s_cmp_lg_u32 s{S_VAL}, 0\ns_cbranch_scc1 K_F0DONE")
                e(f"v_cmp_ne_u32 vcc, 1, v7\ns_and_b32 s{S_T}, vcc_lo, 0x55\ns_cbranch_scc0 K_F0OK")
                em.label("K_F0SPIN")
                spin(em, 1)
                e(f"buffer_load_dword v7, v6, {R4(SRD_WS)}, s{S_OFL} offen {SC}\ns_waitcnt vmcnt(0)\nv_cmp_ne_u32 vcc, 1, v7\ns_and_b32 s{S_T}, vcc_lo, 0x55\ns_cbranch_scc1 K_F0SPIN")
                em.label("K_F0OK")
                e(f"s_mov_b32 s{SRD_FO+2}, {hex(WS_SIZE)}")
                em.items(fo_ld(0))
                em.label("K_F0DONE")
            em.items(packed[BG])
            emit_packed(em, mf[BG + 1:], packed[BG + 1:], nxt)
    assert not pend
    stamp(em, "p2main")

def emit_ypub(em):
    e = em.e
    em.label("K_YPUB")
    e(f"s_cmp_lg_u32 s{S_WAVE}, 0\ns_cbranch_scc1 K_YPUBD")
    e(f"v_mov_b32 v5, 1\ns_mov_b64 exec, 1\nbuffer_atomic_add v5, v{L16}, {R4(SRD_DBG)}, 0 offen offset:{DBG_Y} sc1\ns_mov_b64 exec, -1\ns_branch K_YPUBD")

def emit_xchg(em):
    e = em.e
    PK = 8; L8 = 177
    XBS = 3072
    e(f"s_lshl_b32 s{S_T}, s{S_QB}, 2\ns_add_u32 s{S_T}, s{S_T}, s{S_NB}\ns_lshl_b32 s{S_T3}, s{S_T}, 2\ns_add_u32 s{S_T3}, s{S_T3}, s{S_WAVE}\ns_lshl_b32 s{S_T3}, s{S_T3}, 7\ns_add_u32 s{S_OFL}, s{S_T3}, {hex(WS_XFL)}")
    e(f"s_lshl_b32 s{S_T}, s{S_T}, 6\ns_add_u32 s{S_T}, s{S_T}, s{S_WAVE}\ns_mul_i32 s{S_OB}, s{S_T}, {XBS}\ns_add_u32 s{S_OB}, s{S_OB}, {hex(WS_XB)}")
    e(f"s_mul_i32 s{S_T2}, s{S_KQ}, {4*XBS}\ns_add_u32 s{S_T2}, s{S_T2}, s{S_OB}")
    e(f"v_lshlrev_b32 v{L8}, 3, v1")
    p = PK
    for d in (1, 2, 3):
        lam, j0 = d >> 1, (d & 1) * 4
        e(f"s_xor_b32 s{S_T}, s{S_KQ}, {d}\ns_mul_i32 s{S_T}, s{S_T}, {16*XBS}\ns_add_u32 s{S_T}, s{S_T}, s{S_T2}")
        for h in range(2):
            for k in range(2):
                a = ACC(lam, j0 + 2 * h + k)
                e(f"v_cvt_pk_bf16_f32 v{p+2*k}, v{a}, v{a+1}\nv_cvt_pk_bf16_f32 v{p+2*k+1}, v{a+2}, v{a+3}")
            e(f"buffer_store_dwordx4 {vr(p,4)}, v{L16}, {R4(SRD_WS)}, s{S_T} offen offset:{h*1024} {SC}")
            p += 4
    for lam in range(2):
        a = ACC(lam, 8)
        e(f"v_cvt_pk_bf16_f32 v{p}, v{a}, v{a+1}\nv_cvt_pk_bf16_f32 v{p+1}, v{a+2}, v{a+3}")
        e(f"s_xor_b32 s{S_T}, s{S_KQ}, {2*lam}\ns_and_b32 s{S_T}, s{S_T}, 2\ns_mul_i32 s{S_T}, s{S_T}, {16*XBS}\ns_add_u32 s{S_T}, s{S_T}, s{S_T2}")
        e(f"buffer_store_dwordx2 {vr(p,2)}, v{L8}, {R4(SRD_WS)}, s{S_T} offen offset:2048 {SC}")
        p += 2
    YL = 40; GG = 180; U = 200
    for k in range(20): e(f"v_mov_b32 v{YL+k}, 0")
    e(f"v_subrev_u32 v5, s{S_ROW}, v{IDXV}\nv_subrev_u32 v5, 1, v5\nv_cmp_gt_u32 vcc, 16, v5\ns_and_b32 s{S_VAL}, vcc_lo, 0xff")
    e(f"s_waitcnt vmcnt(0)\nv_mov_b32 v6, 1\ns_lshl_b32 s{S_T}, s{S_KQ}, 2\ns_add_u32 s{S_T}, s{S_T}, s{S_OFL}\ns_mov_b64 exec, 1")
    e(f"buffer_store_dword v6, v{L16}, {R4(SRD_WS)}, s{S_T} offen {SC}\ns_mov_b64 exec, -1")
    e(f"s_cmp_lg_u32 s{S_VAL}, 0\ns_cbranch_scc1 K_YG")
    em.label("K_YGD")
    M, NL = S_PW, S_PW + 1
    e(f"s_mov_b32 s{NL}, 0xbfb8aa3b\ns_mov_b32 s{M}, 0xffff0000")
    def unpack(t, a): e(f"v_lshlrev_b32 v{t}, 16, v{a}\nv_and_b32 v{t+1}, s{M}, v{a}\nv_lshlrev_b32 v{t+2}, 16, v{a+1}\nv_and_b32 v{t+3}, s{M}, v{a+1}")
    def rnd(t): e(f"v_cvt_pk_bf16_f32 v{U}, v{t}, v{t+1}\nv_cvt_pk_bf16_f32 v{U+1}, v{t+2}, v{t+3}"); unpack(t, U)
    for k in range(5):
        t = GG + 4 * k
        unpack(t, XN + 2 * k)
        for r in range(4): e(f"v_add_f32 v{t+r}, v{t+r}, v{YL+4*k+r}")
        rnd(t)
        for r in range(4): e(f"v_mul_f32 v{U+2+r}, s{NL}, v{t+r}")
        for r in range(4): e(f"v_exp_f32 v{U+2+r}, v{U+2+r}")
        e("s_nop 0")
        for r in range(4): e(f"v_add_f32 v{U+2+r}, 1.0, v{U+2+r}")
        for r in range(4): e(f"v_rcp_f32 v{U+2+r}, v{U+2+r}")
        e("s_nop 0")
        for r in range(4): e(f"v_mul_f32 v{t+r}, v{t+r}, v{U+2+r}")
        rnd(t)
    e(f"v_and_b32 v5, 3, v1\nv_lshlrev_b32 v5, 2, v5")
    em.label("K_XPOLL")
    e(f"buffer_load_dword v6, v5, {R4(SRD_WS)}, s{S_OFL} offen {SC}\ns_waitcnt vmcnt(0)\nv_cmp_ne_u32 vcc, 1, v6\ns_cbranch_vccz K_XOK")
    spin(em, 2)
    e("s_branch K_XPOLL")
    em.label("K_XOK")
    stamp(em, "xchg")
    RC = 8
    e(f"s_mul_i32 s{S_T2}, s{S_KQ}, {16*XBS}\ns_add_u32 s{S_T2}, s{S_T2}, s{S_OB}")
    for d in (1, 2, 3):
        b = RC + (d - 1) * 10
        e(f"s_xor_b32 s{S_T}, s{S_KQ}, {d}\ns_mul_i32 s{S_T}, s{S_T}, {4*XBS}\ns_add_u32 s{S_T}, s{S_T}, s{S_T2}")
        e(f"buffer_load_dwordx4 {vr(b,4)}, v{L16}, {R4(SRD_WS)}, s{S_T} offen {SC}")
        e(f"buffer_load_dwordx4 {vr(b+4,4)}, v{L16}, {R4(SRD_WS)}, s{S_T} offen offset:1024 {SC}")
        e(f"buffer_load_dwordx2 {vr(b+8,2)}, v{L8}, {R4(SRD_WS)}, s{S_T} offen offset:2048 {SC}")
    XF = 40
    for k in range(5): unpack(XF + 4 * k, XL + 2 * k)
    e("s_waitcnt vmcnt(0)")
    for k in range(5):
        if k == 4: e(f"s_bitcmp1_b32 s{S_KQ}, 0\ns_cbranch_scc1 K_FIN")
        a = ACC(0, k if k < 4 else 8); g = GG + 4 * k
        for i in range(3):
            unpack(U + 2, RC + i * 10 + 2 * k)
            e(f"v_pk_add_f32 {vr(a,2)}, {vr(a,2)}, {vr(U+2,2)}\nv_pk_add_f32 {vr(a+2,2)}, {vr(a+2,2)}, {vr(U+4,2)}")
        rnd(a)
        e(f"v_pk_mul_f32 {vr(a,2)}, {vr(a,2)}, {vr(g,2)}\nv_pk_mul_f32 {vr(a+2,2)}, {vr(a+2,2)}, {vr(g+2,2)}")
        rnd(a)
        e(f"v_pk_add_f32 {vr(a,2)}, {vr(a,2)}, {vr(XF+4*k,2)}\nv_pk_add_f32 {vr(a+2,2)}, {vr(a+2,2)}, {vr(XF+4*k+2,2)}")
        e(f"v_cvt_pk_bf16_f32 v{a}, v{a}, v{a+1}\nv_cvt_pk_bf16_f32 v{a+1}, v{a+2}, v{a+3}")
        so, off = (f"s{S_X0}", k * 32) if k < 4 else ("0", 128)
        e(f"buffer_store_dwordx2 {vr(a,2)}, v{XV}, {R4(SRD_OUT)}, {so} offen offset:{off}")
    em.label("K_FIN")

def emit_ygather(em):
    e = em.e
    YL = 40; B = 180; A = 60; YA = 64
    em.label("K_YG")
    e("v_mov_b32 v6, 0")
    em.label("K_YPOLL")
    e(f"buffer_load_dword v7, v6, {R4(SRD_DBG)}, 0 offen offset:{DBG_Y} {SC}\ns_waitcnt vmcnt(0)\nv_cmp_gt_u32 vcc, 144, v7\ns_cbranch_vccz K_YOK")
    spin(em, 4)
    e("s_branch K_YPOLL")
    em.label("K_YOK")
    e(f"v_mul_u32_u24 v6, 3277, v1\nv_lshrrev_b32 v6, 16, v6\nv_min_u32 v6, 2, v6\nv_mul_u32_u24 v7, 20, v6\nv_sub_u32 v7, v1, v7\nv_mul_u32_u24 v6, 18432, v6\nv_lshl_add_u32 v{YA}, v7, 4, v6")
    e(f"s_lshl_b32 s{S_T}, s{S_WAVE}, 10\ns_add_u32 s{S_T}, s{S_T}, {L_YG}\nv_add_u32 v{YA+1}, s{S_T}, v{L16}\nv_lshl_add_u32 v{YA+2}, v4, 4, s{S_T}")
    em.label("K_YTOK")
    e(f"s_ff1_i32_b32 s{S_T3}, s{S_VAL}\ns_bitset0_b32 s{S_VAL}, s{S_T3}")
    e(f"s_mul_i32 s{S_T}, s{S_T3}, 2304\ns_mul_i32 s{S_T2}, s{S_NB}, 576\ns_add_u32 s{S_T}, s{S_T}, s{S_T2}\ns_lshl_b32 s{S_T2}, s{S_X0}, 1\ns_add_u32 s{S_T}, s{S_T}, s{S_T2}\ns_add_u32 s{S_T}, s{S_T}, {hex(WS_YP)}")
    for i in range(48):
        e(f"buffer_load_dwordx4 {ar(4*i,4)}, v{YA}, {R4(SRD_WS)}, s{S_T} offen {SC}\ns_add_u32 s{S_T}, s{S_T}, {3*18432}")
    e(f"v_readlane_b32 s{S_T}, v5, s{S_T3}\nv_readlane_b32 s{S_T2}, v{RSV}, s{S_T3}")
    for i in range(48):
        if i % 8 == 0: e(f"s_waitcnt vmcnt({40 - i})")
        if i == 0:
            for r in range(4): e(f"v_accvgpr_read_b32 v{A+r}, a{r}")
        else:
            for r in range(4): e(f"v_accvgpr_read_b32 v{B+r}, a{4*i+r}")
            e(f"v_pk_add_f32 {vr(A,2)}, {vr(A,2)}, {vr(B,2)}\nv_pk_add_f32 {vr(A+2,2)}, {vr(A+2,2)}, {vr(B+2,2)}")
    e(f"ds_write_b128 v{YA+1}, {vr(A,4)}\ns_waitcnt lgkmcnt(0)")
    e(f"v_cmp_eq_u32 vcc, s{S_T}, v3\ns_nop 1\ns_mov_b64 exec, vcc")
    for k in range(5):
        for sub in range(3): e(f"ds_read_b128 {vr(B+4*sub,4)}, v{YA+2} offset:{sub*320 + k*64}")
        e("s_waitcnt lgkmcnt(0)")
        for r in range(4):
            y = YL + 4 * k + r
            e(f"v_add_f32 v{y}, v{B+r}, v{B+4+r}\nv_add_f32 v{y}, v{y}, v{B+8+r}")
            e(f"v_cvt_pk_bf16_f32 v{y}, v{y}, v{y}\nv_lshlrev_b32 v{y}, 16, v{y}\nv_mul_f32 v{y}, s{S_T2}, v{y}\nv_cvt_pk_bf16_f32 v{y}, v{y}, v{y}\nv_lshlrev_b32 v{y}, 16, v{y}")
    e(f"s_mov_b64 exec, -1\ns_cmp_lg_u32 s{S_VAL}, 0\ns_cbranch_scc1 K_YTOK\ns_branch K_YGD")
```

```python
import sys, os
sys.path.insert(0, os.path.dirname(__file__))
from defs import *
import front, attn, tail
KN = "recurrent_scan__gqa_block_cached__moe_arch_mod__prompt_kernel"
HDR = open(os.path.join(os.path.dirname(__file__), "..", "gen", "header.txt")).read().rstrip("\n") + "\n"
def build(out):
    em = Em(); e = em.e
    e(f".globl {KN}\n.p2align 8\n.type {KN},@function"); em.label(KN)
    front.emit_front(em, KN)
    front.emit_qproj(em)
    stamp(em, "qproj")
    front.emit_qfin(em)
    if OPT["dump"] == "q":
        e(f"s_lshl_b32 s{S_T}, s2, 2\ns_add_u32 s{S_T}, s{S_T}, s{S_WAVE}\ns_lshl_b32 s{S_T}, s{S_T}, 14\ns_add_u32 s{S_T}, s{S_T}, {hex(WS_DUMP)}")
        for f in range(16): e(f"buffer_store_dwordx4 {vr(Q0+4*f,4)}, v{L16}, {R4(SRD_WS)}, s{S_T} offen\ns_add_u32 s{S_T}, s{S_T}, 1024")
    stamp(em, "qfin")
    if OPT["stop"]: e("s_branch K_PROFOUT")
    attn.emit_pre(em)
    stamp(em, "pre")
    attn.emit_loop(em, tail.side_hook, tail.last_vm)
    stamp(em, "last")
    tail.emit_final(em)
    stamp(em, "oepi")
    tail.emit_p2(em)
    tail.emit_xchg(em)
    if OPT["prof"]:
        e("s_waitcnt vmcnt(0)")
        stamp(em, "fin")
        em.label("K_PROFOUT")
        e(f"s_lshl_b32 s{S_T}, s2, 2\ns_add_u32 s{S_T}, s{S_T}, s{S_WAVE}\ns_lshl_b32 s{S_T}, s{S_T}, 8\ns_add_u32 s{S_T}, s{S_T}, {hex(WS_PROF)}\nv_lshlrev_b32 v5, 2, v1")
        e(f"buffer_store_dword v2, v5, {R4(SRD_WS)}, s{S_T} offen")
    em.label("K_END")
    e("s_endpgm")
    tail.emit_ygather(em)
    tail.emit_side(em)
    front.emit_rank_slow(em)
    em.label("K_CODE_END")
    attn.emit_fallback(em)
    s = HDR + "; @launch grid=(256,1,1) block=(256,1,1) lds=163840\n"
    if OPT["prof"]: s += "; stamps: " + " ".join(STN) + "\n"
    s += '.amdgcn_target "amdgcn-amd-amdhsa--gfx950"\n.text\n' + em.text()
    s += f""".section .rodata,"a"
.p2align 6
.amdhsa_kernel {KN}
  .amdhsa_next_free_vgpr 512
  .amdhsa_next_free_sgpr 102
  .amdhsa_accum_offset 256
  .amdhsa_group_segment_fixed_size 0
  .amdhsa_kernarg_size 104
  .amdhsa_user_sgpr_count 2
  .amdhsa_user_sgpr_kernarg_segment_ptr 1
  .amdhsa_system_sgpr_workgroup_id_x 1
  .amdhsa_float_denorm_mode_32 3
.end_amdhsa_kernel
"""
    open(out, "w").write(s)
    print("leftover items:", em.stat)
if __name__ == "__main__":
    for a in sys.argv[2:]:
        k, v = a.split("="); OPT[k] = type(OPT[k])(v)
    build(sys.argv[1])
```

```python
from defs import *
from front import dma_k, dma_v, kaddr, vaddr, kv_init
import copy

def qk(bw, kt, s, qs, c0=None):
    D = Sreg(bw, qs, kt)
    C = (vr(NM + qs * 4, 4) if c0 is None else c0) if s == 0 else vr(D, 4)
    return f"{MF} {vr(D,4)}, {ar(Kf(kt,s),4)}, {vr(Qf(qs,s),4)}, {C}"
def pv(pr, T, qs):
    O = Oacc(T, qs)
    return f"{MF} {ar(O,4)}, {ar(Vf(T),4)}, {vr(Preg(pr,qs),4)}, {ar(O,4)}"
def smf(pr, h): return f"{SMF} {ar(AL+h*4,4)}, {ar(AONE,4)}, {vr(Preg(pr,2*h),8)}, v{SIDX}"
def kld(blk, i): return f"ds_read_b128 {ar(Kf(i>>2,i&3),4)}, v{KA+(i&3)} offset:{kaddr(blk) + (i>>2)*4096}"
def vld(blk, T, j): return f"ds_read_b64_tr_b16 {ar(Vf(T)+2*j,2)}, v{VA+T} offset:{vaddr(blk) + j*4096}"

def step_mf(u, do_qk=True, do_pv=True):
    bw = (u + 1) & 1; pr = (u + 1) & 1
    mf = []; fr = []
    for i in range(8):
        if do_qk:
            kt, qs = i >> 2, i & 3
            for s in range(4):
                mf.append(qk(bw, kt, s, qs))
                if qs == 3: fr.append((len(mf) - 1, "K", kt * 4 + s))
        if do_pv:
            for qs in range(4): mf.append(pv(pr, i, qs))
            fr.append((len(mf) - 1, "V", i))
            if (i & 3) == 1: mf.append(smf(pr, i >> 2))
    return mf, fr

def emit_step(em, u, do_qk=True, do_pv=True, ld_k=True, vm=(), post=(), bar=False, hook=None, nxt=None, vmspan=None, vmw=2):
    br = u & 1
    mf, fr = step_mf(u, do_qk, do_pv)
    n = len(mf)
    BG = OPT["barg"]
    lo = BG + 1 if bar else 0
    dsl = []
    for g, kind, i in fr:
        if kind == "K" and ld_k: dsl.append((g, kld(u + 2, i)))
        if kind == "V": dsl += [(g, vld(u, i, 0)), (g, vld(u, i, 1))]
    if not do_pv:
        for i in range(8): dsl += [((i * n) // 10, vld(u, i, j)) for j in range(2)]
    dsl.sort(key=lambda x: x[0])
    st = {"ds": [It("ds", t, at=max(g, lo)) for g, t in dsl]}
    vm = list(vm)
    nv = sum(1 for x in vm if x.kind == "vm"); k = 0
    for x in vm:
        x.at = lo + 1 + (k * ((vmspan or n) - 4 - lo)) // max(nv, 1)
        if x.kind == "vm": k += 1
    st["vm"] = vm
    st["post"] = [It("s", t, at=n - 2 - len(post) + k) for k, t in enumerate(post)]
    budget = 8 if n > 40 else 16
    ex = [(x * (n - 4)) // 32 for x in range(32)]
    st["exp"] = [It("x", f"v_exp_f32 v{S0+br*32+x}, v{S0+br*32+x}", at=ex[x]) for x in range(32)]
    est = [ex[2 * j + 1] + 1 for j in range(16)]
    for itn in range(30):
        st["cvt"] = [It("v", f"v_cvt_pk_bf16_f32 v{P0+br*16+j}, v{S0+br*32+2*j}, v{S0+br*32+2*j+1}", at=est[j]) for j in range(16)]
        packed = pack(n, st, ["exp", "vm", "ds", "cvt", "post"], budget=budget)
        eg = [g for g, items in enumerate(packed) for it in items if it.kind == "x"]
        new = [eg[2 * j + 1] + 1 for j in range(16)]
        if all(a <= b for a, b in zip(new, est)): break
        est = [max(a, b) for a, b in zip(new, est)]
    else: raise RuntimeError("no fixpoint")
    assert not any(it.kind == "x" for it in packed[n])
    em.c(f"--- step {u}")
    if bar:
        emit_packed(em, mf[:BG + 1], packed[:BG + 1] + [[]], None)
        em.ds_all(f"vmcnt({0 if OPT['noside'] else vmw})")
        em.e("s_barrier")
        if hook: hook(em)
        emit_packed(em, mf[BG + 1:], packed[BG + 1:], nxt)
    else:
        emit_packed(em, mf, packed, nxt)

def rowmax_groups(em, v, t):
    e = em.e
    e(f"v_mov_b32 v{t}, v{v}\ns_nop 1\nv_permlane16_swap_b32 v{v}, v{t}\nv_max_f32 v{v}, v{v}, v{t}")
    e(f"v_mov_b32 v{t}, v{v}\ns_nop 1\nv_permlane32_swap_b32 v{v}, v{t}\nv_max_f32 v{v}, v{v}, v{t}")

def emit_pre(em):
    e = em.e
    def mx(qs):
        b = S0 + qs * 8; m = NM + 4 * qs
        return [f"v_max3_f32 v{m}, v{b}, v{b+1}, v{b+2}", f"v_max3_f32 v{m}, v{m}, v{b+3}, v{b+4}", f"v_max3_f32 v{m}, v{m}, v{b+5}, v{b+6}", f"v_max_f32 v{m}, v{m}, v{b+7}", f"v_mov_b32 v{m+1}, v{m}"]
    va = mx(0) + mx(1)
    e(va.pop(0)); e(va.pop(0))
    for kt in range(2):
        for s in range(4):
            em.mfma(qk(0, kt, s, 3, c0="0"))
            em.dsr(kld(1, kt * 4 + s))
            e(va.pop(0))
    import front
    ki = front.key_items()
    em.items(ki[:5])
    for x in mx(2): e(x)
    em.items(ki[5:])
    for x in mx(3): e(x)
    for op in ("v_permlane16_swap_b32", "v_permlane32_swap_b32"):
        for qs in range(4): e(f"{op} v{NM+4*qs}, v{NM+4*qs+1}")
        for qs in range(4):
            m = NM + 4 * qs
            e(f"v_max_f32 v{m}, v{m}, v{m+1}")
            if "16" in op: e(f"v_mov_b32 v{m+1}, v{m}")
    for qs in range(4):
        m = NM + 4 * qs
        for r in (3, 2, 1, 0): e(f"v_sub_f32 v{m+r}, 0, v{m}")
    em.label("K_HAVEMAX")
    for qs in range(4):
        for x in range(0, 8, 2):
            e(f"v_pk_add_f32 {vr(S0+qs*8+x,2)}, {vr(S0+qs*8+x,2)}, {vr(NM+qs*4,2)}")

def period_dma(p):
    its = dma_v(LDS_V + vaddr(4 * p + 4)) + dma_k(kaddr(4 * p + 6)) + dma_v(LDS_V + vaddr(4 * p + 6)) + dma_k(kaddr(4 * p + 8))
    ns = OPT["dmasteps"]
    per = [[] for _ in range(4)]
    k = 0
    for x in its:
        per[min((k * ns) // 16, ns - 1)].append(x)
        if x.kind == "vm": k += 1
    import tail
    per[3] = tail.side_items()
    return per

def snap(em): return (em.ds, em.ds_done, dict(em.ldmap))
def restore(em, s): em.ds, em.ds_done, em.ldmap = s[0], s[1], dict(s[2])

def emit_loop(em, side_hook, last_vm):
    e = em.e
    first = lambda u: step_mf(u)[0][0]
    emit_step(em, 0, do_pv=False, vm=period_dma(0)[0], bar=True, vmw=8)
    import front
    front.emit_rank(em)
    em.ds_all()
    e(f"s_mov_b32 s{S_LOOP}, 0")
    import tail
    tail.side_init(em)
    keep = em.L; em.L = []
    emit_step(em, 7, vm=period_dma(1)[3], vmspan=40); emit_step(em, 8, vm=period_dma(2)[0], bar=True, nxt=first(9))
    em.L = keep
    e(".p2align 6")
    em.label("K_LOOP")
    for b in (1, 2, 3, 4, 5, 6, 7, 8):
        u = b + 8
        post = ()
        if b == 3: post = (f"s_add_u32 s{S_LOOP}, s{S_LOOP}, 1", f"s_cmp_eq_u32 s{S_LOOP}, 8")
        emit_step(em, u, vm=period_dma(u >> 2)[u & 3], bar=(u & 3) == 0, post=post, vmspan=(40 if (u & 3) == 3 else None), hook=((lambda em_, b_=b: side_hook(em_, b_)) if b == 4 else None), nxt=first(u + 1))
        if b == 3:
            e("s_cbranch_scc1 K_LAST"); sv = snap(em)
    e("s_branch K_LOOP")
    restore(em, sv)
    em.label("K_LAST")
    stamp(em, "loop")
    tail.before_last(em)
    e(f"s_cmp_lg_u32 s{S_GD}, 0\ns_cbranch_scc1 K_LASTG")
    sv = snap(em)
    for gd in (0, 1):
        if gd:
            fin = snap(em)
            e("s_branch K_LAST3"); em.label("K_LASTG"); restore(em, sv)
        for u in (60, 61, 62):
            emit_step(em, u, ld_k=(u < 62), vm=last_vm(em, u, gd), bar=(u == 60), nxt=(first(u + 1) if u < 62 else None))
        last_vm(em, 63, gd)
    assert fin[0] == em.ds and fin[2] == em.ldmap
    em.ds_done = min(em.ds_done, fin[1])
    em.label("K_LAST3")
    emit_step(em, 63, do_qk=False, ld_k=False)

def emit_fallback(em):
    e = em.e
    em.label("K_FB")
    e(f"s_mov_b32 s{S_PASS}, 1\ns_waitcnt vmcnt(0) lgkmcnt(0)\ns_barrier")
    for qs in range(4): e(f"v_mov_b32 v{NM+4*qs}, 0xff800000")
    e(f"s_mov_b32 s{S_KOFF}, 0\ns_mov_b32 s{S_LOOP}, 32")
    em.label("K_FBLOOP")
    em.items(dma_k(kaddr(4)))
    e("s_waitcnt vmcnt(0)\ns_barrier")
    for half in range(2):
        for i in range(8): e(kld(4 + half, i))
        e("s_waitcnt lgkmcnt(0)")
        for qs in range(4):
            for kt in range(2):
                for s in range(4): e(qk(0, kt, s, qs, c0="0"))
        e("s_nop 7")
        for qs in range(4):
            b = S0 + qs * 8; m = NM + 4 * qs
            e(f"v_max3_f32 v{m}, v{m}, v{b}, v{b+1}\nv_max3_f32 v{m}, v{m}, v{b+2}, v{b+3}\nv_max3_f32 v{m}, v{m}, v{b+4}, v{b+5}\nv_max3_f32 v{m}, v{m}, v{b+6}, v{b+7}")
    e(f"s_barrier\ns_sub_u32 s{S_LOOP}, s{S_LOOP}, 1\ns_cmp_lg_u32 s{S_LOOP}, 0\ns_cbranch_scc1 K_FBLOOP")
    for qs in range(4):
        m = NM + 4 * qs
        rowmax_groups(em, m, m + 1)
        for r in (3, 2, 1, 0): e(f"v_sub_f32 v{m+r}, 0, v{m}")
    k, v = kv_init()
    em.items(k + v)
    e(f"s_mov_b32 s{S_LOOP}, 0")
    for i in range(128): e(f"v_accvgpr_write_b32 a{AO+i}, 0")
    for i in range(8): e(f"v_accvgpr_write_b32 a{AL+i}, 0")
    e("s_waitcnt vmcnt(0)\ns_barrier")
    for i in range(8): e(kld(0, i))
    e("s_waitcnt lgkmcnt(0)")
    for qs in range(4):
        for kt in range(2):
            for s in range(4): e(qk(0, kt, s, qs, c0="0"))
    for i in range(8): e(kld(1, i))
    e("s_waitcnt lgkmcnt(0)\ns_branch K_HAVEMAX")
```

```python
from lib import *
MF = "v_mfma_f32_16x16x32_bf16"
SMF = "v_smfmac_f32_16x16x64_bf16"
import os
SC = os.environ.get("SCX", "sc0 sc1")
OPT = dict(n0=5, spr=12, pub=1, qgap=42, cpf0=1, stop=0, tkv=1, ttail=0, ck=13, noside=0, fine=0, prof=0, dump="", cpf=1, touchq=0, touchw=1, dmasteps=3, barg=5)
S0, P0, NM, Q0 = 8, 72, 136, 152
KA, VA, DK, DV, L16, SIDX = 216, 220, 228, 232, 234, 235
WOV, WEV, GO4 = 236, 237, 238
T0V, T1V = 254, 255
QACC = 8
KEYS = 104; WQA = 184
DW = 136; DX = 144; STV = 148
LNK = 214
AO, AK, AV, AONE, AL = 0, 128, 160, 208, 248
QA_, QB_, CS_ = 128, 192, 248
QSLOT = [0, 98304, 49152]
LDS_K, LDS_V = 0, 65536
SCR = 147456
U = 32768
L_WG, L_WU, L_WU2, L_WD, L_WD3 = 0, 131072, 98304 + 27648, 98304, 36864
L_XS = 131072 + 20480
L_HX, L_YT = 47104, 16384
SLOTS = {0: (3 * U, 4 * U, U, 2 * U), 1: (2 * U, 4 * U, 3 * U, 16384)}
EXB = {0: (0, 16384), 1: (49152, 0)}
CHK = {0: (U, 1024), 1: (46080, 64)}
SRD_K, SRD_V, SRD_W, SRD_WS, SRD_X, SRD_DBG = 8, 12, 16, 20, 24, 28
SRD_SA, SRD_SB, SRD_WD, SRD_OUT, SRD_FO = 56, 60, 64, 68, 76
S_WAVE, S_KV, S_QB, S_KQ, S_NB = 32, 33, 34, 35, 36
S_W4K, S_KOFF, S_VOFF, S_LOOP, S_PASS = 37, 38, 39, 40, 41
S_WQO, S_XO, S_MW, S_MX = 42, 43, 44, 45
S_MX2 = 85
S_PF, S_PFS, S_PFM = 42, 43, 44
PFV = 253
S_T, S_T2, S_T3 = 46, 47, 48
S_W9 = 49
S_SA, S_SB = 50, 51
S_GD = 52
S_OB = 53
S_OFL = 54
S_ROW = 55
S_SLOT = 80
S_W1K = 3
S_EX0, S_EX1 = 72, 73
S_H0 = 74
S_EXO = 75
S_WOO = 84
S_P = 86
S_SPIN = 100
S_K0, S_K1 = 92, 93
def Sreg(b, qs, kt): return S0 + b * 32 + qs * 8 + kt * 4
def Preg(b, qs): return P0 + b * 16 + qs * 4
def Qf(qs, s): return Q0 + (qs * 4 + s) * 4
def Oacc(T, qs): return AO + (qs * 8 + T) * 4
def Kf(kt, s): return AK + (kt * 4 + s) * 4
def Vf(T): return AV + T * 4
def R4(d): return f"s[{d}:{d+3}]"
NST = [0]
STN = []
def stamp(em, name, fine=0):
    if not OPT["prof"] or (fine and not (OPT["fine"] & fine)): return
    k = NST[0]; NST[0] += 1; STN.append(name)
    em.e(f"s_memrealtime s[98:99]\ns_waitcnt lgkmcnt(0)\nv_writelane_b32 v2, s98, {k}\ns_memtime s[98:99]\ns_waitcnt lgkmcnt(0)\nv_writelane_b32 v2, s98, {k+32}")
    em.ds_done = em.ds - 1
def xstamp(em, k):
    if not OPT["prof"] or not (OPT["fine"] & 4): return
    em.e(f"s_memtime s[98:99]\ns_waitcnt lgkmcnt(0)\nv_writelane_b32 v2, s98, {k+32}")
    em.ds_done = em.ds - 1
def spin(em, n):
    em.e(f"s_sleep {n}\ns_add_u32 s{S_SPIN}, s{S_SPIN}, 1\ns_bitcmp1_b32 s{S_SPIN}, 19\ns_cbranch_scc1 K_END")
def code_prefetch(em, start, end, dst, uniq, forward):
    e = em.e
    e(f"s_getpc_b64 s[96:97]")
    em.label(f"PC_{uniq}")
    if forward: e(f"s_add_u32 s96, s96, {start}-PC_{uniq}\ns_addc_u32 s97, s97, 0")
    else: e(f"s_sub_u32 s96, s96, PC_{uniq}-{start}\ns_subb_u32 s97, s97, 0")
    e(f"s_lshr_b32 s{S_T}, s2, 3\ns_lshl_b32 s{S_T}, s{S_T}, 2\ns_add_u32 s{S_T}, s{S_T}, s{S_WAVE}")
    e(f"s_min_u32 s{S_T}, s{S_T}, (({end}-{start})>>10)-1\ns_lshl_b32 s{S_T}, s{S_T}, 10")
    e(f"v_lshlrev_b32 v7, 4, v1\nv_add_u32 v7, s{S_T}, v7")
    return em.vmem(f"global_load_dwordx4 {dst}, v7, s[96:97]")
```

```python
from defs import *

def reduce32(em, v, t):
    e = em.e
    for rot in (8, 4, 2, 1):
        e(f"s_nop 1\nv_add_f32_dpp v{t}, v{v}, v{v} row_ror:{rot} row_mask:0xf bank_mask:0xf")
        v, t = t, v
    e(f"v_mov_b32 v{t}, v{v}\ns_nop 1\nv_permlane16_swap_b32 v{v}, v{t}\nv_add_f32 v{v}, v{v}, v{t}")
def bf16r(em, d, s): em.e(f"v_cvt_pk_bf16_f32 v{d}, v{s}, v{s}\nv_lshlrev_b32 v{d}, 16, v{d}")

def q_dma(c):
    sl = QSLOT[c % 3]
    r = []
    for h in range(2):
        r.append(It("s", f"s_add_u32 m0, s{(S_MX, S_MX2)[h]}, {sl + 32768}"))
        r += [It("vm", f"buffer_load_dwordx4 v{DX+2*h+i}, {R4(SRD_X)}, s{S_XO} offen offset:{i*1024} lds", tag=("q", c)) for i in range(2)]
    r.append(It("s", f"s_add_u32 s{S_XO}, s{S_XO}, 128"))
    for h in range(2):
        r.append(It("s", f"s_add_u32 m0, s{S_MW}, {sl + h*4096}"))
        r += [It("vm", f"buffer_load_dwordx4 v{DW+4*h+i}, {R4(SRD_W)}, s{S_WQO} offen offset:{i*1024} lds", tag=("q", c)) for i in range(4)]
    r.append(It("s", f"s_add_u32 s{S_WQO}, s{S_WQO}, {64*8192}"))
    return r
def dma_k(lds, tag=None):
    return [It("s", f"s_add_u32 m0, s{S_W4K}, {lds}")] + \
           [It("vm", f"buffer_load_dwordx4 v{DK+i}, {R4(SRD_K)}, s{S_KOFF} offen offset:{i*1024} lds", tag=tag) for i in range(4)] + \
           [It("s", f"s_add_u32 s{S_KOFF}, s{S_KOFF}, 16384")]
def dma_v(lds, tag=None):
    return [It("s", f"s_add_u32 m0, s{S_W4K}, {lds}")] + \
           [It("vm", f"buffer_load_dwordx4 v{DV+(i&1)}, {R4(SRD_V)}, s{S_VOFF} offen offset:{i*1024} lds", tag=tag) for i in range(4)] + \
           [It("s", f"s_add_u32 s{S_VOFF}, s{S_VOFF}, 16384")]
def kaddr(b): return LDS_K + (((b - 2) >> 2) & 1) * 32768 + (b & 3) * 8192
def vaddr(b): return (1 - ((b >> 2) & 1)) * 32768 + (b & 3) * 8192
def kv_init():
    k = [It("s", f"s_mov_b32 s{S_KOFF}, 0")] + dma_k(kaddr(0)) + dma_k(kaddr(2)) + dma_k(kaddr(4))
    v = [It("s", f"s_mov_b32 s{S_VOFF}, 0")] + dma_v(LDS_V + vaddr(0)) + dma_v(LDS_V + vaddr(2))
    return k, v

def as_items(text):
    r = []
    for l in text.split("\n"):
        l = l.strip()
        if l: r.append(It("s" if l.startswith("s_") else "v", l.replace(" ; ", "\n")))
    return r
class Rec:
    def __init__(self): self.t = []
    def e(self, s): self.t.append(s)
SHADOW = []
def emit_front(em, kname):
    e = em.e
    P = S_P
    e("s_cmp_ge_u32 s2, 256\ns_cbranch_scc1 K_END")
    stamp(em, "entry")
    if OPT["cpf0"]:
        e("s_getpc_b64 s[96:97]\nv_lshlrev_b32 v7, 5, v0")
        em.vmem("global_load_dword a4, v7, s[96:97]")
    e(f"s_load_dwordx8 s[{P+2}:{P+9}], s[0:1], 0")
    e(f"s_load_dwordx2 s[{P}:{P+1}], s[0:1], {KA_WR}")
    e(f"s_load_dwordx4 s[4:7], s[0:1], {KA_DBG}")
    e("v_and_b32 v1, 63, v0\nv_lshrrev_b32 v5, 6, v0")
    e(f"s_bfe_u32 s{S_KQ}, s2, 0x20001\ns_bfe_u32 s{S_NB}, s2, 0x20003")
    e(f"v_readfirstlane_b32 s{S_WAVE}, v5")
    e(f"s_lshl_b32 s{S_KV}, s{S_KQ}, 2\ns_add_u32 s{S_KV}, s{S_KV}, s{S_NB}")
    e(f"s_and_b32 s{S_QB}, s2, 1\ns_lshl_b32 s{S_QB}, s{S_QB}, 3\ns_lshr_b32 s{S_T}, s2, 5\ns_add_u32 s{S_QB}, s{S_QB}, s{S_T}")
    e(f"s_lshl_b32 s{S_T}, s{S_QB}, 7\ns_lshl_b32 s{S_T2}, s{S_KV}, 3\ns_add_u32 s3, s{S_T}, s{S_T2}")
    LR, LT, LO, LW = 8, 9, 10, 11
    e(f"v_lshrrev_b32 v{LR}, 5, v0\nv_add_u32 v{LR}, s3, v{LR}\nv_and_b32 v{LT}, 31, v0\nv_mul_u32_u24 v{LW}, 12, v{LT}")
    e(f"v_mul_u32_u24 v{LO}, 0x480, v{LR}\nv_add_u32 v{LO}, v{LO}, v{LW}")
    e(f"v_lshrrev_b32 v5, 3, v1\nv_and_b32 v6, 7, v1\nv_xor_b32 v6, v6, v5\nv_mul_u32_u24 v5, 0x480, v5\nv_lshl_add_u32 v{DX}, v6, 4, v5")
    e(f"v_add_u32 v{DX+1}, {9216-1024}, v{DX}\nv_add_u32 v{DX+2}, {18432}, v{DX}\nv_add_u32 v{DX+3}, {27648-1024}, v{DX}")
    e(f"s_lshl_b32 s{S_T2}, s{S_WAVE}, 5\ns_add_u32 s{S_ROW}, s{S_T}, s{S_T2}\ns_mul_i32 s{S_XO}, s{S_ROW}, 1152")
    e(f"s_lshl_b32 s{S_W4K}, s{S_WAVE}, 12\ns_lshr_b32 s{S_T}, s{S_KQ}, 1\ns_lshl_b32 s{S_T2}, s{S_T}, 11\ns_or_b32 s{S_MX}, s{S_W4K}, s{S_T2}\ns_xor_b32 s{S_MX2}, s{S_MX}, 2048")
    e(f"s_lshl_b32 s{S_T}, s{S_T}, 4\ns_add_u32 s{S_ROW}, s{S_ROW}, s{S_T}")
    X, W, F = 12, 24, 40
    xr = [X + 4 * (i // 3) + i % 3 for i in range(9)]
    wr = [W + 4 * (i // 3) + i % 3 for i in range(9)]
    e(f"s_mov_b32 s{SRD_X+2}, {hex(2048*1152)}\ns_mov_b32 s{SRD_X+3}, 0x00020000")
    e("s_waitcnt lgkmcnt(0)")
    stamp(em, "karg", 1)
    e(f"s_mov_b32 s{SRD_X}, s{P+2}\ns_and_b32 s{SRD_X+1}, s{P+3}, 0xffff")
    for i in range(3): em.vmem(f"buffer_load_dwordx3 {vr(X+4*i,3)}, v{LO}, {R4(SRD_X)}, 0 offen offset:{i*384}", "lnx")
    srd(em, SRD_DBG, P, 1152)
    for i in range(3): em.vmem(f"buffer_load_dwordx3 {vr(W+4*i,3)}, v{LW}, {R4(SRD_DBG)}, 0 offen offset:{i*384}", "lnw")
    q0 = q_dma(0)
    em.items(q0[:7])
    srd(em, SRD_W, P + 8, 576 * 8192)
    e(f"v_lshrrev_b32 v5, 5, v1\nv_and_b32 v6, 31, v1\nv_lshlrev_b32 v7, 1, v5\nv_xor_b32 v6, v6, v7\nv_lshlrev_b32 v6, 4, v6\nv_lshl_add_u32 v{DW}, v5, 13, v6")
    e(f"s_lshl_b32 s{S_WQO}, s{S_KV}, 9\ns_lshl_b32 s{S_T}, s{S_WAVE}, 17\ns_add_u32 s{S_WQO}, s{S_WQO}, s{S_T}\ns_lshl_b32 s{S_MW}, s{S_WAVE}, 13")
    for i in range(1, 8):
        x = (((2 * i) & 3) | (((i >> 2) & 1) << 2)) << 5
        if x: e(f"v_xor_b32 v{DW+i}, {x}, v{DW}\nv_add_u32 v{DW+i}, {i*16384 - (i&3)*1024}, v{DW+i}")
        else: e(f"v_add_u32 v{DW+i}, {i*16384 - (i&3)*1024}, v{DW}")
    em.items(q0[7:7 + OPT["n0"]])
    if OPT["cpf"]: code_prefetch(em, kname, "K_CODE_END", "a[0:3]", "a", False)
    stamp(em, "start")
    e(f"s_load_dwordx2 s[{SRD_OUT}:{SRD_OUT+1}], s[0:1], {KA_WO}")
    e(f"s_load_dwordx4 s[{SRD_SA}:{SRD_SA+3}], s[0:1], {KA_WG}")
    e(f"s_load_dwordx4 s[{SRD_WD}:{SRD_WD+3}], s[0:1], {KA_WD}")
    e(f"s_mov_b32 s{S_SPIN}, 0\nv_and_b32 v3, 15, v1\nv_lshrrev_b32 v4, 4, v1\nv_lshlrev_b32 v{L16}, 4, v1\nv_mov_b32 v{T1V}, 1")
    e(f"s_lshl_b32 s{S_T}, s{S_KV}, 19")
    srd(em, SRD_K, P + 4, 524288, add=f"s{S_T}")
    srd(em, SRD_V, P + 6, 524288, add=f"s{S_T}")
    srd(em, SRD_WS, 6, WS_SIZE)
    RP, CP = 250, 251
    e(f"v_bfe_u32 v{RP}, v1, 2, 2\nv_and_b32 v{CP}, 3, v1")
    e(f"v_and_b32 v5, 1, v4\nv_lshl_add_u32 v5, v5, 2, v{RP}\ns_lshl_b32 s{S_T}, s{S_WAVE}, 1\nv_xor_b32 v5, s{S_T}, v5\nv_lshlrev_b32 v5, 5, v5")
    e(f"v_lshl_add_u32 v6, v4, 3, v{RP}\nv_lshl_add_u32 v5, v6, 9, v5\nv_lshl_add_u32 v{WQA}, v{CP}, 3, v5")
    for t in range(1, 8): e(f"v_xor_b32 v{WQA+t}, {t*32}, v{WQA}")
    e(f"v_and_b32 v5, 7, v3\nv_xor_b32 v5, v5, v4\nv_lshlrev_b32 v5, 4, v5\nv_lshl_add_u32 v5, v3, 7, v5\nv_add_u32 v5, s{S_W4K}, v5\nv_add_u32 v{WQA+8}, 0x8000, v5\nv_xor_b32 v{WQA+9}, 64, v{WQA+8}")
    for k in (1, 2):
        for t in range(10): e(f"v_add_u32 v{WQA+10*k+t}, {hex(QSLOT[k])}, v{WQA+t}")
    e(f"v_bfe_u32 v5, v1, 1, 1\nv_bfe_u32 v6, v1, 5, 1\nv_cmp_eq_u32 vcc, v5, v6\nv_mov_b32 v7, 0x3f803f80\nv_and_b32 v5, 1, v1\nv_cndmask_b32 v7, 0, v7, vcc")
    for i in range(4): e(f"v_accvgpr_write_b32 a{AONE+i}, v7")
    e(f"v_mul_u32_u24 v5, 0xaaaa, v5\nv_add_u32 v{SIDX}, 0x4444, v5")
    for i in range(8): e(f"v_accvgpr_write_b32 a{CS_+i}, 0")
    FX, FE = S_KOFF, S_VOFF
    e(f"s_lshl_b32 s{S_T}, s{S_QB}, 2\ns_add_u32 s{S_T2}, s{S_T}, s{S_KQ}\ns_lshl_b32 s{S_T2}, s{S_T2}, 2\ns_add_u32 s{S_T2}, s{S_T2}, s{S_WAVE}\ns_lshl_b32 s{S_OFL}, s{S_T2}, 7\ns_add_u32 s{S_OFL}, s{S_OFL}, {hex(WS_OFL)}")
    e(f"s_add_u32 s{S_T2}, s{S_T}, s{S_NB}\ns_lshl_b32 s{S_T2}, s{S_T2}, 2\ns_add_u32 s{S_T2}, s{S_T2}, s{S_WAVE}\ns_lshl_b32 s{S_T2}, s{S_T2}, 5\ns_add_u32 s{S_T2}, s{S_T2}, s{S_KQ}\ns_lshl_b32 s{S_T2}, s{S_T2}, 2\ns_add_u32 s{FX}, s{S_T2}, {hex(WS_XFL)}")
    e(f"s_add_u32 s{S_T}, s{S_T}, s{S_WAVE}\ns_lshl_b32 s{S_T}, s{S_T}, 5\ns_add_u32 s{S_T}, s{S_T}, s{S_KV}\ns_lshl_b32 s{S_T}, s{S_T}, 2\ns_add_u32 s{FE}, s{S_T}, {hex(WS_EFL)}")
    e(f"s_lshl_b32 s{S_T}, s{S_NB}, 3\ns_add_u32 s{S_T}, s{S_T}, s{S_OFL}\nv_lshl_add_u32 v60, v1, 2, s{S_T}\nv_mov_b32 v61, 0\nv_writelane_b32 v60, s{FX}, 2\nv_writelane_b32 v60, s{FE}, 3")
    C576, EPS, MSK = P + 4, P + 5, P + 6
    e(f"s_mov_b32 s{C576}, 0x3ae38e39\ns_mov_b32 s{EPS}, 0x3727c5ac\ns_mov_b32 s{MSK}, 0xffff0000")
    stamp(em, "setup", 1)
    em.items(q0[7 + OPT["n0"]:])
    e("s_mov_b64 exec, 15")
    em.vmem(f"buffer_store_dword v61, v60, {R4(SRD_WS)}, 0 offen {SC}")
    e("s_mov_b64 exec, -1")
    stamp(em, "dma1", 1)
    em.wait_vm("lnw")
    stamp(em, "lnx", 1)
    spr = q_dma(1); cnt = [0]
    def e(t):
        for l in t.split("\n"):
            em.e(l)
            if l.startswith("v_"):
                cnt[0] += 1
                if cnt[0] % OPT["spr"] == 0 and spr:
                    while spr[0].kind == "s": em.e(spr.pop(0).text)
                if cnt[0] % OPT["spr"] == 1 and spr and spr[0].kind == "vm" and cnt[0] > 1:
                    em.item(spr.pop(0))
                    if spr and all(x.kind == "s" for x in spr):
                        while spr: em.e(spr.pop(0).text)
    class W_:
        pass
    ew = W_(); ew.e = e
    for i in range(9): e(f"v_lshlrev_b32 v{F+2*i}, 16, v{xr[i]}\nv_and_b32 v{F+2*i+1}, s{MSK}, v{xr[i]}")
    A0, A1, A2, A3, A4, A5, A6, A7 = 64, 65, 66, 67, 68, 69, 70, 71
    pr = lambda a: vr(a, 2)
    e(f"v_pk_add_f32 {pr(A0)}, {pr(F)}, {pr(F+2)}\nv_pk_add_f32 {pr(A2)}, {pr(F+4)}, {pr(F+6)}")
    for i in range(4, 9): e(f"v_pk_add_f32 {pr(A0+2*(i&1))}, {pr(A0+2*(i&1))}, {pr(F+2*i)}")
    e(f"v_pk_add_f32 {pr(A0)}, {pr(A0)}, {pr(A2)}\nv_add_f32 v{A0}, v{A0}, v{A1}")
    reduce32(ew, A0, A1)
    e(f"v_mul_f32 v{A0}, s{C576}, v{A0}")
    D = 72
    for i in range(9): e(f"v_pk_add_f32 {pr(D+2*i)}, {pr(F+2*i)}, {pr(A0)} op_sel_hi:[1,0] neg_lo:[0,1] neg_hi:[0,1]")
    e(f"v_pk_mul_f32 {pr(A2)}, {pr(D)}, {pr(D)}\nv_pk_mul_f32 {pr(A4)}, {pr(D+2)}, {pr(D+2)}")
    for i in range(2, 9): e(f"v_pk_fma_f32 {pr(A2+2*(i&1))}, {pr(D+2*i)}, {pr(D+2*i)}, {pr(A2+2*(i&1))}")
    e(f"v_pk_add_f32 {pr(A2)}, {pr(A2)}, {pr(A4)}\nv_add_f32 v{A5}, v{A2}, v{A3}")
    bf16r(ew, A0, A0)
    sub = []
    for i in range(9):
        sub += [f"v_pk_add_f32 {pr(F+2*i)}, {pr(F+2*i)}, {pr(A0)} op_sel_hi:[1,0] neg_lo:[0,1] neg_hi:[0,1]", f"v_cvt_pk_bf16_f32 v{xr[i]}, v{F+2*i}, v{F+2*i+1}"]
    for i in range(9):
        sub += [f"v_lshlrev_b32 v{F+2*i}, 16, v{xr[i]}", f"v_and_b32 v{F+2*i+1}, s{MSK}, v{xr[i]}"]
    rec = Rec(); reduce32(rec, A5, A4)
    rec.e(f"v_mul_f32 v{A5}, s{C576}, v{A5}"); bf16r(rec, A5, A5); rec.e(f"v_add_f32 v{A5}, s{EPS}, v{A5}"); bf16r(rec, A5, A5)
    rec.e(f"v_sqrt_f32 v{A5}, v{A5}\ns_nop 1"); bf16r(rec, A1, A5); rec.e(f"v_rcp_f32 v{A2}, v{A1}\ns_nop 1")
    for l in "\n".join(rec.t).split("\n"):
        if l == "s_nop 1": e(sub.pop(0)); e(sub.pop(0))
        else: e(l)
    for l in sub: e(l)
    e(f"v_lshlrev_b32 v5, 3, v{LR}\ns_mov_b32 s{S_T}, {hex(WS_STAT)}\ns_mov_b32 exec_lo, 1\ns_mov_b32 exec_hi, 1")
    em.vmem(f"buffer_store_dwordx2 v[{A0}:{A1}], v5, {R4(SRD_WS)}, s{S_T} offen {SC}")
    e("s_mov_b64 exec, -1")
    e(f"v_mov_b32 v{A6}, 0\ns_waitcnt lgkmcnt(0)")
    q_first(em)
    for i in range(9):
        a = F + 2 * i; q = D + 2 * i
        e(f"v_pk_mul_f32 {pr(q)}, {pr(a)}, {pr(A2)} op_sel_hi:[1,0]")
        e(f"v_pk_fma_f32 {pr(a)}, {pr(q)}, {pr(A0)}, {pr(a)} op_sel:[0,1,0] op_sel_hi:[1,1,1] neg_lo:[1,0,0] neg_hi:[1,0,0]")
        e(f"v_pk_fma_f32 {pr(q)}, {pr(a)}, {pr(A2)}, {pr(q)} op_sel_hi:[1,0,1]")
        e(f"v_cvt_pk_bf16_f32 v{xr[i]}, v{q}, v{q+1}")
        e(f"v_dot2_f32_bf16 v{A6}, v{xr[i]}, v{wr[i]}, v{A6}")
        if i % 3 == 2: em.vmem(f"buffer_store_dwordx3 {vr(X+4*(i//3),3)}, v{LO}, {R4(SRD_WS)}, 0 offen offset:{(i//3)*384} {SC}")
    e(f"v_sub_u32 v{A4}, 2047, v{LR}\nv_lshlrev_b32 v5, 2, v{LR}")
    reduce32(ew, A6, A7)
    e(f"v_cvt_pk_bf16_f32 v{A6}, v{A6}, v{A6}\nv_ashrrev_i32 v{A7}, 31, v{A6}\nv_or_b32 v{A7}, 0x80000000, v{A7}\nv_xor_b32 v{A6}, v{A6}, v{A7}")
    e(f"v_and_or_b32 v{LNK}, v{A6}, s{MSK}, v{A4}")
    em.items(spr)
    e(f"s_mov_b32 s{S_T}, {hex(WS_KEY)}\ns_mov_b32 exec_lo, 1\ns_mov_b32 exec_hi, 1")
    em.vmem(f"buffer_store_dword v{LNK}, v5, {R4(SRD_WS)}, s{S_T} offen {SC}", "lnst")
    e("s_mov_b64 exec, -1")
    srd(em, SRD_DBG, 4, 256)
    stamp(em, "ln")
    r = Rec(); e = r.e
    e(f"s_lshl_b32 s{S_T}, s{S_WAVE}, 2\nv_bfrev_b32 v5, v4\nv_lshrrev_b32 v5, 30, v5\nv_xor_b32 v5, s{S_T}, v5\nv_xor_b32 v5, v5, v3\nv_lshlrev_b32 v5, 4, v5\nv_lshl_add_u32 v{KA}, v3, 8, v5")
    for s in range(1, 4): e(f"v_xor_b32 v{KA+s}, {s*64}, v{KA}")
    e(f"v_lshl_add_u32 v6, v4, 2, v{RP}\nv_and_b32 v5, 7, v6\nv_lshlrev_b32 v5, 5, v5\nv_lshl_add_u32 v5, v6, 8, v5\nv_lshl_add_u32 v5, v{CP}, 3, v5\nv_add_u32 v{VA}, {hex(LDS_V)}, v5")
    for T in range(1, 8): e(f"v_xor_b32 v{VA+T}, {T*32}, v{VA}")
    e(f"v_xor_b32 v5, v4, v3\nv_lshlrev_b32 v5, 4, v5\nv_lshl_add_u32 v5, v4, 8, v5\nv_add_u32 v{DK}, s{S_W4K}, v5")
    for i in range(1, 4): e(f"v_xor_b32 v{DK+i}, {64*i}, v{DK}")
    e(f"v_lshlrev_b32 v5, 1, v4\nv_xor_b32 v5, v5, v3\nv_lshlrev_b32 v5, 4, v5\nv_lshl_add_u32 v5, v4, 8, v5\nv_add_u32 v{DV}, s{S_W4K}, v5\nv_xor_b32 v{DV+1}, 128, v{DV}")
    e(f"s_mov_b32 s{S_PASS}, 0\ns_mul_i32 s{S_W9}, s{S_WAVE}, 9216\ns_lshl_b32 s{S_W1K}, s{S_WAVE}, 10")
    e(f"s_lshl_b32 s{S_OB}, s{S_QB}, 4\ns_add_u32 s{S_OB}, s{S_OB}, s{S_KV}\ns_lshl_b32 s{S_OB}, s{S_OB}, 2\ns_add_u32 s{S_OB}, s{S_OB}, s{S_WAVE}\ns_lshl_b32 s{S_OB}, s{S_OB}, 14\ns_add_u32 s{S_OB}, s{S_OB}, {hex(WS_O)}")
    e(f"v_add_u32 v5, s{S_T}, v4\nv_and_b32 v6, 7, v5\nv_lshlrev_b32 v6, 1, v6\nv_xor_b32 v6, v6, v3\nv_mul_u32_u24 v5, 0x480, v5\nv_lshl_add_u32 v{WOV}, v6, 4, v5")
    e(f"v_lshrrev_b32 v5, 3, v0\nv_and_b32 v6, 6, v5\nv_and_b32 v7, 7, v1\nv_xor_b32 v6, v6, v7\nv_mul_u32_u24 v5, 0x480, v5\nv_lshl_add_u32 v{WEV}, v6, 4, v5")
    e(f"v_lshrrev_b32 v5, 2, v1\nv_mul_u32_u24 v5, 0x2400, v5\nv_lshl_add_u32 v{GO4}, v{CP}, 4, v5")
    e(f"s_lshl_b32 s{S_T2}, s{S_NB}, 8\ns_mul_i32 s{S_WOO}, s{S_KQ}, {1024*1152}\ns_add_u32 s{S_WOO}, s{S_WOO}, s{S_T2}")
    e(f"s_mul_i32 s{S_EXO}, s{S_KV}, {256*1152}\ns_add_u32 s{S_SB}, s{S_EXO}, s{S_T2}\ns_add_u32 s{S_EXO}, s{S_EXO}, 1024")
    e(f"s_mov_b64 s[{P}:{P+1}], s[{SRD_OUT}:{SRD_OUT+1}]\ns_mov_b64 s[{P+2}:{P+3}], s[{SRD_SA}:{SRD_SA+1}]\ns_mov_b64 s[{P+4}:{P+5}], s[{SRD_SA+2}:{SRD_SA+3}]")
    srd(r, SRD_OUT, SRD_WD + 2, 2048 * 1152)
    srd(r, SRD_WD, SRD_WD, 4608 * 1152)
    srd(r, SRD_SA, P + 2, 576 * 9216)
    srd(r, SRD_SB, P + 4, 576 * 9216)
    e(f"s_and_b32 s{S_GD}, s2, 7\ns_mul_i32 s{S_GD}, s{S_GD}, 18\ns_lshr_b32 s{S_T2}, s2, 3\ns_add_u32 s{S_GD}, s{S_GD}, s{S_T2}")
    e(f"s_lshl_b32 s{S_SA}, s{S_GD}, 6\ns_mul_i32 s{S_T2}, s{S_WAVE}, {16*9216}\ns_add_u32 s{S_SA}, s{S_SA}, s{S_T2}\ns_add_u32 s{S_GD}, s{S_GD}, 1")
    for k in range(4): e(f"s_mov_b32 s{S_SLOT+k}, {SLOTS[0][k]}")
    e(f"s_mov_b32 s{S_EX0}, {EXB[0][0]}\ns_mov_b32 s{S_EX1}, {EXB[0][1]}")
    sel = [(S_GD, None), (S_SLOT, SLOTS[1][0]), (S_SLOT + 2, SLOTS[1][2]), (S_SLOT + 3, SLOTS[1][3]), (S_EX0, EXB[1][0]), (S_EX1, EXB[1][1])]
    assert SLOTS[0][1] == SLOTS[1][1]
    for reg, val in sel:
        e(f"s_cmp_lt_u32 s2, 144 ; " + (f"s_cselect_b32 s{reg}, s{reg}, 0" if val is None else f"s_cselect_b32 s{reg}, {val}, s{reg}"))
    e(f"s_cmp_lt_u32 s2, 144 ; s_cselect_b32 s{S_H0}, 2, 4")
    SHADOW[:] = as_items("\n".join(r.t))

def qacc(tau, lam): return QACC + (((tau >> 3) * 2 + lam) * 8 + (tau & 7)) * 4
CSA = (5, 6, 7, T0V)
def csreg(hh, t): return (184 + 4 * t) if hh == 0 else (24 + 4 * t if t < 4 else 136 + 4 * (t - 4) if t < 7 else 244)
def cs_ld(hh, t): return f"ds_read_b128 {vr(csreg(hh,t),4)}, v{CSA[t>>1]} offset:{hh*512 + (t&1)*64}"
def aset(tau): return QA_ + tau * 4
def bset(ks, lam): return QB_ + ((ks & 1) * 2 + lam) * 4
def a_ld(ks, tau):
    c, s = ks >> 1, ks & 1
    return [f"ds_read_b64_tr_b16 {ar(aset(tau)+2*j,2)}, v{WQA+10*(c%3)+(tau&7)} offset:{s*16384 + j*2048 + (tau>>3)*256}" for j in range(2)]
def b_ld(ks, lam):
    c, s = ks >> 1, ks & 1
    return f"ds_read_b128 {ar(bset(ks,lam),4)}, v{WQA+10*(c%3)+8+s} offset:{lam*2048}"
order = [0, 1, 8, 9] + [t for t in range(16) if t not in (0, 1, 8, 9)]
def q_first(em):
    em.wait_vm(("q", 0))
    em.e("s_barrier")
    for lam in range(2): em.dsr(b_ld(0, lam))
    for tau in order:
        for t in a_ld(0, tau): em.dsr(t)
def emit_qproj(em):
    e = em.e
    kin, vin = kv_init()
    kin[-2].tag = "kin"; vin[-2].tag = "vin"
    zero = [It("v", f"v_accvgpr_write_b32 a{AO+i}, 0") for i in range(128)]
    side = list(SHADOW)
    pend = q_dma(2); nextg = 2; PH = [0]
    BG = 6
    PUB = OPT["pub"]
    CK = OPT["ck"]
    def mflist(ks):
        mf = []; fr = {}
        for tau in order:
            for lam in range(2):
                acc = qacc(tau, lam)
                mf.append(f"{MF} {vr(acc,4)}, {ar(aset(tau),4)}, {ar(bset(ks,lam),4)}, {'0' if ks == 0 else vr(acc,4)}")
            if tau in (1, 9):
                mf.append(f"{SMF} {ar(CS_+4*(tau>>3),4)}, {ar(AONE,4)}, {ar(aset(tau-1),8)}, v{SIDX}")
                fr[tau - 1] = len(mf) - 1
            if tau not in (0, 8): fr[tau] = len(mf) - 1
        return mf, fr
    c_ = f2u(128 ** -0.5 * 1.4426950408889634)
    for ks in range(18):
        c, s = ks >> 1, ks & 1
        mf, fr = mflist(ks)
        n = len(mf)
        bar = (s == 1)
        bg = BG if c < 8 else 25
        lo = bg + 1 if bar else 0
        ds = []
        if ks + 1 < 18:
            ds += [It("ds", b_ld(ks + 1, lam), at=lo) for lam in range(2)]
            for tau in order: ds += [It("ds", t, at=max(lo, fr[tau])) for t in a_ld(ks + 1, tau)]
        GAPV = OPT["qgap"]
        cur = []; k = 0; g = nextg
        def takeupto(limit):
            nonlocal g, k
            while pend and g < limit:
                grp = []
                while pend and pend[0].kind != "vm": grp.append(pend.pop(0))
                for j, x in enumerate(grp): x.at = max(first_ok, g - len(grp) + j)
                cur.extend(grp)
                if pend:
                    x = pend.pop(0); x.at = max(g, first_ok + len(grp)); cur.append(x); k += 1; PH[0] += GAPV; g = x.at + PH[0] // 10; PH[0] %= 10
        first_ok = 0
        if bar and c < 8:
            takeupto(bg - 1)
            first_ok = lo; g = max(g, lo + 1)
            new = q_dma(c + 3) if c + 3 < 9 else kin if c == 6 else []
            if ks == 1 and OPT["tkv"]:
                new = new + [It("v", f"v_and_b32 v{T0V}, 1, v1"), It("v", f"v_lshlrev_b32 v{T0V}, 21, v{T0V}"), It("s", f"s_add_u32 s{S_T3}, s{S_WQO}, 0"),
                             It("vm", f"buffer_load_dword v252, v{T0V}, {R4(SRD_W)}, s{S_T3} offen")]
            if ks == 7 and OPT["tkv"]:
                new = new + [It("s", f"s_lshr_b32 s{S_T3}, s2, 5"), It("s", f"s_lshl_b32 s{S_T3}, s{S_T3}, 13"), It("v", f"v_lshlrev_b32 v{T0V}, 5, v0"),
                             It("vm", f"buffer_load_dword v252, v{T0V}, {R4(SRD_K)}, s{S_T3} offen"), It("vm", f"buffer_load_dword v253, v{T0V}, {R4(SRD_V)}, s{S_T3} offen")]
            if ks == CK: new = new + stat_items()
            if ks == 15: new = vin
            pend.extend(new)
        if ks < 17: takeupto(n - 1)
        nextg = max(0, g - n)
        room = 2 * n - len(ds) - 2 * k - (4 if bar else 2)
        st = {"dma": cur, "ds": ds}
        TC = 136
        if ks == 16:
            assert not side
            side = as_items(f"s_lshl_b32 s{S_T}, s{S_WAVE}, 7\ns_add_u32 s{S_T}, s{S_T}, {SCR}\nv_lshl_add_u32 v{TC+8}, v3, 2, s{S_T}\nv_lshl_add_u32 v5, v4, 4, s{S_T}")
            side += [It("v", f"v_xor_b32 v{CSA[k]}, {k*128}, v5") for k in range(1, 4)]
            side += as_items(f"v_readlane_b32 s{S_K0}, v{LNK}, 0\nv_readlane_b32 s{S_K1}, v{LNK}, 32")
        if ks == 17:
            assert not side and not zero and not pend, (len(side), len(zero), len(pend))
            sd = [It("s", "s_nop 0", after_vm="st2"), It("x", f"v_rcp_f32 v{STV+1}, v{STV+1}"), It("x", f"v_rcp_f32 v{STV+3}, v{STV+3}")]
            sd += as_items(f"v_sub_f32 v{STV}, 0, v{STV}\nv_sub_f32 v{STV+2}, 0, v{STV+2}\nv_mul_f32 v{STV+1}, {hex(c_)}, v{STV+1}\nv_mul_f32 v{STV+3}, {hex(c_)}, v{STV+3}")
            cs = []
            cs += [It("v", f"v_accvgpr_read_b32 v{TC+i}, a{CS_+i}", at=(10 if i < 4 else 15)) for i in range(8)]
            cs += [It("v", f"v_add_f32 v{TC+2*i}, v{TC+2*i}, v{TC+2*i+1}") for i in range(4)]
            csw = [It("ds", f"ds_write_b32 v{TC+8}, v{TC+2*i} offset:{(i>>1)*512 + (i&1)*64}", at=19) for i in range(4)]
            post = [It("ds", f"ds_read_b128 {ar(Kf(i>>2,i&3),4)}, v{KA+(i&3)} offset:{kaddr(0) + (i>>2)*4096}", at=fr[i]) for i in range(8)] + [It("ds", cs_ld(0, k), at=lo) for k in range(8)]
            for x in sd: x.at = 21
            zl = [It("v", f"v_accvgpr_write_b32 a{AL+i}, 0", at=lo) for i in range(8)]
            st = {"cs": cs, "csw": csw, "side": sd, "ds": post, "zl": zl}
            packed = pack(n, st, ["cs", "csw", "ds", "side", "zl"], reserve={bg: 8})
            g_add = max(g for g in range(n) for x in packed[g] if x in cs); g_w = min(g for g in range(n) for x in packed[g] if x in csw)
            assert g_add < g_w and max(g for g in range(n) for x in packed[g] if x in csw) < bg, (g_add, g_w)
        else:
            sd = []
            while side and room > 0:
                x = side.pop(0); sd.append(x)
                if x.kind != "s": room -= 1
                if len(sd) >= 30: break
            st["side"] = sd
            if ks >= 2 * PUB + 2 and room > 0:
                st["zero"] = zero[:room]; zero = zero[room:]
            packed = pack(n, st, ["dma", "ds", "side", "zero"], reserve=({bg: 8} if bar else None))
        nxt = mflist(ks + 1)[0][0] if ks + 1 < 18 else None
        if not bar:
            emit_packed(em, mf, packed, nxt)
            continue
        emit_packed(em, mf[:bg + 1], packed[:bg] + [[], []], None)
        if ks == CK: cnt_check(em)
        assert not any(x.tag == ("q", c + 1) and not x.done for x in pend + cur), ks
        need = em.tags[("q", c + 1)] if c < 7 else em.tags["kin"]
        if c == PUB: need = max(need, em.tags["lnst"])
        em.ds_all(f"vmcnt({em.vm_n(need)})" if c < 8 else "")
        e("s_barrier")
        stamp(em, f"b{c}", 1)
        if c == PUB or ks == CK - 2:
            lab = f"K_W0_{ks}"
            e(f"s_cmp_lg_u32 s{S_WAVE}, 0\ns_cbranch_scc1 {lab}")
            if c == PUB:
                e(f"s_lshl_b32 s{S_T3}, s{S_QB}, 4\ns_mov_b64 exec, 1")
                e(f"buffer_atomic_add v{T1V}, v{L16}, {R4(SRD_DBG)}, s{S_T3} offen sc1\ns_mov_b64 exec, -1")
            else:
                e(f"v_lshlrev_b32 v{T1V}, 4, v3\nbuffer_load_dword v{T0V}, v{T1V}, {R4(SRD_DBG)}, 0 offen {SC}")
                em.tags["cnt"] = em.vm - 1
            em.label(lab)
        em.items(packed[bg])
        emit_packed(em, mf[bg + 1:], packed[bg + 1:], nxt)
    assert not pend

def cnt_check(em):
    e = em.e
    e(f"s_cmp_lg_u32 s{S_WAVE}, 0\ns_cbranch_scc1 K_CNTOK")
    em.wait_vm("cnt")
    e(f"v_cmp_gt_u32 vcc, 16, v{T0V}\ns_cbranch_vccz K_CNTOK")
    em.label("K_CNTSPIN")
    spin(em, 2)
    e(f"buffer_load_dword v{T0V}, v{T1V}, {R4(SRD_DBG)}, 0 offen {SC}\ns_waitcnt vmcnt(0)\nv_cmp_gt_u32 vcc, 16, v{T0V}\ns_cbranch_vccnz K_CNTSPIN")
    em.label("K_CNTOK")
def stat_items():
    return [It("v", f"v_lshlrev_b32 v{T1V}, 3, v3"), It("s", f"s_lshl_b32 s{S_T3}, s{S_ROW}, 3"), It("s", f"s_add_u32 s{S_T3}, s{S_T3}, {hex(WS_STAT)}"),
            It("vm", f"buffer_load_dwordx2 {vr(STV,2)}, v{T1V}, {R4(SRD_WS)}, s{S_T3} offen {SC}"), It("s", f"s_xor_b32 s{S_T3}, s{S_T3}, 128"),
            It("vm", f"buffer_load_dwordx2 {vr(STV+2,2)}, v{T1V}, {R4(SRD_WS)}, s{S_T3} offen {SC}", tag="st2")]
def key_items():
    r = []
    for i in range(8):
        if (i & 3) == 0: r.append(It("s", f"s_mov_b32 s{S_T3}, {hex(WS_KEY + (i>>2)*4096)}"))
        r.append(It("vm", f"buffer_load_dwordx4 {vr(KEYS+4*i,4)}, v{L16}, {R4(SRD_WS)}, s{S_T3} offen offset:{(i&3)*1024} {SC}", tag="keys"))
    return r
def emit_rank(em):
    e = em.e
    e(f"s_cmp_lg_u32 s{S_PASS}, 0\ns_cbranch_scc1 K_RANKED")
    em.wait_vm("keys")
    e(f"v_max3_u32 v{T1V}, v{KEYS}, v{KEYS+1}, v{KEYS+2}\ns_max_u32 s{S_T3}, s{S_K0}, s{S_K1}")
    for i in range(3, 31, 2): e(f"v_max3_u32 v{T1V}, v{T1V}, v{KEYS+i}, v{KEYS+i+1}")
    e(f"v_max_u32 v{T1V}, v{T1V}, v{KEYS+31}")
    e(f"v_cmp_lt_u32 vcc, s{S_T3}, v{T1V}\ns_bcnt1_i32_b64 s{S_T3}, vcc\ns_cmp_lt_u32 s{S_T3}, 8\ns_cbranch_scc1 K_RANK")
    em.label("K_RANKED")

def emit_rank_slow(em):
    e = em.e
    R0, R1, R2 = S_T, S_T2, S_P + 8
    C = 246
    em.label("K_RANK")
    e(f"s_mov_b32 s{R0}, 2")
    em.label("K_RANK1")
    e(f"v_cmp_lt_u32 vcc, s{S_K0}, v{T1V}\ns_bcnt1_i32_b64 s{S_T3}, vcc\ns_cmp_lt_u32 s{S_T3}, 8\ns_cbranch_scc0 K_RANK2")
    e(f"v_mov_b32 v{C}, 0")
    for i in range(32): e(f"v_cmp_lt_u32 vcc, s{S_K0}, v{KEYS+i}\nv_addc_co_u32 v{C}, vcc, 0, v{C}, vcc")
    e(f"s_mov_b32 s{S_T3}, 0")
    for k in range(8): e(f"v_cmp_lt_u32 vcc, {k}, v{C}\ns_bcnt1_i32_b64 s{R1}, vcc\ns_add_u32 s{S_T3}, s{S_T3}, s{R1}")
    e(f"s_cmp_lt_u32 s{S_T3}, 8\ns_cbranch_scc0 K_RANK2")
    e(f"s_and_b32 s{R1}, s{S_K0}, 0xffff\ns_sub_u32 s{R1}, 2048, s{R1}")
    e(f"s_ashr_i32 s{R2}, s{S_K0}, 31\ns_not_b32 s{R2}, s{R2}\ns_or_b32 s{R2}, s{R2}, 0x80000000\ns_xor_b32 s{R2}, s{R2}, s{S_K0}\ns_and_b32 s{R2}, s{R2}, 0xffff0000")
    e(f"v_mov_b32 v{C+1}, s{R2}\nv_mul_f32 v{C+1}, 0xbfb8aa3b, v{C+1}\nv_exp_f32 v{C+1}, v{C+1}\ns_nop 0\nv_add_f32 v{C+1}, 1.0, v{C+1}\nv_rcp_f32 v{C+1}, v{C+1}\ns_nop 0")
    e(f"v_cvt_pk_bf16_f32 v{C+1}, v{C+1}, v{C+1}\nv_lshlrev_b32 v{C+1}, 16, v{C+1}\nv_mov_b32 v{C}, s{R1}\ns_lshl_b32 s{S_T3}, s{S_T3}, 4\ns_mov_b64 exec, 1")
    e(f"buffer_store_dwordx2 {vr(C,2)}, v{L16}, {R4(SRD_DBG)}, s{S_T3} offen offset:8 {SC}\ns_mov_b64 exec, -1")
    em.label("K_RANK2")
    e(f"s_mov_b32 s{S_K0}, s{S_K1}\ns_sub_u32 s{R0}, s{R0}, 1\ns_cmp_lg_u32 s{R0}, 0\ns_cbranch_scc1 K_RANK1\ns_branch K_RANKED")

def emit_qfin(em):
    from attn import qk, kld
    e = em.e
    for qs in range(4):
        hh, lam = qs >> 1, qs & 1
        st = vr(STV + 2 * lam, 2)
        mf = [qk(0, kt, s, qs - 1, c0="0") for kt in range(2) for s in range(4)] if qs else []
        em.need([r for t in range(8) for r in regs_of(vr(csreg(hh, t), 4))], loose=15)
        for t in range(8):
            cb = csreg(hh, t); acc = qacc(hh * 8 + t, lam)
            for k in range(2): e(f"v_pk_fma_f32 {vr(acc+2*k,2)}, {vr(cb+2*k,2)}, {st}, {vr(acc+2*k,2)} op_sel:[0,0,0] op_sel_hi:[1,0,1]")
            for k in range(2): e(f"v_pk_mul_f32 {vr(acc+2*k,2)}, {vr(acc+2*k,2)}, {st} op_sel:[0,1] op_sel_hi:[1,1]")
        va = []
        for t in range(8):
            acc = qacc(hh * 8 + t, lam); q = Qf(qs, t >> 1) + 2 * (t & 1)
            va += [f"v_cvt_pk_bf16_f32 v{q}, v{acc}, v{acc+1}", f"v_cvt_pk_bf16_f32 v{q+1}, v{acc+2}, v{acc+3}"]
        k = 0
        while mf:
            em.mfma(mf.pop(0))
            if qs == 1: em.dsr(cs_ld(1, k)); k += 1
            else: e(va.pop(0))
            e(va.pop(0))
        for x in va: e(x)
        for s in range(4):
            q = Qf(qs, s)
            e(f"v_permlane16_swap_b32 v{q}, v{q+2}\nv_permlane16_swap_b32 v{q+1}, v{q+3}")
```

```python
import re, struct

def f2u(f): return struct.unpack("<I", struct.pack("<f", f))[0]
def vr(a, n=1): return f"v{a}" if n == 1 else f"v[{a}:{a+n-1}]"
def ar(a, n=1): return f"a{a}" if n == 1 else f"a[{a}:{a+n-1}]"
def sr(a, n=1): return f"s{a}" if n == 1 else f"s[{a}:{a+n-1}]"
def regs_of(op):
    op = op.strip()
    m = re.fullmatch(r"([av])\[(\d+):(\d+)\]", op)
    if m: return [m.group(1) + str(r) for r in range(int(m.group(2)), int(m.group(3)) + 1)]
    m = re.fullmatch(r"([av])(\d+)", op)
    if m: return [op]
    return []

class It:
    def __init__(self, kind, text, at=0, tag=None, needs=(), after_vm=None):
        self.kind, self.text, self.at, self.tag, self.needs, self.after_vm = kind, text, at, tag, list(needs), after_vm
        self.done = False
    def cost(self): return {"s": 4, "ds": 4, "vm": 8, "v": 4, "x": 8}[self.kind]

class Em:
    def __init__(self):
        self.L = []
        self.vm = 0
        self.ds = 0
        self.ds_done = -1
        self.ldmap = {}
        self.tags = {}
        self.stat = {}
    def e(self, s):
        for line in s.split("\n"):
            line = line.strip()
            if line: self.L.append(line)
    def c(self, s): self.L.append("; " + s)
    def label(self, n): self.L.append(n + ":")
    def vmem(self, s, tag=None):
        self.e(s); self.vm += 1
        if tag is not None: self.tags[tag] = self.vm - 1
        return self.vm - 1
    def dsw(self, s):
        self.e(s); self.ds += 1; return self.ds - 1
    def dsr(self, s):
        dst = s.split(None, 1)[1].split(",")[0]
        idx = self.dsw(s)
        for r in regs_of(dst): self.ldmap[r] = idx
        return idx
    def ds_all(self, extra=""):
        self.e("s_waitcnt " + (extra + " " if extra else "") + "lgkmcnt(0)"); self.ds_done = self.ds - 1
    def need_n(self, regs):
        idx = max([self.ldmap.get(r, -1) for r in regs] + [-1])
        return None if idx <= self.ds_done else self.ds - 1 - idx
    def need(self, regs, loose=6):
        n = self.need_n(regs)
        if n is None: return False
        n = min(n, loose)
        self.e(f"s_waitcnt lgkmcnt({n})"); self.ds_done = self.ds - 1 - n
        return True
    def vm_n(self, tag):
        idx = self.tags[tag] if not isinstance(tag, int) else tag
        n = self.vm - 1 - idx
        assert n >= 0
        return min(n, 63)
    def wait_vm(self, tag): self.e(f"s_waitcnt vmcnt({self.vm_n(tag)})")
    def item(self, it):
        it.done = True
        if it.needs: self.need(it.needs)
        if it.after_vm is not None: self.wait_vm(it.after_vm)
        if it.kind == "ds":
            if it.text.startswith("ds_read"): self.dsr(it.text)
            else: self.dsw(it.text)
        elif it.kind == "vm": self.vmem(it.text, it.tag)
        else: self.e(it.text)
    def items(self, its):
        prev = None
        for it in its:
            if it.kind == "vm" and " lds" in it.text and prev is not None and prev.kind == "s" and " m0," in prev.text: self.e("s_nop 0")
            self.item(it); prev = it
    @staticmethod
    def mf_srcs(s):
        ops = s.split(None, 1)[1].split(",")
        return regs_of(ops[1]) + regs_of(ops[2])
    def mfma(self, s):
        self.need(self.mf_srcs(s)); self.e(s)
    def text(self): return "\n".join(self.L) + "\n"

def pack(n, streams, prio, budget=8, reserve=None):
    out = [[] for _ in range(n + 1)]
    pos = {s: 0 for s in streams}
    lastm0 = {}
    for g in range(n + 1):
        used = (reserve or {}).get(g, 0); sfree = True
        b = budget if g < n else 10 ** 6
        prog = True
        while prog:
            prog = False
            for s in prio:
                if s not in streams or pos[s] >= len(streams[s]): continue
                it = streams[s][pos[s]]
                if it.at > g: continue
                if it.kind == "s":
                    same = any(x in streams[s] and x.kind != "s" for x in out[g])
                    if g < n and (not sfree or same): continue
                    sfree = False
                    if " m0," in it.text: lastm0[s] = g
                else:
                    if used + it.cost() > b: continue
                    if it.kind == "vm" and " lds" in it.text and lastm0.get(s, -9) == g and g < n: continue
                    used += it.cost()
                out[g].append(it); pos[s] += 1; prog = True
                break
    for s in streams: assert pos[s] == len(streams[s]), s
    order = {"s": 0, "ds": 1, "vm": 1, "v": 2, "x": 3}
    return [sorted(g, key=lambda it: order[it.kind]) for g in out[:n]] + [out[n]]

def emit_packed(em, mf, packed, nxt=None):
    n = len(mf)
    for g in range(n):
        em.mfma(mf[g])
        look = mf[g + 1] if g + 1 < n else nxt
        if look is not None:
            has_s = any(it.kind == "s" for it in packed[g])
            w = em.need(Em.mf_srcs(look))
            if not w and not has_s and g + 2 < n and any(it.kind == "s" for it in packed[g + 1]):
                nn = em.need_n(Em.mf_srcs(mf[g + 2]))
                if nn is not None and nn >= 4: em.need(Em.mf_srcs(mf[g + 2]))
        em.items(packed[g])
    em.items(packed[n])
    em.stat["left"] = em.stat.get("left", 0) + len(packed[n])

def srd(em, d, lo, size, add=None):
    if add is None:
        em.e(f"s_mov_b32 s{d}, s{lo}\ns_and_b32 s{d+1}, s{lo+1}, 0xffff")
    else:
        em.e(f"s_add_u32 s{d}, s{lo}, {add}\ns_addc_u32 s{d+1}, s{lo+1}, 0\ns_and_b32 s{d+1}, s{d+1}, 0xffff")
    em.e(f"s_mov_b32 s{d+2}, {size if isinstance(size, str) else hex(size)}\ns_mov_b32 s{d+3}, 0x00020000")

KA_X, KA_K, KA_V, KA_WQ, KA_WO, KA_BX, KA_WR, KA_WG, KA_WU, KA_WD, KA_OUT, KA_DBG, KA_WS = [8 * i for i in range(13)]
WS_XN = 0x0
WS_STAT = 0x240000
WS_KEY = 0x244000
WS_OFL = 0x250000
WS_XFL = 0x258000
WS_EFL = 0x260000
WS_EX = 0x2000000
WS_O = 0x400000
WS_XB = 0x1400000
WS_YP = 0x2400000
WS_DUMP = 0x2800000
WS_PROF = 0x3800000
WS_SIZE = 0x4000000
```

```python
from defs import *
from attn import pv, smf, snap, restore
IDXV, RSV = T0V, T1V
def XFR(s): return vr(104 + 4 * s, 4) if s < 8 else (ar(192 + 4 * (s - 8), 4) if s < 12 else ar(212 + 4 * (s - 12), 4))
def OB(hh, ks, lam): return 8 + ((hh * 4 + ks) * 2 + lam) * 4
def FB(i, hh, ks, lam): return ((hh * 3 + i - 1) * 8 + ks * 2 + lam) * 4
def ACC(lam, j): return 72 + (lam * 8 + j) * 4 if j < 8 else 136 + (lam * 4 + j - 8) * 4
AF = 192
PA = 168
PE = 200
LV = 136
S_PW, S_PO = 42, 38
S_VAL = 92
S_X0, S_X1, S_X2 = 93, 94, 95
S_UO = 45
DBG_Y = 4
RB = 16 * 1152

def wdma(vo, n, soff, sadd, step, m0, madd, tag=None, tmp=None):
    tmp = S_T3 if tmp is None else tmp
    r = []
    for i in range(n):
        r += [It("s", f"s_add_u32 m0, s{m0}, {madd + i*4096}"), It("s", f"s_add_u32 s{tmp}, s{soff}, {sadd + i*step}"),
              It("vm", f"buffer_load_dwordx4 v{vo}, {R4(SRD_W)}, s{tmp} offen lds", tag=tag)]
    return r

def side_items():
    if OPT["noside"]: return []
    return [It("s", f"s_mov_b32 m0, s{S_PFM}"), It("vm", f"buffer_load_dwordx4 v{GO4}, {R4(SRD_SB)}, s{S_UO} offen lds"),
            It("s", f"s_add_u32 s{S_UO}, s{S_UO}, {64*9216}"), It("s", f"s_add_u32 s{S_PFM}, s{S_PFM}, 4096"),
            It("vm", f"buffer_load_dword v{PFV-1}, v{PFV}, {R4(SRD_FO)}, s{S_PF} offen"), It("s", f"s_add_u32 s{S_PF}, s{S_PF}, s{S_PFS}")]
def side_init(em):
    e = em.e
    srd(em, SRD_FO, S_P + 4, 0)
    e(f"v_mov_b32 v{PFV}, 0\ns_mov_b32 s{S_PF}, 0\ns_mov_b32 s{S_PFS}, 0\ns_mov_b32 s{S_PFM}, 0x2a000\ns_mov_b32 s{S_UO}, 0x7f000000")
def side_hook(em, b):
    em.e(f"s_cmp_ge_u32 s{S_LOOP}, s{S_H0}\ns_cbranch_scc1 K_SIDE")
    em.label(f"K_SIDED")
def emit_side(em):
    e = em.e
    def widx(): e(f"s_lshr_b32 s{S_T}, s2, 3\ns_lshl_b32 s{S_T}, s{S_T}, 2\ns_add_u32 s{S_T}, s{S_T}, s{S_WAVE}")
    def idxld():
        e(f"v_and_b32 v5, 7, v1\nv_lshlrev_b32 v5, 4, v5")
        e(f"buffer_load_dwordx2 v[{IDXV}:{RSV}], v5, {R4(SRD_DBG)}, 0 offen offset:8 {SC}")
    def idxchk(n):
        e(f"v_cmp_eq_u32 vcc, 0, v{IDXV}\ns_cbranch_vccz K_IDXOK{n}")
        em.label(f"K_IDXSPIN{n}")
        spin(em, 4)
        e(f"buffer_load_dwordx2 v[{IDXV}:{RSV}], v5, {R4(SRD_DBG)}, 0 offen offset:8 {SC}\ns_waitcnt vmcnt(0)\nv_cmp_eq_u32 vcc, 0, v{IDXV}\ns_cbranch_vccnz K_IDXSPIN{n}")
        em.label(f"K_IDXOK{n}")
    on = OPT["touchw"]
    em.label("K_SIDE")
    for k in range(7, 2, -1): e(f"s_cmp_eq_u32 s{S_LOOP}, {k}\ns_cbranch_scc1 K_SIDE_{k}")
    idxld()
    e(f"s_mov_b32 s{S_UO}, s{S_SA}\ns_add_u32 s{S_PFM}, s{S_W1K}, {L_WU}\ns_branch K_SIDED")
    em.label("K_SIDE_3")
    idxchk(0)
    e(f"s_lshl_b32 s{S_T}, s{S_WAVE}, 1\ns_add_u32 s{S_T2}, s{S_T}, 1\nv_readlane_b32 s{S_T}, v{IDXV}, s{S_T}\nv_readlane_b32 s{S_T2}, v{IDXV}, s{S_T2}\ns_mul_i32 s{S_T3}, s{S_WAVE}, 2304")
    e(f"s_sub_u32 s{S_T}, s{S_T}, 1\ns_sub_u32 s{S_T2}, s{S_T2}, 1\ns_mul_i32 s{S_T}, s{S_T}, 1152\ns_mul_i32 s{S_T2}, s{S_T2}, 1152")
    for k, so in enumerate((S_T, S_T2)):
        e(f"s_add_u32 m0, s{S_T3}, {L_XS + k*1152}\ns_nop 0\nbuffer_load_dwordx4 v{L16}, {R4(SRD_WS)}, s{so} offen {SC} lds")
        e(f"s_mov_b64 exec, 0xff\nbuffer_load_dwordx4 v{L16}, {R4(SRD_WS)}, s{so} offen offset:1024 {SC} lds\ns_mov_b64 exec, -1")
    e("s_branch K_SIDED")
    em.label("K_SIDE_4")
    e(f"s_cmp_eq_u32 s{S_GD}, 0\ns_cbranch_scc1 K_SIDE_4A")
    e(f"v_and_b32 v6, 7, v1\nv_mul_u32_u24 v6, 0x480, v6\nv_lshl_add_u32 v6, v4, 4, v6\nv_add_u32 v6, {hex(L_XS)}, v6")
    for k in range(18): e(f"ds_read_b128 {XFR(k)}, v6 offset:{k*64}")
    e("s_branch K_SIDE_4B")
    em.label("K_SIDE_4A")
    idxld()
    em.label("K_SIDE_4B")
    srd(em, SRD_FO, S_P + 2, 576 * 9216 if on else 0)
    widx()
    e(f"v_min_u32 v6, 35, v1\nv_mul_u32_u24 v7, 7282, v6\nv_lshrrev_b32 v7, 16, v7\nv_lshlrev_b32 v6, 7, v6\nv_mul_u32_u24 v7, {9216-1152}, v7\nv_add_u32 v{PFV}, v6, v7")
    e(f"s_and_b32 s{S_PF}, s2, 7\ns_mul_i32 s{S_PF}, s{S_PF}, 1152\ns_mul_i32 s{S_T}, s{S_T}, {4*9216}\ns_add_u32 s{S_PF}, s{S_PF}, s{S_T}\ns_mov_b32 s{S_PFS}, {512*9216}\ns_branch K_SIDED")
    em.label("K_SIDE_5")
    idxchk(1)
    e(f"s_and_b32 s{S_PF}, s2, 7\ns_mul_i32 s{S_PF}, s{S_PF}, {18*36864}\ns_add_u32 s{S_T2}, s{S_PF}, {18*36864}")
    srd(em, SRD_FO, SRD_WD, f"s{S_T2}" if on else 0)
    widx()
    e(f"s_lshl_b32 s{S_T}, s{S_T}, 12\ns_add_u32 s{S_PF}, s{S_PF}, s{S_T}\ns_mov_b32 s{S_PFS}, {128*4096}\nv_lshlrev_b32 v{PFV}, 6, v1\ns_branch K_SIDED")
    em.label("K_SIDE_6")
    srd(em, SRD_W, S_P, 4096 * 1152)
    e(f"s_mul_i32 s{S_PF}, s{S_KQ}, {1024*1152}\ns_add_u32 s{S_T2}, s{S_PF}, {1024*1152}")
    srd(em, SRD_FO, S_P, f"s{S_T2}" if on else 0)
    widx()
    e(f"s_lshl_b32 s{S_T}, s{S_T}, 12\ns_add_u32 s{S_PF}, s{S_PF}, s{S_T}\ns_branch K_SIDED")
    em.label("K_SIDE_7")
    if OPT["ttail"]:
        e(f"v_mov_b32 v6, s{S_OB}\ns_lshl_b32 s{S_T}, s{S_QB}, 2\ns_add_u32 s{S_T}, s{S_T}, s{S_NB}\ns_lshl_b32 s{S_T}, s{S_T}, 17\ns_add_u32 s{S_T}, s{S_T}, {hex(WS_XB)}\nv_writelane_b32 v6, s{S_T}, 1")
        e(f"s_lshl_b32 s{S_T}, s{S_QB}, 18\ns_add_u32 s{S_T}, s{S_T}, {hex(WS_EX)}\nv_writelane_b32 v6, s{S_T}, 2")
        e(f"s_mov_b32 s{S_T}, {hex(WS_YP)}\nv_writelane_b32 v6, s{S_T}, 3\ns_mov_b32 s{S_T}, {hex(WS_YP + 0x200000)}\nv_writelane_b32 v6, s{S_T}, 4\ns_mul_i32 s{S_T}, s{S_ROW}, 1152\nv_writelane_b32 v6, s{S_T}, 5")
        e(f"buffer_load_dword a244, v6, {R4(SRD_WS)}, 0 offen {SC}\nv_mov_b32 v7, 0\nbuffer_load_dword a245, v7, {R4(SRD_OUT)}, s{S_T} offen\nbuffer_load_dword a246, v7, {R4(SRD_X)}, s{S_T} offen")
    if OPT["cpf"]: code_prefetch(em, "K_LAST", "K_CODE_END", "a[240:243]", "b", False)
    e("s_branch K_SIDED")
def before_last(em):
    srd(em, SRD_FO, 6, 0)

LASTQ = []
def last_vm(em, u, gd):
    if u == 60:
        if gd:
            q = []
            for i in range(9):
                q += [It("s", f"s_add_u32 m0, s{S_W1K}, {L_WG + i*4096}"), It("s", f"s_add_u32 s{S_T}, s{S_SA}, {i*64*9216}"),
                      It("vm", f"buffer_load_dwordx4 v{GO4}, {R4(SRD_SA)}, s{S_T} offen lds")]
            q += [It("s", f"s_add_u32 m0, s{S_W1K}, {L_WU2}"), It("vm", f"buffer_load_dwordx4 v{GO4}, {R4(SRD_SB)}, s{S_T} offen lds")]
            for i in range(9):
                if (i & 3) == 0: q += [It("s", f"s_add_u32 m0, s{S_PFS}, {(i>>2)*4096}"), It("s", f"s_add_u32 s{S_T}, s{S_PF}, {(i>>2)*4096}")]
                q.append(It("vm", f"buffer_load_dwordx4 v{L16}, {R4(SRD_WD)}, s{S_T} offen offset:{(i&3)*1024} lds"))
            LASTQ[:] = q
            e = em.e
            e(f"s_add_u32 s{S_PFS}, s{S_W9}, {L_WD}\ns_cmp_eq_u32 s{S_WAVE}, 3\ns_cselect_b32 s{S_PFS}, {L_WD3}, s{S_PFS}")
            e(f"s_sub_u32 s{S_PF}, s{S_GD}, 1\ns_mul_i32 s{S_PF}, s{S_PF}, 36864\ns_add_u32 s{S_PF}, s{S_PF}, s{S_W9}")
        else:
            LASTQ[:] = wdma(WOV, 16, S_SB, 0, RB, S_W1K, SLOTS[0][0]) + wdma(WEV, 8, S_EXO, 0, 2 * RB, S_W1K, EXB[0][0])
    take = ({60: 6, 61: 6, 62: 7, 63: 0} if gd else {60: 8, 61: 8, 62: 8, 63: 0})[u]
    r = []; k = 0
    while LASTQ and k < take:
        x = LASTQ.pop(0); r.append(x)
        if x.kind == "vm": k += 1
    if u == 63: assert not LASTQ
    return r

def oflag(em, h):
    em.e(f"v_mov_b32 v5, 1\ns_lshl_b32 s{S_T}, s{S_NB}, 3\ns_add_u32 s{S_T}, s{S_T}, s{S_OFL}\ns_mov_b64 exec, 1")
    em.vmem(f"buffer_store_dword v5, v{L16}, {R4(SRD_WS)}, s{S_T} offen offset:{4*h} {SC}")
    em.e("s_mov_b64 exec, -1")

def interleave(em, mf, fill, per=2):
    fill = list(fill)
    for m in mf:
        em.mfma(m)
        for _ in range(per):
            if fill: em.e(fill.pop(0))
    for f in fill: em.e(f)

GV2 = 239
def emit_final(em):
    e = em.e
    pr = 1
    T2 = 144
    chk = ["s_nop 0"] * 4
    for qs in range(4): chk += [f"v_accvgpr_read_b32 v{LV+2*qs}, a{AL+2*qs}", f"v_accvgpr_read_b32 v{LV+2*qs+1}, a{AL+2*qs+1}"]
    for qs in range(4): chk += [f"v_add_f32 v{LV+2*qs}, v{LV+2*qs}, v{LV+2*qs+1}"]
    chk += [f"v_max3_f32 v{T2}, v{LV}, v{LV+2}, v{LV+4}", f"v_add_f32 v{T2+1}, v{LV}, v{LV+2}", f"v_max_f32 v{T2}, v{T2}, v{LV+6}", f"v_add_f32 v{T2+1}, v{T2+1}, v{LV+4}",
            f"v_cmp_nge_f32 vcc, 0x5f800000, v{T2}", f"v_add_f32 v{T2+1}, v{T2+1}, v{LV+6}", f"v_cmp_u_f32 s[{S_X1}:{S_X2}], v{T2+1}, v{T2+1}"]
    mf = [smf(pr, 0), smf(pr, 1)] + [pv(pr, T, qs) for qs in (0, 1) for T in range(8)]
    pre = [f"s_cmp_lg_u32 s{S_GD}, 0\ns_mov_b32 s{S_T}, {CHK[0][0]}", f"s_cselect_b32 s{S_T}, {CHK[1][0]}, s{S_T}\ns_cselect_b32 s{S_T2}, 6, 10",
           f"v_and_b32 v{T2+2}, 3, v1\nv_lshlrev_b32 v{T2+2}, s{S_T2}, v{T2+2}", f"s_lshl_b32 s{S_T2}, s{S_WAVE}, s{S_T2}\ns_add_u32 s{S_T2}, s{S_T2}, s{S_T}"]
    for k in range(4): em.mfma(mf[k]); e(pre[k])
    interleave(em, mf[4:], chk[2:])
    e(f"s_or_b64 vcc, vcc, s[{S_X1}:{S_X2}]\ns_cmp_lg_u64 vcc, 0\ns_cselect_b32 s{S_T3}, 1, 0")
    e(f"v_mov_b32 v{T2}, s{S_T3}\ns_lshl_b32 s{S_T3}, s{S_WAVE}, 2\ns_add_u32 s{S_T}, s{S_T}, s{S_T3}\nv_add_u32 v{T2+2}, s{S_T}, v{T2+2}")
    em.dsw(f"ds_write_b32 v{T2+2}, v{T2}")
    for qs in range(4): e(f"v_rcp_f32 v{LV+2*qs}, v{LV+2*qs}")
    e(f"v_mov_b32 v{T2+1}, s{S_T2}")
    em.ds_all("vmcnt(0)")
    e("s_barrier")
    em.vm = 0
    stamp(em, "t0bar", 2)
    em.dsr(f"ds_read_b128 {vr(T2+4,4)}, v{T2+1}")
    sc = []
    for i in range(1, 4):
        sc += [f"s_add_u32 s{S_T}, s{S_NB}, {i}", f"s_and_b32 s{S_T}, s{S_T}, 3", f"s_mul_i32 s{S_PW+i-1}, s{S_T}, {256*1152}", f"s_add_u32 s{S_PW+i-1}, s{S_PW+i-1}, s{S_WOO}",
               f"s_sub_u32 s{S_T}, s{S_T}, s{S_NB}", f"s_lshl_b32 s{S_T}, s{S_T}, 16", f"s_add_u32 s{S_PO+i-1}, s{S_OB}, s{S_T}"]
    D_S, D_M, D_ST = S_X0, S_X1, S_X2
    sc += [f"s_cmp_lg_u32 s{S_GD}, 0", f"s_cselect_b32 s{D_S}, s{S_SB}, s{S_PW}", f"s_cselect_b32 s{D_M}, s{S_SLOT}, s{S_SLOT+2}", f"s_add_u32 s{D_M}, s{D_M}, s{S_W1K}", f"s_mov_b32 s{D_ST}, {RB}"]
    def rd(qs, t): return [f"v_accvgpr_read_b32 v{t+4*T+r}, a{Oacc(T,qs)+r}" for T in range(8) for r in range(4)]
    cnt = [0]
    def ride():
        k = cnt[0]; cnt[0] += 1
        if k == 8:
            e(f"s_cmp_lg_u32 s{S_GD}, 0\ns_cselect_b32 s{D_S}, s{S_EXO}, s{S_PW+1}\ns_cselect_b32 s{D_M}, s{S_EX0}, s{S_SLOT+3}\ns_cselect_b32 s{D_ST}, {2*RB}, s{D_ST}\ns_add_u32 s{D_M}, s{D_M}, s{S_W1K}")
        if k == 12: e(f"s_cmp_lg_u32 s{S_GD}, 0\ns_cselect_b32 s{D_M}, 0x30000, s{D_M}")
        e(f"s_mov_b32 m0, s{D_M}\ns_add_u32 s{D_M}, s{D_M}, 4096")
        em.vmem(f"buffer_load_dwordx4 v{WOV if k < 8 else GV2}, {R4(SRD_W)}, s{D_S} offen lds", ("ride", k))
        e(f"s_add_u32 s{D_S}, s{D_S}, s{D_ST}")
    def fin(qs, t):
        hh, lam = qs >> 1, qs & 1
        for ks in range(4):
            a = t + 8 * ks; d = OB(hh, ks, lam)
            for k in range(4): e(f"v_pk_mul_f32 {vr(a+2*k,2)}, {vr(a+2*k,2)}, {vr(LV+2*qs,2)} op_sel_hi:[1,0]")
            for k in range(4): e(f"v_cvt_pk_bf16_f32 v{d+k}, v{a+2*k}, v{a+2*k+1}")
            f = (hh * 4 + ks) * 2 + lam
            if (ks & 1) == 0: e(f"s_add_u32 s{S_T}, s{S_OB}, {(f>>2)*4096}")
            em.vmem(f"buffer_store_dwordx4 {vr(d,4)}, v{L16}, {R4(SRD_WS)}, s{S_T} offen offset:{(f&3)*1024} {SC}", ("ost", hh))
            ride()
    r0 = rd(0, 40)
    for m in [pv(pr, T, qs) for qs in (2, 3) for T in range(8)]:
        em.mfma(m)
        for _ in range(2):
            if sc: e(sc.pop(0))
        e(r0.pop(0)); e(r0.pop(0))
    assert not sc
    em.need(regs_of(vr(T2 + 4, 4)))
    e(f"v_or3_b32 v{T2+4}, v{T2+4}, v{T2+5}, v{T2+6}\nv_or_b32 v{T2+4}, v{T2+4}, v{T2+7}\nv_cmp_ne_u32 vcc, s{S_GD}, 0\nv_readfirstlane_b32 s{S_T}, v{T2+4}")
    e(f"s_andn2_b32 s{S_T}, s{S_T}, s{S_PASS}\ns_cbranch_scc1 K_FB")
    e(f"v_cndmask_b32 v{GV2}, v{WOV}, v{WEV}, vcc")
    fin(0, 40)
    for x in rd(1, 72): e(x)
    fin(1, 72)
    stamp(em, "h0st", 2)
    for x in rd(2, 72): e(x)
    fin(2, 72)
    for x in rd(3, 72): e(x)
    fin(3, 72)
    e(f"s_and_b32 s{S_X0}, s{S_KQ}, 1\ns_lshl_b32 s{S_X0}, s{S_X0}, 7\ns_sub_u32 s{S_T}, s{S_SLOT}, {hex(LDS_V)}")
    for t in range(8): e(f"v_xor_b32 v{VA+t}, s{S_X0}, v{VA+t}\nv_add_u32 v{PA+t}, s{S_T}, v{VA+t}")
    e(f"v_bfe_u32 v5, v1, 2, 2\nv_lshl_add_u32 v5, v4, 2, v5\nv_bfe_u32 v6, v5, 1, 2\nv_lshlrev_b32 v6, 5, v6\nv_lshl_add_u32 v6, v5, 7, v6\nv_and_b32 v5, 3, v1\nv_lshl_add_u32 v6, v5, 3, v6\nv_add_u32 v{PE}, s{S_EX0}, v6")
    for t in range(1, 4): e(f"v_xor_b32 v{PE+t}, {32*t}, v{PE}")
    e(f"v_and_b32 v6, 7, v1\nv_lshlrev_b32 v6, 2, v6\ns_mov_b32 s{S_VAL}, 0")
    em.wait_vm(("ost", 0))
    oflag(em, 0)

def emit_gd(em):
    e = em.e
    TA, TD, AC, U_, H, HF = 208, 210, 212, 216, 228, 240
    xstamp(em, 26)
    e(f"v_bfe_u32 v5, v1, 2, 2\nv_and_b32 v{U_}, 3, v1\nv_lshl_add_u32 v7, v4, 3, v5\nv_lshlrev_b32 v7, 6, v7\nv_lshl_add_u32 v7, v{U_}, 3, v7")
    e(f"s_and_b32 s{S_T}, s{S_WAVE}, 1\ns_lshl_b32 s{S_T}, s{S_T}, 5\ns_cmp_lt_u32 s{S_WAVE}, 2\ns_cselect_b32 s{S_T2}, {L_WG}, {L_WU}\ns_mov_b32 s{S_X1}, {L_WU2}\ns_cselect_b32 s{S_X1}, {L_WG+32768}, s{S_X1}")
    e(f"s_add_u32 s{S_T2}, s{S_T}, s{S_T2}\nv_add_u32 v{TA}, s{S_T2}, v7\ns_add_u32 s{S_T}, s{S_T}, s{S_X1}\nv_add_u32 v{TA+1}, s{S_T}, v7")
    GF = 72
    def ald(s):
        for j in range(2): em.dsr(f"ds_read_b64_tr_b16 {vr(GF+(s&7)*4+2*j,2)}, v{TA if s < 16 else TA+1} offset:{(s&15)*2048 + j*256}")
    for s in range(7): ald(s)
    e(f"v_lshl_add_u32 v7, v4, 2, v5\nv_mul_u32_u24 v7, 0x480, v7\nv_lshl_add_u32 v7, v{U_}, 3, v7\ns_mul_i32 s{S_T}, s{S_WAVE}, 288\ns_add_u32 s{S_T}, s{S_T}, {L_WD}\nv_add_u32 v{TD}, s{S_T}, v7")
    e(f"v_add_u32 v{TD+1}, {16*1152}, v{TD}\nv_subrev_u32 v7, {L_WD + 24*1152 - L_WD3}, v{TD+1}\nv_cmp_lt_u32 vcc, 31, v1\ns_nop 1\nv_cndmask_b32 v{TD+1}, v{TD+1}, v7, vcc")
    DA = 144
    def dld(N):
        for j in range(2): em.dsr(f"ds_read_b64_tr_b16 {ar(4*N+2*j,2)}, v{TD+j} offset:{N*32}")
    for s in range(18):
        if s + 7 < 18: ald(s + 7)
        elif s - 11 < 7: dld(s - 11)
        em.need(regs_of(vr(GF + (s & 7) * 4, 4)), loose=15)
        e(f"{MF} {vr(AC,4)}, {vr(GF+(s&7)*4,4)}, {XFR(s)}, {'0' if s == 0 else vr(AC,4)}")
    dld(7); dld(8)
    xstamp(em, 27)
    e(f"v_lshlrev_b32 v5, 3, v1\nv_add_u32 v5, {L_HX}, v5\ns_lshl_b32 s{S_T}, s{S_WAVE}, 9\nv_add_u32 v7, s{S_T}, v5\ns_nop 0")
    e(f"v_cvt_pk_bf16_f32 v{U_}, v{AC}, v{AC+1}\nv_cvt_pk_bf16_f32 v{U_+1}, v{AC+2}, v{AC+3}")
    e(f"s_cmp_lt_u32 s{S_WAVE}, 2\ns_cbranch_scc0 K_NOSILU")
    e(f"v_lshlrev_b32 v{AC}, 16, v{U_}\nv_and_b32 v{AC+1}, 0xffff0000, v{U_}\nv_lshlrev_b32 v{AC+2}, 16, v{U_+1}\nv_and_b32 v{AC+3}, 0xffff0000, v{U_+1}")
    for r in range(4): e(f"v_mul_f32 v{U_+r}, 0xbfb8aa3b, v{AC+r}")
    for r in range(4): e(f"v_exp_f32 v{U_+r}, v{U_+r}")
    e("s_nop 0")
    for r in range(4): e(f"v_add_f32 v{U_+r}, 1.0, v{U_+r}")
    for r in range(4): e(f"v_rcp_f32 v{U_+r}, v{U_+r}")
    e("s_nop 0")
    for r in range(4): e(f"v_mul_f32 v{AC+r}, v{AC+r}, v{U_+r}")
    e(f"v_cvt_pk_bf16_f32 v{U_}, v{AC}, v{AC+1}\nv_cvt_pk_bf16_f32 v{U_+1}, v{AC+2}, v{AC+3}")
    em.label("K_NOSILU")
    em.dsw(f"ds_write_b64 v7, {vr(U_,2)}")
    em.ds_all()
    e("s_barrier")
    xstamp(em, 28)
    HR = 72
    for k in range(4): em.dsr(f"ds_read_b64 {vr(HR+2*k,2)}, v5 offset:{k*512}")
    e(f"s_add_u32 s{S_X1}, s{S_SLOT+1}, s{S_W1K}\ns_add_u32 s{S_X2}, s{S_EX1}, s{S_W1K}")
    h1 = wdma(WOV, 8, S_SB, 128 * 1152, RB, S_X1, 0, tag="own1") + wdma(WEV, 4, S_EXO, 128 * 1152, 2 * RB, S_X2, 0, tag="own1")
    em.items(h1[:12])
    em.need(regs_of(vr(HR, 8)), loose=15)
    for k in range(8): e(f"v_lshlrev_b32 v{HR+8+2*k}, 16, v{HR+k}\nv_and_b32 v{HR+9+2*k}, 0xffff0000, v{HR+k}")
    for k in range(4): e(f"v_pk_mul_f32 {vr(HR+8+2*k,2)}, {vr(HR+8+2*k,2)}, {vr(HR+16+2*k,2)}")
    for k in range(4): e(f"v_cvt_pk_bf16_f32 v{HF+k}, v{HR+8+2*k}, v{HR+9+2*k}")
    Y = 104
    e(f"s_mul_i32 s{S_T}, s{S_WAVE}, 4608\ns_add_u32 s{S_T}, s{S_T}, {L_YT}\nv_mul_u32_u24 v5, 576, v3\nv_lshl_add_u32 v5, v4, 4, v5\nv_add_u32 v5, s{S_T}, v5\nv_add_u32 v7, s{S_T}, v{L16}")
    rest = h1[12:]
    for N in range(9):
        em.mfma(f"{MF} {vr(Y+4*N,4)}, {ar(4*N,4)}, {vr(HF,4)}, 0")
        em.items(rest[:3]); rest = rest[3:]
    em.vmem(f"buffer_load_dword v{SNV}, v6, {R4(SRD_WS)}, s{S_OFL} offen {SC}", "sng")
    xstamp(em, 29)
    YV = 72
    for i in range(5):
        e(f"v_add_u32 v{YV+i}, {64*i}, v1\nv_mul_u32_u24 v{YV+8}, 1821, v{YV+i}\nv_lshrrev_b32 v{YV+8}, 16, v{YV+8}\nv_mul_u32_u24 v{YV+8}, 1728, v{YV+8}\nv_lshl_add_u32 v{YV+i}, v{YV+i}, 4, v{YV+8}")
    e("s_mov_b32 exec_lo, 0x00ff00ff\ns_mov_b32 exec_hi, 0x00ff00ff")
    for N in range(9): em.dsw(f"ds_write_b128 v5, {vr(Y+4*N,4)} offset:{N*64}")
    e("s_mov_b64 exec, -1")
    e(f"s_sub_u32 s{S_T}, s{S_GD}, 1\ns_mul_i32 s{S_T}, s{S_T}, 18432\ns_mul_i32 s{S_T2}, s{S_WAVE}, 576\ns_add_u32 s{S_T}, s{S_T}, s{S_T2}\ns_add_u32 s{S_T}, s{S_T}, {hex(WS_YP)}")
    YO = 144
    for i in range(5): em.dsr(f"ds_read_b128 {vr(YO+4*i,4)}, v7 offset:{i*1024}")
    for i in range(5):
        em.need(regs_of(vr(YO + 4 * i, 4)), loose=15)
        if i == 4: e("s_mov_b32 exec_hi, 0")
        em.vmem(f"buffer_store_dwordx4 {vr(YO+4*i,4)}, v{YV+i}, {R4(SRD_WS)}, s{S_T} offen {SC}")
    e("s_mov_b64 exec, -1")
    xstamp(em, 30)
    em.wait_vm(("ride", 15))
    e("s_barrier")
    oflag(em, 1)
    xstamp(em, 31)

SNV, SNY, RWV = 241, 244, 245
def fo_ld(hh, i):
    r = []
    for f in range(8):
        if (f & 3) == 0: r.append(It("s", f"s_add_u32 s{S_X1}, s{S_PO+i-1}, {hh*8192 + (f>>2)*4096}"))
        r.append(It("vm", f"buffer_load_dwordx4 {ar(FB(i,hh,f>>1,f&1),4)}, v{L16}, {R4(SRD_FO)}, s{S_X1} offen offset:{(f&3)*1024} {SC}", tag=("fo", hh, i)))
    return r
def wo_dma(st):
    i, hh = ((st - 2) % 3 + 1, (st - 2) // 3)
    return wdma(WOV, 8, S_PW + i - 1, hh * 128 * 1152, RB, S_SLOT + (st & 3), 0, tag=("wo", st))
def snapld(tag): return It("vm", f"buffer_load_dword v{SNV}, v6, {R4(SRD_WS)}, s{S_OFL} offen {SC}", tag=tag)
def a_rd(t, j):
    st, kk = t >> 2, t & 3
    if j < 8: return [f"ds_read_b64_tr_b16 {ar(AF+4*j+2*h,2)}, v{PA+8*(st&3)+j} offset:{kk*8192 + h*4096}" for h in range(2)]
    return [f"ds_read_b64_tr_b16 {ar(AF+4*j+2*h,2)}, v{PE+4*st+j-8} offset:{kk*4096 + h*2048}" for h in range(2)]
def bfrag(t, lam):
    st, kk = t >> 2, t & 3
    if st < 2: return vr(OB(st, kk, lam), 4)
    return ar(FB((st - 2) % 3 + 1, (st - 2) // 3, kk, lam), 4)
def ntile(t): return 12 if t < 8 else 8
def mfl(t): return [f"{MF} {vr(ACC(lam,j),4)}, {ar(AF+4*j,4)}, {bfrag(t,lam)}, {'0' if t == 0 else vr(ACC(lam,j),4)}" for j in range(ntile(t)) for lam in range(2)]
BG = 4
def kstep(em, t, pend, vfill=None, barrier=None, gapv=4):
    mf = mfl(t); n = len(mf)
    lo = BG + 1 if barrier else 0
    ds = []
    if t + 1 < 32:
        for j in range(ntile(t + 1)): ds += [It("ds", x, at=max(lo, 2 * j + 1)) for x in a_rd(t + 1, j)]
    if barrier:
        vf = {"v": vfill[:2 * BG]} if vfill else {}
        if vfill: del vfill[:2 * BG]
        packed = pack(BG, vf, ["v"])
        emit_packed(em, mf[:BG + 1], packed[:BG] + [[], []], None)
        barrier(em)
    take = (n - lo) // gapv
    cur = []; k = 0
    while pend and k < take:
        x = pend.pop(0); cur.append(x)
        x.at = lo + max(0, k * gapv - 1 + (2 if x.kind == "vm" else 0) - (0 if k else 0))
        if x.kind == "vm": k += 1
    st = {"vm": cur, "ds": ds}
    if vfill:
        room = max(0, 2 * (n - lo) - len(ds) - 2 * k - 2)
        st["v"] = vfill[:room]; del vfill[:room]
        for x in st["v"]: x.at = max(x.at, lo)
    packed = pack(n, st, ["vm", "ds", "v"])
    nxt = mfl(t + 1)[0] if t + 1 < 32 else None
    emit_packed(em, mf[lo:], packed[lo:], nxt)

def redo(em, n):
    e = em.e
    e(f"s_cmp_lg_u32 s{S_VAL}, 0\ns_cbranch_scc1 K_F0DONE{n}")
    em.label(f"K_F0SPIN{n}")
    e(f"buffer_load_dword v{SNV}, v6, {R4(SRD_WS)}, s{S_OFL} offen {SC}\ns_waitcnt vmcnt(0)\nv_cmp_ne_u32 vcc, 1, v{SNV}\ns_and_b32 s{S_T}, vcc_lo, 0x55\ns_cbranch_scc0 K_F0OK{n}")
    spin(em, 1)
    e(f"s_branch K_F0SPIN{n}")
    em.label(f"K_F0OK{n}")
    e(f"s_mov_b32 s{SRD_FO+2}, {hex(WS_SIZE)}")
    sv = (em.vm, dict(em.tags))
    em.items(fo_ld(0, 1) + fo_ld(0, 2) + fo_ld(0, 3))
    em.vm, em.tags = sv
    em.label(f"K_F0DONE{n}")
def valid(em): em.e(f"v_cmp_ne_u32 vcc, 1, v{SNV}\ns_and_b32 s{S_T}, vcc_lo, 0x55\ns_cselect_b32 s{S_VAL}, 0, 1\ns_cselect_b32 s{SRD_FO+2}, 0, {hex(WS_SIZE)}")

def emit_own(em, gd):
    e = em.e
    for j in range(12):
        for x in a_rd(0, j): em.dsr(x)
    for k in range(1, 4): e(f"s_sub_u32 s{S_P+k}, s{S_SLOT+k}, {hex(LDS_V)}")
    e(f"s_sub_u32 s{S_P}, s{S_EX1}, s{S_EX0}")
    for k in range(4): e(f"s_add_u32 s{S_SLOT+k}, s{S_SLOT+k}, s{S_W1K}")
    vf = [It("v", f"v_add_u32 v{PA+8+t}, s{S_P+1}, v{VA+t}") for t in range(8)] + [It("v", f"v_add_u32 v{PE+4+t}, s{S_P}, v{PE+t}") for t in range(4)]
    vf += [It("v", f"v_add_u32 v{PA+8*k+t}, s{S_P+k}, v{VA+t}") for k in (2, 3) for t in range(8)]
    pend = (wo_dma(2) + wo_dma(3)) if gd else []
    for t in range(8):
        if t in (3, 4, 7): stamp(em, f"t{t}", 2 if not gd else 64)
        bar = None
        if t == 3:
            assert not vf
            def bar(em):
                em.ds_all(f"vmcnt({em.vm_n('sng')})" if gd else "")
                e("s_barrier")
                if gd: valid(em)
            if gd: pend += fo_ld(0, 1) + fo_ld(0, 2) + fo_ld(0, 3)
            else: pend += [snapld("sng")] + wo_dma(4)
        if t == 5 and not gd:
            em.wait_vm("sng"); oflag(em, 1); valid(em)
            pend = fo_ld(0, 1) + pend + fo_ld(0, 2) + fo_ld(0, 3)
        if t == 7:
            def bar(em):
                em.items(pend); pend.clear()
                em.ds_all(f"vmcnt({em.vm_n(('wo', 3) if gd else ('ride', 15))})")
                e("s_barrier")
                if gd:
                    e(f"s_cmp_lg_u32 s{S_WAVE}, 0\ns_cbranch_scc1 K_NOYP\nv_mov_b32 v5, 1\ns_mov_b64 exec, 1\nbuffer_atomic_add v5, v{L16}, {R4(SRD_DBG)}, 0 offen offset:{DBG_Y} sc1\ns_mov_b64 exec, -1")
                    em.label("K_NOYP")
                redo(em, gd)
                em.tags["mark"] = em.vm - 1
                if gd: pend.extend(wo_dma(4))
        kstep(em, t, pend, vf, bar, gapv=(4 if gd else 3 if t >= 5 else 4))
    em.items(pend)
    after = em.vm - 1 - em.tags["mark"]
    d = {("wo", 4): em.vm - 1 - em.tags[("wo", 4)]}
    for i in (1, 2, 3): d[("fo", 0, i)] = min(em.vm - 1 - em.tags[("fo", 0, i)], after + 8 * (3 - i))
    return d

XL, XN, XA, XV, XE, L8 = 208, 218, 228, 232, 242, 243
def emit_p2(em):
    e = em.e
    e(f"s_cmp_lg_u32 s{S_GD}, 0\ns_cbranch_scc1 K_GD")
    sv = (snap(em), em.vm, dict(em.tags))
    stamp(em, "gd", 0)
    n0 = NST[0]
    d0 = emit_own(em, 0)
    f0 = snap(em); n1 = NST[0]
    e("s_branch K_P2F")
    em.label("K_GD")
    restore(em, sv[0]); em.vm, em.tags = sv[1], dict(sv[2])
    emit_gd(em)
    if OPT["prof"]:
        NST[0] = n0 - 1; names = list(STN); stamp(em, "gd", 0)
        mark = len(em.L)
    d1 = emit_own(em, 1)
    if OPT["prof"]:
        while NST[0] < n1: stamp(em, "x", 0)
        STN[:] = names
    k0 = f0[0] - 1 - f0[1]; k1 = em.ds - 1 - em.ds_done
    em.ds_done = em.ds - 1 - max(k0, k1)
    em.label("K_P2F")
    em.vm = 1000; em.tags = {k: 999 - min(d0[k], d1[k]) for k in d0}
    PK = 8
    vf = [It("v", f"v_lshlrev_b32 v{L8}, 3, v1", at=2)]
    for lam in range(2):
        for j in range(4):
            a = ACC(lam, 8 + j); p = PK + (lam * 4 + j) * 2
            vf += [It("v", f"v_cvt_pk_bf16_f32 v{p}, v{a}, v{a+1}", at=6), It("v", f"v_cvt_pk_bf16_f32 v{p+1}, v{a+2}, v{a+3}", at=6)]
    vf += [It("v", x) for x in (f"v_lshrrev_b32 v5, 3, v1", f"v_and_b32 v7, 7, v1", f"v_xor_b32 v7, v7, v4", f"v_mul_u32_u24 v5, 0x480, v5", f"v_lshl_add_u32 v{XV}, v7, 4, v5",
                                f"v_xor_b32 v{XV+1}, 64, v{XV}", f"v_add_u32 v{XV+1}, {8*1152}, v{XV+1}",
                                f"v_lshrrev_b32 v5, 1, v4", f"v_lshrrev_b32 v7, 1, v3", f"v_xor_b32 v5, v5, v7", f"v_lshlrev_b32 v5, 4, v5", f"v_lshl_add_u32 v5, v3, 7, v5",
                                f"v_and_b32 v7, 1, v4", f"v_lshl_add_u32 v5, v7, 3, v5", f"v_add_u32 v{XA}, s{S_P}, v5")]
    vf += [It("v", f"v_xor_b32 v{XA+t}, {32*t}, v{XA}") for t in range(1, 4)]
    vf += [It("v", f"v_mul_u32_u24 v5, 0x480, v3"), It("v", f"v_lshl_add_u32 v{XE}, v4, 3, v5")]
    S_SCR, S_XR, S_XE, S_EB = S_P, S_P + 1, S_P + 2, S_P + 3
    e(f"s_add_u32 s{S_SCR}, s{S_EX0}, s{S_W4K}\ns_mul_i32 s{S_XR}, s{S_ROW}, 1152\ns_lshl_b32 s{S_T}, s{S_NB}, 5\ns_add_u32 s{S_XE}, s{S_XR}, s{S_T}\ns_add_u32 s{S_XE}, s{S_XE}, 1024")
    e(f"s_lshl_b32 s{S_T}, s{S_NB}, 8\ns_add_u32 s{S_XR}, s{S_XR}, s{S_T}\ns_add_u32 s{S_XR}, s{S_XR}, s{S_X0}")
    e(f"s_lshl_b32 s{S_T}, s{S_QB}, 2\ns_add_u32 s{S_T}, s{S_T}, s{S_WAVE}\ns_lshl_b32 s{S_T}, s{S_T}, 1\ns_lshr_b32 s{S_T2}, s{S_KQ}, 1\ns_add_u32 s{S_T}, s{S_T}, s{S_T2}\ns_lshl_b32 s{S_EB}, s{S_T}, 15\ns_add_u32 s{S_EB}, s{S_EB}, {hex(WS_EX)}")
    e(f"s_lshl_b32 s{S_T}, s{S_KV}, 9\ns_add_u32 s{S_P+4}, s{S_EB}, s{S_T}\ns_xor_b32 s{S_P+5}, s{S_P+4}, 0x8000")
    e(f"s_lshl_b32 s{S_T}, s{S_QB}, 2\ns_add_u32 s{S_T}, s{S_T}, s{S_WAVE}\ns_lshl_b32 s{S_T}, s{S_T}, 7\ns_add_u32 s{S_UO}, s{S_T}, {hex(WS_EFL)}")
    exs = []
    for lam in range(2):
        for j in range(4):
            exs += [It("s", f"s_add_u32 s{S_X2}, s{S_P+4+lam}, {j*8192}"),
                    It("vm", f"buffer_store_dwordx2 {vr(PK+(lam*4+j)*2,2)}, v{L8}, {R4(SRD_WS)}, s{S_X2} offen {SC}", tag="exs")]
    xl = []
    for k, (sd, fl) in enumerate(((SRD_X, ""), (SRD_WS, SC))):
        for i in range(2):
            xl += [It("s", f"s_add_u32 m0, s{S_SCR}, {k*2048 + i*1024}"), It("vm", f"buffer_load_dwordx4 v{XV+i}, {R4(sd)}, s{S_XR} offen {fl} lds")]
        xl.append(It("vm", f"buffer_load_dwordx2 {vr((XL, XN)[k]+8,2)}, v{XE}, {R4(sd)}, s{S_XE} offen {fl}", tag="xl"))
    pend = [snapld("sn1")] + wo_dma(5)
    for t in range(8, 32):
        st, kk = t >> 2, t & 3
        if t in (12, 16, 20, 24, 28): stamp(em, f"t{t}", 2)
        if kk == 0: em.wait_vm(("fo", (st - 2) // 3, (st - 2) % 3 + 1))
        if t == 8: stamp(em, "p2own")
        if t == 10:
            em.wait_vm("sn1")
            e(f"v_cmp_ne_u32 vcc, 1, v{SNV}\ns_and_b32 s{S_T}, vcc_lo, 0xaa\ns_cbranch_scc0 K_F1OK")
            em.label("K_F1SPIN")
            spin(em, 2)
            e(f"buffer_load_dword v{SNV}, v6, {R4(SRD_WS)}, s{S_OFL} offen {SC}\ns_waitcnt vmcnt(0)\nv_cmp_ne_u32 vcc, 1, v{SNV}\ns_and_b32 s{S_T}, vcc_lo, 0xaa\ns_cbranch_scc1 K_F1SPIN")
            em.label("K_F1OK")
            f11 = fo_ld(1, 1)
            pend += f11[:5] + exs + f11[5:]
        bar = None
        if t == 15:
            def bar(em):
                em.ds_all(f"vmcnt({em.vm_n(('wo', 5))})"); e("s_barrier")
            pend = pend + wo_dma(6) + wo_dma(7) + fo_ld(1, 2) + fo_ld(1, 3) + xl
        if t == 19:
            em.wait_vm("exs")
            e(f"v_mov_b32 v5, 1\ns_lshl_b32 s{S_T}, s{S_KV}, 2\ns_add_u32 s{S_T}, s{S_T}, s{S_UO}\ns_mov_b64 exec, 1")
            em.vmem(f"buffer_store_dword v5, v{L16}, {R4(SRD_WS)}, s{S_T} offen {SC}")
            e("s_mov_b64 exec, -1")
        if t == 23:
            def bar(em):
                em.ds_all(f"vmcnt({em.vm_n(('wo', 7))})"); e("s_barrier")
        if t == 28:
            assert not pend
            pend = [It("v", f"v_lshlrev_b32 v7, 2, v3"), It("vm", f"buffer_load_dword v{SNV}, v7, {R4(SRD_WS)}, s{S_UO} offen {SC}"),
                    It("v", f"v_mov_b32 v6, 0"), It("vm", f"buffer_load_dword v{SNY}, v6, {R4(SRD_DBG)}, s{S_T2} offen {SC}")]
            e(f"v_subrev_u32 v{RWV}, s{S_ROW}, v{IDXV}\nv_subrev_u32 v{RWV}, 1, v{RWV}\nv_cmp_gt_u32 vcc, 16, v{RWV}\ns_and_b32 s{S_VAL}, vcc_lo, 0xff\ns_cselect_b32 s{S_T2}, {DBG_Y}, 0x1000")
            vf = [It("v", f"v_mov_b32 v{40+k}, 0") for k in range(20)]
        kstep(em, t, pend, vf, bar)
        if t == 10: assert len(vf) <= 20 and not exs[1].done, len(vf)
        if t == 14: assert not vf
    assert not pend
    stamp(em, "p2main")

def emit_xchg(em):
    e = em.e
    PK = 8
    XBS = 2048
    S_SCR, S_XR, S_XE, S_EB = S_P, S_P + 1, S_P + 2, S_P + 3
    e(f"s_lshl_b32 s{S_T}, s{S_QB}, 2\ns_add_u32 s{S_T}, s{S_T}, s{S_NB}\ns_lshl_b32 s{S_T3}, s{S_T}, 2\ns_add_u32 s{S_T3}, s{S_T3}, s{S_WAVE}\ns_lshl_b32 s{S_T3}, s{S_T3}, 7\ns_add_u32 s{S_OFL}, s{S_T3}, {hex(WS_XFL)}")
    e(f"s_lshl_b32 s{S_T}, s{S_T}, 6\ns_add_u32 s{S_T}, s{S_T}, s{S_WAVE}\ns_lshl_b32 s{S_OB}, s{S_T}, 11\ns_add_u32 s{S_OB}, s{S_OB}, {hex(WS_XB)}")
    e(f"s_lshl_b32 s{S_T2}, s{S_KQ}, 13\ns_add_u32 s{S_T2}, s{S_T2}, s{S_OB}")
    p = PK
    for d in (2, 1, 3):
        lam, j0 = d >> 1, (d & 1) * 4
        e(f"s_xor_b32 s{S_T}, s{S_KQ}, {d}\ns_lshl_b32 s{S_T}, s{S_T}, 15\ns_add_u32 s{S_T}, s{S_T}, s{S_T2}")
        for h in range(2):
            for k in range(2):
                a = ACC(lam, j0 + 2 * h + k)
                e(f"v_cvt_pk_bf16_f32 v{p+2*k}, v{a}, v{a+1}\nv_cvt_pk_bf16_f32 v{p+2*k+1}, v{a+2}, v{a+3}")
            e(f"buffer_store_dwordx4 {vr(p,4)}, v{L16}, {R4(SRD_WS)}, s{S_T} offen offset:{h*1024} {SC}")
            p += 4
    YL = 40; GG = 180; U_ = 200; ER = 136
    e("s_waitcnt vmcnt(6)")
    for k in range(4):
        em.dsr(f"ds_read_b64 {vr(XL+2*k,2)}, v{XA+k}"); em.dsr(f"ds_read_b64 {vr(XN+2*k,2)}, v{XA+k} offset:2048")
    e(f"v_mov_b32 v6, 1\ns_lshl_b32 s{S_X2}, s{S_KQ}, 2\ns_add_u32 s{S_X2}, s{S_X2}, s{S_OFL}")
    e(f"s_cmp_lg_u32 s{S_VAL}, 0\ns_cbranch_scc1 K_YG")
    e(f"s_waitcnt vmcnt(0)\ns_mov_b64 exec, 1\nbuffer_store_dword v6, v{L16}, {R4(SRD_WS)}, s{S_X2} offen {SC}\ns_mov_b64 exec, -1")
    em.label("K_YGD")
    stamp(em, "xsent", 2)
    e(f"s_bitcmp1_b32 s{S_KQ}, 0\ns_cbranch_scc1 K_NOEX\nv_cmp_ne_u32 vcc, 1, v{SNV}\ns_cbranch_vccz K_EOK\nv_lshlrev_b32 v7, 2, v3")
    em.label("K_ESPIN")
    spin(em, 2)
    e(f"buffer_load_dword v{SNV}, v7, {R4(SRD_WS)}, s{S_UO} offen {SC}\ns_waitcnt vmcnt(0)\nv_cmp_ne_u32 vcc, 1, v{SNV}\ns_cbranch_vccnz K_ESPIN")
    em.label("K_EOK")
    e(f"s_lshl_b32 s{S_T}, s{S_NB}, 13\ns_add_u32 s{S_T}, s{S_T}, s{S_EB}\ns_add_u32 s{S_T2}, s{S_T}, 4096")
    for k in range(16): e(f"buffer_load_dwordx2 {vr(ER+2*k,2)}, v{L8}, {R4(SRD_WS)}, s{(S_T, S_T2)[k>>3]} offen offset:{(k&7)*512} {SC}")
    em.label("K_NOEX")
    M, NL = S_PW, S_PW + 1
    e(f"s_mov_b32 s{NL}, 0xbfb8aa3b\ns_mov_b32 s{M}, 0xffff0000")
    em.ds_all()
    def unpack(t, a): e(f"v_lshlrev_b32 v{t}, 16, v{a}\nv_and_b32 v{t+1}, s{M}, v{a}\nv_lshlrev_b32 v{t+2}, 16, v{a+1}\nv_and_b32 v{t+3}, s{M}, v{a+1}")
    def rnd(t): e(f"v_cvt_pk_bf16_f32 v{U_}, v{t}, v{t+1}\nv_cvt_pk_bf16_f32 v{U_+1}, v{t+2}, v{t+3}"); unpack(t, U_)
    for k in range(5):
        t = GG + 4 * k
        unpack(t, XN + 2 * k)
        e(f"v_pk_add_f32 {vr(t,2)}, {vr(t,2)}, {vr(YL+4*k,2)}\nv_pk_add_f32 {vr(t+2,2)}, {vr(t+2,2)}, {vr(YL+4*k+2,2)}")
        rnd(t)
        for r in range(4): e(f"v_mul_f32 v{U_+2+r}, s{NL}, v{t+r}")
        for r in range(4): e(f"v_exp_f32 v{U_+2+r}, v{U_+2+r}")
        e("s_nop 0")
        for r in range(4): e(f"v_add_f32 v{U_+2+r}, 1.0, v{U_+2+r}")
        for r in range(4): e(f"v_rcp_f32 v{U_+2+r}, v{U_+2+r}")
        e("s_nop 0")
        e(f"v_pk_mul_f32 {vr(t,2)}, {vr(t,2)}, {vr(U_+2,2)}\nv_pk_mul_f32 {vr(t+2,2)}, {vr(t+2,2)}, {vr(U_+4,2)}")
        rnd(t)
    XF = 40
    for k in range(5): unpack(XF + 4 * k, XL + 2 * k)
    def finish(a, k):
        g = GG + 4 * k
        rnd(a)
        e(f"v_pk_mul_f32 {vr(a,2)}, {vr(a,2)}, {vr(g,2)}\nv_pk_mul_f32 {vr(a+2,2)}, {vr(a+2,2)}, {vr(g+2,2)}")
        rnd(a)
        e(f"v_pk_add_f32 {vr(a,2)}, {vr(a,2)}, {vr(XF+4*k,2)}\nv_pk_add_f32 {vr(a+2,2)}, {vr(a+2,2)}, {vr(XF+4*k+2,2)}")
        e(f"v_cvt_pk_bf16_f32 v{a}, v{a}, v{a+1}\nv_cvt_pk_bf16_f32 v{a+1}, v{a+2}, v{a+3}")
    e(f"v_and_b32 v5, 3, v1\nv_lshlrev_b32 v5, 2, v5")
    e(f"buffer_load_dword v6, v5, {R4(SRD_WS)}, s{S_OFL} offen {SC}")
    e(f"s_bitcmp1_b32 s{S_KQ}, 0\ns_cbranch_scc1 K_NOEX2\ns_waitcnt vmcnt(1)")
    EA = 168
    unpack(EA, ER)
    for k in range(1, 16):
        unpack(U_ + 2, ER + 2 * k)
        e(f"v_pk_add_f32 {vr(EA,2)}, {vr(EA,2)}, {vr(U_+2,2)}\nv_pk_add_f32 {vr(EA+2,2)}, {vr(EA+2,2)}, {vr(U_+4,2)}")
    finish(EA, 4)
    e(f"s_waitcnt vmcnt(0)\nbuffer_store_dwordx2 {vr(EA,2)}, v{XE}, {R4(SRD_OUT)}, s{S_XE} offen\ns_branch K_XCHK")
    em.label("K_XPOLL")
    spin(em, 1)
    e(f"buffer_load_dword v6, v5, {R4(SRD_WS)}, s{S_OFL} offen {SC}")
    em.label("K_NOEX2")
    e("s_waitcnt vmcnt(0)")
    em.label("K_XCHK")
    e("v_cmp_ne_u32 vcc, 1, v6\ns_cbranch_vccnz K_XPOLL")
    stamp(em, "xchg")
    RC = 8
    e(f"s_lshl_b32 s{S_T2}, s{S_KQ}, 15\ns_add_u32 s{S_T2}, s{S_T2}, s{S_OB}")
    for h in range(2):
        for d in (1, 2, 3):
            e(f"s_xor_b32 s{S_T}, s{S_KQ}, {d}\ns_lshl_b32 s{S_T}, s{S_T}, 13\ns_add_u32 s{S_T}, s{S_T}, s{S_T2}")
            e(f"buffer_load_dwordx4 {vr(RC+(d-1)*8+4*h,4)}, v{L16}, {R4(SRD_WS)}, s{S_T} offen offset:{h*1024} {SC}")
    e(f"v_add_u32 v5, s{S_SCR}, v{L16}")
    for k in range(4):
        if (k & 1) == 0: e(f"s_waitcnt vmcnt({3 - 3*(k>>1)})")
        a = ACC(0, k)
        for i in range(3):
            unpack(U_ + 2, RC + i * 8 + 2 * k)
            e(f"v_pk_add_f32 {vr(a,2)}, {vr(a,2)}, {vr(U_+2,2)}\nv_pk_add_f32 {vr(a+2,2)}, {vr(a+2,2)}, {vr(U_+4,2)}")
        finish(a, k)
        e(f"ds_write_b64 v{XA+k}, {vr(a,2)}")
    e(f"ds_read_b128 {vr(RC,4)}, v5\nds_read_b128 {vr(RC+4,4)}, v5 offset:1024")
    for i in range(2):
        e(f"s_waitcnt lgkmcnt({1-i})\nbuffer_store_dwordx4 {vr(RC+4*i,4)}, v{XV+i}, {R4(SRD_OUT)}, s{S_XR} offen")

def emit_ygather(em):
    e = em.e
    YL = 40; YA = 60; E = 64; T = 68
    dst = [8 + 4 * i for i in range(8)] + [88 + 4 * i for i in range(28)]
    flag = f"s_mov_b64 exec, 1\nbuffer_store_dword v6, v{L16}, {R4(SRD_WS)}, s{S_X2} offen {SC}\ns_mov_b64 exec, -1"
    em.label("K_YG")
    e(f"s_mov_b32 s{S_X1}, 0\nv_cmp_gt_u32 vcc, 144, v{SNY}\ns_cbranch_vccz K_YOK")
    e(f"s_waitcnt vmcnt(0)\n{flag}\ns_mov_b32 s{S_X1}, 1\nv_mov_b32 v5, 0")
    em.label("K_YPOLL")
    spin(em, 2)
    e(f"buffer_load_dword v{SNY}, v5, {R4(SRD_DBG)}, 0 offen offset:{DBG_Y} {SC}\ns_waitcnt vmcnt(0)\nv_cmp_gt_u32 vcc, 144, v{SNY}\ns_cbranch_vccnz K_YPOLL")
    em.label("K_YOK")
    e(f"s_lshl_b32 s{S_T}, s{S_NB}, 9\ns_lshl_b32 s{S_T2}, s{S_X0}, 1\ns_add_u32 s{S_T}, s{S_T}, s{S_T2}\nv_mul_u32_u24 v{YA}, 18432, v4\nv_lshl_add_u32 v{YA}, v3, 4, v{YA}\nv_add_u32 v{YA}, s{S_T}, v{YA}")
    e(f"s_lshl_b32 s{S_T}, s{S_NB}, 6\ns_add_u32 s{S_T}, s{S_T}, 2048\nv_lshrrev_b32 v{YA+1}, 2, v1\nv_mul_u32_u24 v{YA+1}, 18432, v{YA+1}\nv_and_b32 v5, 3, v1\nv_lshl_add_u32 v{YA+1}, v5, 4, v{YA+1}\nv_add_u32 v{YA+1}, s{S_T}, v{YA+1}")
    e(f"s_lshl_b32 s{S_T}, s{S_W1K}, 1\ns_add_u32 s{S_T}, s{S_T}, s{S_EX1}\nv_add_u32 v{YA+2}, s{S_T}, v{L16}\nv_lshl_add_u32 v{YA+3}, v4, 4, s{S_T}")
    em.label("K_YTOK")
    e(f"s_ff1_i32_b32 s{S_T3}, s{S_VAL}\ns_bitset0_b32 s{S_VAL}, s{S_T3}")
    e(f"s_mul_i32 s{S_T}, s{S_T3}, 2304\ns_add_u32 s{S_T}, s{S_T}, {hex(WS_YP)}\ns_mov_b32 s{S_T2}, s{S_T}")
    for i in range(9):
        e(f"buffer_load_dwordx4 {ar(4*i,4)}, v{YA+1}, {R4(SRD_WS)}, s{S_T2} offen {SC}\ns_add_u32 s{S_T2}, s{S_T2}, {16*18432}")
    for i in range(36):
        e(f"buffer_load_dwordx4 {vr(dst[i],4)}, v{YA}, {R4(SRD_WS)}, s{S_T} offen {SC}\ns_add_u32 s{S_T}, s{S_T}, {4*18432}")
        if i == 17:
            e(f"s_cmp_lg_u32 s{S_X1}, 0\ns_cbranch_scc1 K_YNF\ns_waitcnt vmcnt(27)\n{flag}\ns_mov_b32 s{S_X1}, 1")
            em.label("K_YNF")
    e(f"v_readlane_b32 s{S_T}, v{RWV}, s{S_T3}\nv_readlane_b32 s{S_T2}, v{RSV}, s{S_T3}\ns_waitcnt vmcnt(36)")
    for r in range(4): e(f"v_accvgpr_read_b32 v{E+r}, a{r}")
    for i in range(1, 9):
        for r in range(4): e(f"v_accvgpr_read_b32 v{T+r}, a{4*i+r}")
        e(f"v_pk_add_f32 {vr(E,2)}, {vr(E,2)}, {vr(T,2)}\nv_pk_add_f32 {vr(E+2,2)}, {vr(E+2,2)}, {vr(T+2,2)}")
    for rot in (8, 4):
        e("s_nop 0")
        for r in range(4): e(f"v_add_f32_dpp v{E+r}, v{E+r}, v{E+r} row_ror:{rot} row_mask:0xf bank_mask:0xf")
    A = dst[0]
    for i in range(1, 36):
        if i % 6 == 1: e(f"s_waitcnt vmcnt({max(0, 36 - i - 6)})")
        e(f"v_pk_add_f32 {vr(A,2)}, {vr(A,2)}, {vr(dst[i],2)}\nv_pk_add_f32 {vr(A+2,2)}, {vr(A+2,2)}, {vr(dst[i]+2,2)}")
    e(f"ds_write_b128 v{YA+2}, {vr(A,4)}\nds_write_b128 v{YA+2}, {vr(E,4)} offset:1024")
    B = 88
    for k in range(5):
        for sub in range(4): e(f"ds_read_b128 {vr(B+16*k+4*sub,4)}, v{YA+3} offset:{sub*256 + (k*64 if k < 4 else 1024)}")
    e(f"v_cmp_eq_u32 vcc, s{S_T}, v3\ns_waitcnt lgkmcnt(0)\ns_mov_b64 exec, vcc")
    for k in range(5):
        b = B + 16 * k
        for h in (0, 2):
            e(f"v_pk_add_f32 {vr(b+h,2)}, {vr(b+h,2)}, {vr(b+4+h,2)}\nv_pk_add_f32 {vr(b+8+h,2)}, {vr(b+8+h,2)}, {vr(b+12+h,2)}\nv_pk_add_f32 {vr(b+h,2)}, {vr(b+h,2)}, {vr(b+8+h,2)}")
            y = YL + 4 * k + h
            e(f"v_cvt_pk_bf16_f32 v{b+h}, v{b+h}, v{b+h+1}\nv_lshlrev_b32 v{y}, 16, v{b+h}\nv_and_b32 v{y+1}, 0xffff0000, v{b+h}\nv_mul_f32 v{y}, s{S_T2}, v{y}\nv_mul_f32 v{y+1}, s{S_T2}, v{y+1}")
            e(f"v_cvt_pk_bf16_f32 v{b+h}, v{y}, v{y+1}\nv_lshlrev_b32 v{y}, 16, v{b+h}\nv_and_b32 v{y+1}, 0xffff0000, v{b+h}")
    e(f"s_mov_b64 exec, -1\ns_cmp_lg_u32 s{S_VAL}, 0\ns_cbranch_scc1 K_YTOK\ns_branch K_YGD")
```

```python
from defs import *
from front import dma_k, dma_v, kaddr, vaddr, kv_init
import copy

def qk(bw, kt, s, qs, c0=None):
    D = Sreg(bw, qs, kt)
    C = (vr(NM + qs * 4, 4) if c0 is None else c0) if s == 0 else vr(D, 4)
    return f"{MF} {vr(D,4)}, {ar(Kf(kt,s),4)}, {vr(Qf(qs,s),4)}, {C}"
def pv(pr, T, qs):
    O = Oacc(T, qs)
    return f"{MF} {ar(O,4)}, {ar(Vf(T),4)}, {vr(Preg(pr,qs),4)}, {ar(O,4)}"
def smf(pr, h): return f"{SMF} {ar(AL+h*4,4)}, {ar(AONE,4)}, {vr(Preg(pr,2*h),8)}, v{SIDX}"
def kld(blk, i): return f"ds_read_b128 {ar(Kf(i>>2,i&3),4)}, v{KA+(i&3)} offset:{kaddr(blk) + (i>>2)*4096}"
def vld(blk, T, j): return f"ds_read_b64_tr_b16 {ar(Vf(T)+2*j,2)}, v{VA+T} offset:{vaddr(blk) + j*4096}"

def step_mf(u, do_qk=True, do_pv=True, xmf=None):
    bw = (u + 1) & 1; pr = (u + 1) & 1
    mf = []; fr = []
    for i in range(8):
        if do_qk:
            kt, qs = i >> 2, i & 3
            for s in range(4):
                mf.append(qk(bw, kt, s, qs))
                if qs == 3: fr.append((len(mf) - 1, "K", kt * 4 + s))
        if do_pv:
            for qs in range(4): mf.append(pv(pr, i, qs))
            fr.append((len(mf) - 1, "V", i))
            if (i & 3) == 1: mf.append(smf(pr, i >> 2))
        mf += (xmf or {}).get(i, [])
    return mf, fr

def emit_step(em, u, do_qk=True, do_pv=True, ld_k=True, vm=(), post=(), bar=False, hook=None, nxt=None, vmspan=None, vmw=3, side=(), xmf=None, scal=()):
    br = u & 1
    mf, fr = step_mf(u, do_qk, do_pv, xmf)
    n = len(mf)
    BG = OPT["barg"]
    lo = BG + 1 if bar else 0
    dsl = []
    for g, kind, i in fr:
        if kind == "K" and ld_k: dsl.append((g, kld(u + 2, i)))
        if kind == "V": dsl += [(g, vld(u, i, 0)), (g, vld(u, i, 1))]
    if not do_pv:
        for i in range(8): dsl += [((i * n) // 10, vld(u, i, j)) for j in range(2)]
    dsl.sort(key=lambda x: x[0])
    st = {"ds": [It("ds", t, at=max(g, lo)) for g, t in dsl], "side": list(side), "scal": list(scal)}
    vm = list(vm)
    nv = sum(1 for x in vm if x.kind == "vm"); k = 0
    for x in vm:
        x.at = lo + 1 + (k * ((vmspan or n) - 4 - lo)) // max(nv, 1)
        if x.kind == "vm": k += 1
    st["vm"] = vm
    st["post"] = [It("s", t, at=n - 2 - len(post) + k) for k, t in enumerate(post)]
    budget = 8 if n > 40 else 16
    ex = [(x * (n - 4)) // 32 for x in range(32)]
    st["exp"] = [It("x", f"v_exp_f32 v{S0+br*32+x}, v{S0+br*32+x}", at=ex[x]) for x in range(32)]
    est = [ex[2 * j + 1] + 1 for j in range(16)]
    for itn in range(30):
        st["cvt"] = [It("v", f"v_cvt_pk_bf16_f32 v{P0+br*16+j}, v{S0+br*32+2*j}, v{S0+br*32+2*j+1}", at=est[j]) for j in range(16)]
        packed = pack(n, st, ["exp", "vm", "ds", "cvt", "post", "side", "scal"], budget=budget)
        eg = [g for g, items in enumerate(packed) for it in items if it in st["exp"]]
        new = [eg[2 * j + 1] + 1 for j in range(16)]
        if all(a <= b for a, b in zip(new, est)): break
        est = [max(a, b) for a, b in zip(new, est)]
    else: raise RuntimeError("no fixpoint")
    assert not any(it in st["exp"] for it in packed[n])
    if side and packed[n]: print("step", u, "overflow", len(packed[n]))
    em.c(f"--- step {u}")
    if bar:
        emit_packed(em, mf[:BG + 1], packed[:BG + 1] + [[]], None)
        if vmw == "kv": vmw = em.vm_n("kv")
        em.ds_all(f"vmcnt({vmw})" if vmw is not None else "")
        em.e("s_barrier")
        if OPT["fine"] & 32:
            if u == 0: em.e("s_mov_b32 s101, 44")
            em.e(f"s_memtime s[98:99]\ns_mov_b32 m0, s101\ns_add_u32 s101, s101, 1\ns_waitcnt lgkmcnt(0)\nv_writelane_b32 v2, s98, m0")
        if hook: hook(em)
        emit_packed(em, mf[BG + 1:], packed[BG + 1:], nxt)
    else:
        emit_packed(em, mf, packed, nxt)

def rowmax_groups(em, v, t):
    e = em.e
    e(f"v_mov_b32 v{t}, v{v}\ns_nop 1\nv_permlane16_swap_b32 v{v}, v{t}\nv_max_f32 v{v}, v{v}, v{t}")
    e(f"v_mov_b32 v{t}, v{v}\ns_nop 1\nv_permlane32_swap_b32 v{v}, v{t}\nv_max_f32 v{v}, v{v}, v{t}")

def emit_pre(em):
    e = em.e
    def mx(qs):
        b = S0 + qs * 8; m = NM + 4 * qs
        return [f"v_max3_f32 v{m}, v{b}, v{b+1}, v{b+2}", f"v_max3_f32 v{m}, v{m}, v{b+3}, v{b+4}", f"v_max3_f32 v{m}, v{m}, v{b+5}, v{b+6}", f"v_max_f32 v{m}, v{m}, v{b+7}", f"v_mov_b32 v{m+1}, v{m}"]
    va = mx(0) + mx(1)
    e(va.pop(0)); e(va.pop(0))
    for kt in range(2):
        for s in range(4):
            em.mfma(qk(0, kt, s, 3, c0="0"))
            em.dsr(kld(1, kt * 4 + s))
            e(va.pop(0))
    import front
    ki = front.key_items()
    em.items(ki[:5])
    for x in mx(2): e(x)
    em.items(ki[5:])
    for x in mx(3): e(x)
    for op in ("v_permlane16_swap_b32", "v_permlane32_swap_b32"):
        for qs in range(4): e(f"{op} v{NM+4*qs}, v{NM+4*qs+1}")
        for qs in range(4):
            m = NM + 4 * qs
            e(f"v_max_f32 v{m}, v{m}, v{m+1}")
            if "16" in op: e(f"v_mov_b32 v{m+1}, v{m}")
    for qs in range(4):
        m = NM + 4 * qs
        for r in (3, 2, 1, 0): e(f"v_sub_f32 v{m+r}, 0, v{m}")
    em.label("K_HAVEMAX")
    for qs in range(4):
        for x in range(0, 8, 2):
            e(f"v_pk_add_f32 {vr(S0+qs*8+x,2)}, {vr(S0+qs*8+x,2)}, {vr(NM+qs*4,2)}")

def period_dma(p):
    its = dma_v(LDS_V + vaddr(4 * p + 4)) + dma_k(kaddr(4 * p + 6)) + dma_v(LDS_V + vaddr(4 * p + 6)) + dma_k(kaddr(4 * p + 8), tag="kv")
    ns = OPT["dmasteps"]
    per = [[] for _ in range(4)]
    k = 0
    for x in its:
        per[min((k * ns) // 16, ns - 1)].append(x)
        if x.kind == "vm": k += 1
    import moe
    per[3] = moe.side_items()
    return per

def snap(em): return (em.ds, em.ds_done, dict(em.ldmap), em.clock, dict(em.dst))
def restore(em, s): em.ds, em.ds_done, em.ldmap, em.clock, em.dst = s[0], s[1], dict(s[2]), s[3], dict(s[4])

LOOPST = {}
def first(u): return step_mf(u)[0][0]
def emit_loop(em, last_vm):
    import front, moe, tail
    e = em.e
    emit_step(em, 0, do_pv=False, vm=period_dma(0)[0], bar=True, vmw=8)
    front.emit_rank(em)
    e("s_memrealtime s[94:95]")
    em.ds_all()
    e(f"s_mov_b32 s{S_LOOP}, 0")
    moe.side_init(em)
    keep = em.L; em.L = []
    emit_step(em, 7, vm=period_dma(1)[3], vmspan=40); emit_step(em, 8, vm=period_dma(2)[0], bar=True, nxt=first(9))
    em.L = keep
    e(".p2align 6")
    em.label("K_LOOP")
    for b in (1, 2, 3, 4, 5, 6, 7, 8):
        u = b + 8
        post = ()
        if b == 3: post = (f"s_add_u32 s{S_LOOP}, s{S_LOOP}, 1", f"s_bitcmp1_b32 s{S_H0}, s{S_LOOP}")
        emit_step(em, u, vm=period_dma(u >> 2)[u & 3], bar=(u & 3) == 0, post=post, vmspan=(40 if (u & 3) == 3 else None), nxt=first(u + 1))
        if b == 3:
            e("s_cbranch_scc1 K_EXIT"); LOOPST["b4"] = snap(em)
            em.label("K_B4")
        if b == 4:
            LOOPST["b5"] = snap(em)
            em.label("K_B5")
    e("s_branch K_LOOP")
    restore(em, LOOPST["b4"])
    em.label("K_EXIT")
    e(f"s_cmp_lg_u32 s{S_LOOP}, 8\ns_cbranch_scc1 K_HOOK")
    em.label("K_LAST")
    stamp(em, "loop", 0 if not OPT["fine"] & 64 else 128)
    em.vm = 0
    for u in (60, 61, 62, 63):
        emit_step(em, u, do_qk=(u < 63), ld_k=(u < 62), vm=last_vm(em, u), bar=(u in (60, 62)), vmw=(3 if u == 60 else None),
                  side=(tail.last_side() if u == 60 else ()), nxt=(first(u + 1) if u < 62 else None))

def emit_fallback(em):
    e = em.e
    em.label("K_FB")
    e(f"s_mov_b32 s{S_PASS}, 1\ns_waitcnt vmcnt(0) lgkmcnt(0)\ns_barrier")
    for qs in range(4): e(f"v_mov_b32 v{NM+4*qs}, 0xff800000")
    e(f"s_mov_b32 s{S_KOFF}, 0\ns_mov_b32 s{S_LOOP}, 32")
    em.label("K_FBLOOP")
    em.items(dma_k(kaddr(4)))
    e("s_waitcnt vmcnt(0)\ns_barrier")
    for half in range(2):
        for i in range(8): e(kld(4 + half, i))
        e("s_waitcnt lgkmcnt(0)")
        for qs in range(4):
            for kt in range(2):
                for s in range(4): e(qk(0, kt, s, qs, c0="0"))
        e("s_nop 7")
        for qs in range(4):
            b = S0 + qs * 8; m = NM + 4 * qs
            e(f"v_max3_f32 v{m}, v{m}, v{b}, v{b+1}\nv_max3_f32 v{m}, v{m}, v{b+2}, v{b+3}\nv_max3_f32 v{m}, v{m}, v{b+4}, v{b+5}\nv_max3_f32 v{m}, v{m}, v{b+6}, v{b+7}")
    e(f"s_barrier\ns_sub_u32 s{S_LOOP}, s{S_LOOP}, 1\ns_cmp_lg_u32 s{S_LOOP}, 0\ns_cbranch_scc1 K_FBLOOP")
    for qs in range(4):
        m = NM + 4 * qs
        rowmax_groups(em, m, m + 1)
        for r in (3, 2, 1, 0): e(f"v_sub_f32 v{m+r}, 0, v{m}")
    k, v = kv_init()
    em.items(k + v)
    e(f"s_mov_b32 s{S_LOOP}, 0")
    for i in range(128): e(f"v_accvgpr_write_b32 a{AO+i}, 0")
    for i in range(8): e(f"v_accvgpr_write_b32 a{AL+i}, 0")
    e("s_waitcnt vmcnt(0)\ns_barrier")
    for i in range(8): e(kld(0, i))
    e("s_waitcnt lgkmcnt(0)")
    for qs in range(4):
        for kt in range(2):
            for s in range(4): e(qk(0, kt, s, qs, c0="0"))
    for i in range(8): e(kld(1, i))
    e("s_waitcnt lgkmcnt(0)\ns_branch K_HAVEMAX")
```

```python
from lib import *
MF = "v_mfma_f32_16x16x32_bf16"
SMF = "v_smfmac_f32_16x16x64_bf16"
import os
SC = os.environ.get("SCX", "sc0 sc1")
OPT = dict(osc=3, soft=0, sg1=14, sg2=22, rfast=1, map2=0, wl=1, early=1, qlate=1, nt=0, ra=1, rb=2, tlb=1, ot=6, trk=20, dbgx=0, lat=2, bars="3:0,7:3,15:4,19:5,23:6,27:7", ng=0, ng2=0, ng3=2, wod=11, e1=4, gs=12, gl=4, tf0=1, ts0=4, tc0=6, h1b=0, ng0=8, tf1=7, ts1=11, tc1=14, te=24, exl=1, verb=0, dyn=1, kp=12, fat=0, xs=2, xo=0, tg=14, n0=12, spr=12, pub=1, qgap=42, cpf0=1, stop=0, tkv=1, ttail=0, ck=13, noside=0, fine=0, prof=0, dump="", cpf=1, touchq=0, touchw=1, dmasteps=3, barg=5)
S0, P0, NM, Q0 = 8, 72, 136, 152
KA, VA, DK, DV, L16, SIDX = 216, 220, 228, 232, 234, 235
WOV, WEV, GO4 = 236, 237, 238
T0V, T1V = 254, 255
QACC = 8
KEYS = 104; WQA = 184
DW = 136; DX = 144; STV = 148
LNK = 214
AO, AK, AV, AONE, AL = 0, 128, 160, 208, 248
QA_, QB_, CS_ = 128, 192, 248
QSLOT = [0, 98304, 49152]
LDS_K, LDS_V = 0, 65536
SCR = 147456
U = 32768
SPARE = 4 * U
SRD_K, SRD_V, SRD_W, SRD_WS, SRD_X, SRD_DBG = 8, 12, 16, 20, 24, 28
SRD_SA, SRD_SB, SRD_WD, SRD_OUT, SRD_FO = 56, 60, 64, 68, 76
S_WAVE, S_KV, S_QB, S_KQ, S_NB = 32, 33, 34, 35, 36
S_W4K, S_KOFF, S_VOFF, S_LOOP, S_PASS = 37, 38, 39, 40, 41
S_WQO, S_XO, S_MW, S_MX = 42, 43, 44, 45
S_MX2 = 85
S_PF, S_PFS, S_PFM = 42, 43, 44
PFV = 251
XV, XE, XA = 239, 240, 241
CPV, WTV = 242, 243
AX = 236
S_T, S_T2, S_T3 = 46, 47, 48
S_W8K = 49
S_SA, S_SB = 50, 51
S_GD = 52
S_OB = 53
S_OFL = 54
S_ROW = 55
S_XR, S_XE, S_X0, S_RD = 80, 81, 82, 83
S_W1K = 3
S_H0 = 74
S_WT = 45
S_PC = 72
S_EXO = 75
S_WOO = 84
S_P = 86
S_SPIN = 100
S_K0, S_K1 = 92, 93
def Sreg(b, qs, kt): return S0 + b * 32 + qs * 8 + kt * 4
def Preg(b, qs): return P0 + b * 16 + qs * 4
def Qf(qs, s): return Q0 + (qs * 4 + s) * 4
def Oacc(T, qs): return AO + (qs * 8 + T) * 4
def Kf(kt, s): return AK + (kt * 4 + s) * 4
def Vf(T): return AV + T * 4
def NT(bit): return " nt" if OPT["nt"] & bit else ""
def R4(d): return f"s[{d}:{d+3}]"
NST = [0]
STN = []
def stamp(em, name, fine=0):
    if not OPT["prof"] or (fine and not (OPT["fine"] & fine)): return
    if OPT["prof"] == 2 and name not in ("entry", "pre", "last", "fin"): return
    k = NST[0]; NST[0] += 1; STN.append(name)
    em.e(f"s_memrealtime s[98:99]\ns_waitcnt lgkmcnt(0)\nv_writelane_b32 v2, s98, {k}\ns_memtime s[98:99]\ns_waitcnt lgkmcnt(0)\nv_writelane_b32 v2, s98, {k+32}")
    em.ds_done = em.ds - 1
def xstamp(em, k, bit=4):
    if not OPT["prof"] or not (OPT["fine"] & bit): return
    em.e(f"s_memtime s[98:99]\ns_waitcnt lgkmcnt(0)\nv_writelane_b32 v2, s98, {k+32}")
    em.ds_done = em.ds - 1
def spin(em, n):
    em.e(f"s_sleep {n}\ns_add_u32 s{S_SPIN}, s{S_SPIN}, 1\ns_bitcmp1_b32 s{S_SPIN}, 19\ns_cbranch_scc1 K_END")
def code_prefetch(em, start, end, dst, uniq, forward):
    e = em.e
    e(f"s_getpc_b64 s[96:97]")
    em.label(f"PC_{uniq}")
    if forward: e(f"s_add_u32 s96, s96, {start}-PC_{uniq}\ns_addc_u32 s97, s97, 0")
    else: e(f"s_sub_u32 s96, s96, PC_{uniq}-{start}\ns_subb_u32 s97, s97, 0")
    e(f"s_lshr_b32 s{S_T}, s2, 3\ns_lshl_b32 s{S_T}, s{S_T}, 2\ns_add_u32 s{S_T}, s{S_T}, s{S_WAVE}")
    e(f"s_min_u32 s{S_T}, s{S_T}, ({end}-{start})>>10\ns_lshl_b32 s{S_T}, s{S_T}, 10")
    e(f"v_lshlrev_b32 v7, 4, v1\nv_add_u32 v7, s{S_T}, v7")
    return em.vmem(f"global_load_dwordx4 {dst}, v7, s[96:97]")
```

```python
from defs import *

def reduce32(em, v, t):
    e = em.e
    for rot in (8, 4, 2, 1):
        e(f"s_nop 1\nv_add_f32_dpp v{t}, v{v}, v{v} row_ror:{rot} row_mask:0xf bank_mask:0xf")
        v, t = t, v
    e(f"v_mov_b32 v{t}, v{v}\ns_nop 1\nv_permlane16_swap_b32 v{v}, v{t}\nv_add_f32 v{v}, v{v}, v{t}")
def bf16r(em, d, s): em.e(f"v_cvt_pk_bf16_f32 v{d}, v{s}, v{s}\nv_lshlrev_b32 v{d}, 16, v{d}")

def q_dma(c):
    sl = QSLOT[c % 3]
    r = []
    for h in range(2):
        r.append(It("s", f"s_add_u32 m0, s{(S_MX, S_MX2)[h]}, {sl + 32768}"))
        r += [It("vm", f"buffer_load_dwordx4 v{DX+2*h+i}, {R4(SRD_X)}, s{S_XO} offen offset:{i*1024} lds", tag=("q", c)) for i in range(2)]
    r.append(It("s", f"s_add_u32 s{S_XO}, s{S_XO}, 128"))
    for h in range(2):
        r.append(It("s", f"s_add_u32 m0, s{S_MW}, {sl + h*4096}"))
        r += [It("vm", f"buffer_load_dwordx4 v{DW+4*h+i}, {R4(SRD_W)}, s{S_WQO} offen offset:{i*1024} lds", tag=("q", c)) for i in range(4)]
    r.append(It("s", f"s_add_u32 s{S_WQO}, s{S_WQO}, {64*8192}"))
    return r
def dma_k(lds, tag=None):
    return [It("s", f"s_add_u32 m0, s{S_W4K}, {lds}")] + \
           [It("vm", f"buffer_load_dwordx4 v{DK+i}, {R4(SRD_K)}, s{S_KOFF} offen offset:{i*1024} lds", tag=tag) for i in range(4)] + \
           [It("s", f"s_add_u32 s{S_KOFF}, s{S_KOFF}, 16384")]
def dma_v(lds, tag=None):
    return [It("s", f"s_add_u32 m0, s{S_W4K}, {lds}")] + \
           [It("vm", f"buffer_load_dwordx4 v{DV+(i&1)}, {R4(SRD_V)}, s{S_VOFF} offen offset:{i*1024} lds", tag=tag) for i in range(4)] + \
           [It("s", f"s_add_u32 s{S_VOFF}, s{S_VOFF}, 16384")]
def kaddr(b): return LDS_K + (((b - 2) >> 2) & 1) * 32768 + (b & 3) * 8192
def vaddr(b): return (1 - ((b >> 2) & 1)) * 32768 + (b & 3) * 8192
def kv_init():
    k = [It("s", f"s_mov_b32 s{S_KOFF}, 0")] + dma_k(kaddr(0)) + dma_k(kaddr(2)) + dma_k(kaddr(4))
    v = [It("s", f"s_mov_b32 s{S_VOFF}, 0")] + dma_v(LDS_V + vaddr(0)) + dma_v(LDS_V + vaddr(2))
    return k, v

def as_items(text):
    r = []
    for l in text.split("\n"):
        l = l.strip()
        if l: r.append(It("s" if l.startswith("s_") else "v", l.replace(" ; ", "\n")))
    return r
class Rec:
    def __init__(self): self.t = []
    def e(self, s): self.t.append(s)
SHADOW = []
XQ = 152
def emit_front(em, kname):
    e = em.e
    P = S_P
    e("s_cmp_ge_u32 s2, 256\ns_cbranch_scc1 K_END")
    stamp(em, "entry")
    if OPT["cpf0"]:
        e("s_getpc_b64 s[96:97]\nv_lshlrev_b32 v7, 5, v0")
        em.vmem("global_load_dword a4, v7, s[96:97]")
    e(f"s_load_dwordx8 s[{P+2}:{P+9}], s[0:1], 0")
    e(f"s_load_dwordx2 s[{P}:{P+1}], s[0:1], {KA_WR}")
    e(f"s_load_dwordx4 s[4:7], s[0:1], {KA_DBG}")
    e("v_and_b32 v1, 63, v0\nv_lshrrev_b32 v5, 6, v0")
    e(f"s_bfe_u32 s{S_KQ}, s2, 0x20001\ns_bfe_u32 s{S_NB}, s2, 0x20003")
    e(f"v_readfirstlane_b32 s{S_WAVE}, v5")
    e(f"s_lshl_b32 s{S_KV}, s{S_KQ}, 2\ns_add_u32 s{S_KV}, s{S_KV}, s{S_NB}")
    e(f"s_and_b32 s{S_QB}, s2, 1\ns_lshl_b32 s{S_QB}, s{S_QB}, 3\ns_lshr_b32 s{S_T}, s2, 5\ns_add_u32 s{S_QB}, s{S_QB}, s{S_T}")
    e(f"s_lshl_b32 s{S_T}, s{S_QB}, 7\ns_lshl_b32 s{S_T2}, s{S_KV}, 3\ns_add_u32 s3, s{S_T}, s{S_T2}")
    LR, LT, LO, LW = 8, 9, 10, 11
    e(f"v_lshrrev_b32 v{LR}, 5, v0\nv_add_u32 v{LR}, s3, v{LR}\nv_and_b32 v{LT}, 31, v0\nv_mul_u32_u24 v{LW}, 12, v{LT}")
    e(f"v_mul_u32_u24 v{LO}, 0x480, v{LR}\nv_add_u32 v{LO}, v{LO}, v{LW}")
    e(f"v_lshrrev_b32 v5, 3, v1\nv_and_b32 v6, 7, v1\nv_xor_b32 v6, v6, v5\nv_mul_u32_u24 v5, 0x480, v5\nv_lshl_add_u32 v{DX}, v6, 4, v5")
    e(f"v_add_u32 v{DX+1}, {9216-1024}, v{DX}\nv_add_u32 v{DX+2}, {18432}, v{DX}\nv_add_u32 v{DX+3}, {27648-1024}, v{DX}")
    e(f"s_lshl_b32 s{S_T2}, s{S_WAVE}, 5\ns_add_u32 s{S_ROW}, s{S_T}, s{S_T2}\ns_mul_i32 s{S_XO}, s{S_ROW}, 1152")
    e(f"s_lshl_b32 s{S_W4K}, s{S_WAVE}, 12\ns_lshr_b32 s{S_T}, s{S_KQ}, 1\ns_lshl_b32 s{S_T2}, s{S_T}, 11\ns_or_b32 s{S_MX}, s{S_W4K}, s{S_T2}\ns_xor_b32 s{S_MX2}, s{S_MX}, 2048")
    e(f"s_lshl_b32 s{S_T}, s{S_T}, 4\ns_add_u32 s{S_ROW}, s{S_ROW}, s{S_T}")
    X, W, F = 12, 24, 40
    xr = [X + 4 * (i // 3) + i % 3 for i in range(9)]
    wr = [W + 4 * (i // 3) + i % 3 for i in range(9)]
    e(f"s_mov_b32 s{SRD_X+2}, {hex(2048*1152)}\ns_mov_b32 s{SRD_X+3}, 0x00020000")
    e("s_waitcnt lgkmcnt(0)")
    stamp(em, "karg", 1)
    e(f"s_mov_b32 s{SRD_X}, s{P+2}\ns_and_b32 s{SRD_X+1}, s{P+3}, 0xffff")
    for i in range(3): em.vmem(f"buffer_load_dwordx3 {vr(X+4*i,3)}, v{LO}, {R4(SRD_X)}, 0 offen offset:{i*384}", "lnx")
    srd(em, SRD_DBG, P, 1152)
    for i in range(3): em.vmem(f"buffer_load_dwordx3 {vr(W+4*i,3)}, v{LW}, {R4(SRD_DBG)}, 0 offen offset:{i*384}", "lnw")
    q0 = q_dma(0)
    em.items(q0[:7])
    srd(em, SRD_W, P + 8, 576 * 8192)
    e(f"v_lshrrev_b32 v5, 5, v1\nv_and_b32 v6, 31, v1\nv_lshlrev_b32 v7, 1, v5\nv_xor_b32 v6, v6, v7\nv_lshlrev_b32 v6, 4, v6\nv_lshl_add_u32 v{DW}, v5, 13, v6")
    e(f"s_lshl_b32 s{S_WQO}, s{S_KV}, 9\ns_lshl_b32 s{S_T}, s{S_WAVE}, 17\ns_add_u32 s{S_WQO}, s{S_WQO}, s{S_T}\ns_lshl_b32 s{S_MW}, s{S_WAVE}, 13")
    for i in range(1, 8):
        x = (((2 * i) & 3) | (((i >> 2) & 1) << 2)) << 5
        if x: e(f"v_xor_b32 v{DW+i}, {x}, v{DW}\nv_add_u32 v{DW+i}, {i*16384 - (i&3)*1024}, v{DW+i}")
        else: e(f"v_add_u32 v{DW+i}, {i*16384 - (i&3)*1024}, v{DW}")
    em.items(q0[7:7 + OPT["n0"]])
    if OPT["cpf"]: code_prefetch(em, kname, "K_CODE_END", "a[0:3]", "a", False)
    stamp(em, "start", 0 if not OPT["fine"] & 64 else 128)
    e(f"s_load_dwordx2 s[{SRD_OUT}:{SRD_OUT+1}], s[0:1], {KA_WO}")
    e(f"s_load_dwordx4 s[{SRD_SA}:{SRD_SA+3}], s[0:1], {KA_WG}")
    e(f"s_load_dwordx4 s[{SRD_WD}:{SRD_WD+3}], s[0:1], {KA_WD}")
    e(f"s_mov_b32 s{S_SPIN}, 0\nv_and_b32 v3, 15, v1\nv_lshrrev_b32 v4, 4, v1\nv_lshlrev_b32 v{L16}, 4, v1\nv_mov_b32 v{T1V}, 1")
    e(f"s_lshl_b32 s{S_T}, s{S_KV}, 19")
    srd(em, SRD_K, P + 4, 524288, add=f"s{S_T}")
    srd(em, SRD_V, P + 6, 524288, add=f"s{S_T}")
    srd(em, SRD_WS, 6, WS_SIZE)
    RP, CP = 248, 249
    e(f"v_bfe_u32 v{RP}, v1, 2, 2\nv_and_b32 v{CP}, 3, v1")
    e(f"v_and_b32 v5, 1, v4\nv_lshl_add_u32 v5, v5, 2, v{RP}\ns_lshl_b32 s{S_T}, s{S_WAVE}, 1\nv_xor_b32 v5, s{S_T}, v5\nv_lshlrev_b32 v5, 5, v5")
    e(f"v_lshl_add_u32 v6, v4, 3, v{RP}\nv_lshl_add_u32 v5, v6, 9, v5\nv_lshl_add_u32 v{WQA}, v{CP}, 3, v5")
    for t in range(1, 8): e(f"v_xor_b32 v{WQA+t}, {t*32}, v{WQA}")
    e(f"v_and_b32 v5, 7, v3\nv_xor_b32 v5, v5, v4\nv_lshlrev_b32 v5, 4, v5\nv_lshl_add_u32 v5, v3, 7, v5\nv_add_u32 v5, s{S_W4K}, v5\nv_add_u32 v{WQA+8}, 0x8000, v5\nv_xor_b32 v{WQA+9}, 64, v{WQA+8}")
    for k in (1, 2):
        for t in range(10): e(f"v_add_u32 v{WQA+10*k+t}, {hex(QSLOT[k])}, v{WQA+t}")
    e(f"v_lshrrev_b32 v5, 1, v4\nv_and_b32 v6, 7, v3\nv_xor_b32 v5, v5, v6\nv_lshlrev_b32 v5, 4, v5\nv_lshl_add_u32 v5, v3, 7, v5\nv_and_b32 v6, 1, v4\nv_lshl_add_u32 v{XA}, v6, 3, v5")
    e(f"s_lshl_b32 s{S_RD}, s{S_NB}, 1\ns_and_b32 s{S_T}, s{S_KQ}, 1\ns_add_u32 s{S_RD}, s{S_RD}, s{S_T}\ns_add_u32 s{S_T}, s{S_W4K}, 0x8000\nv_add_u32 v{XQ}, s{S_T}, v{XA}")
    for k in range(1, 4): e(f"v_xor_b32 v{XQ+k}, {32*k}, v{XQ}")
    e(f"v_bfe_u32 v5, v1, 1, 1\nv_bfe_u32 v6, v1, 5, 1\nv_cmp_eq_u32 vcc, v5, v6\nv_mov_b32 v7, 0x3f803f80\nv_and_b32 v5, 1, v1\nv_cndmask_b32 v7, 0, v7, vcc")
    for i in range(4): e(f"v_accvgpr_write_b32 a{AONE+i}, v7")
    e(f"v_mul_u32_u24 v5, 0xaaaa, v5\nv_add_u32 v{SIDX}, 0x4444, v5")
    for i in range(8): e(f"v_accvgpr_write_b32 a{CS_+i}, 0")
    FX, FE = S_KOFF, S_VOFF
    e(f"s_lshl_b32 s{S_T}, s{S_QB}, 2\ns_add_u32 s{S_T2}, s{S_T}, s{S_KQ}\ns_lshl_b32 s{S_T2}, s{S_T2}, 2\ns_add_u32 s{S_T2}, s{S_T2}, s{S_WAVE}\ns_lshl_b32 s{S_OFL}, s{S_T2}, 7\ns_add_u32 s{S_OFL}, s{S_OFL}, {hex(WS_OFL)}")
    e(f"s_add_u32 s{S_T2}, s{S_T}, s{S_NB}\ns_lshl_b32 s{S_T2}, s{S_T2}, 2\ns_add_u32 s{S_T2}, s{S_T2}, s{S_WAVE}\ns_lshl_b32 s{S_T2}, s{S_T2}, 7\ns_add_u32 s{S_T2}, s{S_T2}, s{S_KQ}\ns_lshl_b32 s{S_T2}, s{S_T2}, 2\ns_add_u32 s{FX}, s{S_T2}, {hex(WS_XFL)}")
    e(f"s_add_u32 s{S_T}, s{S_T}, s{S_WAVE}\ns_lshl_b32 s{S_T}, s{S_T}, 5\ns_add_u32 s{S_T}, s{S_T}, s{S_KV}\ns_lshl_b32 s{S_T}, s{S_T}, 2\ns_add_u32 s{FE}, s{S_T}, {hex(WS_EFL)}")
    e(f"s_lshl_b32 s{S_T}, s{S_NB}, 3\ns_add_u32 s{S_T}, s{S_T}, s{S_OFL}\ns_add_u32 s{S_T2}, s{S_T}, 4\nv_lshl_add_u32 v60, v1, 7, s{FX}\nv_mov_b32 v61, 0\nv_writelane_b32 v60, s{S_T}, 4\nv_writelane_b32 v60, s{S_T2}, 5\nv_writelane_b32 v60, s{FE}, 6")
    e(f"s_lshl_b32 s{S_T}, s{S_QB}, 2\ns_add_u32 s{S_T}, s{S_T}, s{S_KQ}\ns_lshl_b32 s{S_T}, s{S_T}, 3\ns_add_u32 s{S_T}, s{S_T}, {hex(WS_QT)}\ns_or_b32 s{S_T2}, s{S_NB}, s{S_WAVE}\ns_cselect_b32 s{S_T}, 0x7f000000, s{S_T}\nv_writelane_b32 v60, s{S_T}, 7\ns_add_u32 s{S_T}, s{S_T}, 4\nv_writelane_b32 v60, s{S_T}, 8")
    e(f"s_lshl_b32 s{S_T2}, s{S_WAVE}, 8\ns_or_b32 s{S_T2}, s{S_T2}, s2\ns_lshl_b32 s{S_T}, s2, 7\ns_add_u32 s{S_T}, s{S_T}, {hex(WS_YC)}\ns_cmp_lt_u32 s{S_T2}, 32\ns_cselect_b32 s{S_T}, s{S_T}, 0x7f000000\nv_writelane_b32 v60, s{S_T}, 9")
    C576, EPS, MSK = P + 4, P + 5, P + 6
    e(f"s_mov_b32 s{C576}, 0x3ae38e39\ns_mov_b32 s{EPS}, 0x3727c5ac\ns_mov_b32 s{MSK}, 0xffff0000")
    stamp(em, "setup", 1)
    em.items(q0[7 + OPT["n0"]:])
    e("s_mov_b64 exec, 0x3ff")
    em.vmem(f"buffer_store_dword v61, v60, {R4(SRD_WS)}, 0 offen {SC}")
    e("s_mov_b64 exec, -1")
    stamp(em, "dma1", 1)
    em.wait_vm("lnw")
    stamp(em, "lnx", 1)
    spr = q_dma(1); cnt = [0]
    def e(t):
        for l in t.split("\n"):
            em.e(l)
            if l.startswith("v_"):
                cnt[0] += 1
                if cnt[0] % OPT["spr"] == 0 and spr:
                    while spr[0].kind == "s": em.e(spr.pop(0).text)
                if cnt[0] % OPT["spr"] == 1 and spr and spr[0].kind == "vm" and cnt[0] > 1:
                    em.item(spr.pop(0))
                    if spr and all(x.kind == "s" for x in spr):
                        while spr: em.e(spr.pop(0).text)
    class W_:
        pass
    ew = W_(); ew.e = e
    for i in range(9): e(f"v_lshlrev_b32 v{F+2*i}, 16, v{xr[i]}\nv_and_b32 v{F+2*i+1}, s{MSK}, v{xr[i]}")
    A0, A1, A2, A3, A4, A5, A6, A7 = 64, 65, 66, 67, 68, 69, 70, 71
    pr = lambda a: vr(a, 2)
    e(f"v_pk_add_f32 {pr(A0)}, {pr(F)}, {pr(F+2)}\nv_pk_add_f32 {pr(A2)}, {pr(F+4)}, {pr(F+6)}")
    for i in range(4, 9): e(f"v_pk_add_f32 {pr(A0+2*(i&1))}, {pr(A0+2*(i&1))}, {pr(F+2*i)}")
    e(f"v_pk_add_f32 {pr(A0)}, {pr(A0)}, {pr(A2)}\nv_add_f32 v{A0}, v{A0}, v{A1}")
    reduce32(ew, A0, A1)
    e(f"v_mul_f32 v{A0}, s{C576}, v{A0}")
    D = 72
    for i in range(9): e(f"v_pk_add_f32 {pr(D+2*i)}, {pr(F+2*i)}, {pr(A0)} op_sel_hi:[1,0] neg_lo:[0,1] neg_hi:[0,1]")
    e(f"v_pk_mul_f32 {pr(A2)}, {pr(D)}, {pr(D)}\nv_pk_mul_f32 {pr(A4)}, {pr(D+2)}, {pr(D+2)}")
    for i in range(2, 9): e(f"v_pk_fma_f32 {pr(A2+2*(i&1))}, {pr(D+2*i)}, {pr(D+2*i)}, {pr(A2+2*(i&1))}")
    e(f"v_pk_add_f32 {pr(A2)}, {pr(A2)}, {pr(A4)}\nv_add_f32 v{A5}, v{A2}, v{A3}")
    bf16r(ew, A0, A0)
    sub = []
    for i in range(9):
        sub += [f"v_pk_add_f32 {pr(F+2*i)}, {pr(F+2*i)}, {pr(A0)} op_sel_hi:[1,0] neg_lo:[0,1] neg_hi:[0,1]", f"v_cvt_pk_bf16_f32 v{xr[i]}, v{F+2*i}, v{F+2*i+1}"]
    for i in range(9):
        sub += [f"v_lshlrev_b32 v{F+2*i}, 16, v{xr[i]}", f"v_and_b32 v{F+2*i+1}, s{MSK}, v{xr[i]}"]
    rec = Rec(); reduce32(rec, A5, A4)
    rec.e(f"v_mul_f32 v{A5}, s{C576}, v{A5}"); bf16r(rec, A5, A5); rec.e(f"v_add_f32 v{A5}, s{EPS}, v{A5}"); bf16r(rec, A5, A5)
    rec.e(f"v_sqrt_f32 v{A5}, v{A5}\ns_nop 1"); bf16r(rec, A1, A5); rec.e(f"v_rcp_f32 v{A2}, v{A1}\ns_nop 1")
    for l in "\n".join(rec.t).split("\n"):
        if l == "s_nop 1": e(sub.pop(0)); e(sub.pop(0))
        else: e(l)
    for l in sub: e(l)
    e(f"v_lshlrev_b32 v5, 3, v{LR}\ns_mov_b32 s{S_T}, {hex(WS_STAT)}\ns_mov_b32 exec_lo, 1\ns_mov_b32 exec_hi, 1")
    em.vmem(f"buffer_store_dwordx2 v[{A0}:{A1}], v5, {R4(SRD_WS)}, s{S_T} offen {SC}")
    e("s_mov_b64 exec, -1")
    e(f"v_mov_b32 v{A6}, 0\ns_waitcnt lgkmcnt(0)")
    q_first(em)
    for i in range(9):
        a = F + 2 * i; q = D + 2 * i
        e(f"v_pk_mul_f32 {pr(q)}, {pr(a)}, {pr(A2)} op_sel_hi:[1,0]")
        e(f"v_pk_fma_f32 {pr(a)}, {pr(q)}, {pr(A0)}, {pr(a)} op_sel:[0,1,0] op_sel_hi:[1,1,1] neg_lo:[1,0,0] neg_hi:[1,0,0]")
        e(f"v_pk_fma_f32 {pr(q)}, {pr(a)}, {pr(A2)}, {pr(q)} op_sel_hi:[1,0,1]")
        e(f"v_cvt_pk_bf16_f32 v{xr[i]}, v{q}, v{q+1}")
        e(f"v_dot2_f32_bf16 v{A6}, v{xr[i]}, v{wr[i]}, v{A6}")
        if i % 3 == 2: em.vmem(f"buffer_store_dwordx3 {vr(X+4*(i//3),3)}, v{LO}, {R4(SRD_WS)}, 0 offen offset:{(i//3)*384} {SC}")
    e(f"v_sub_u32 v{A4}, 2047, v{LR}\nv_lshlrev_b32 v5, 2, v{LR}")
    reduce32(ew, A6, A7)
    e(f"v_cvt_pk_bf16_f32 v{A6}, v{A6}, v{A6}\nv_ashrrev_i32 v{A7}, 31, v{A6}\nv_or_b32 v{A7}, 0x80000000, v{A7}\nv_xor_b32 v{A6}, v{A6}, v{A7}")
    e(f"v_and_or_b32 v{LNK}, v{A6}, s{MSK}, v{A4}")
    em.items(spr)
    e(f"s_mov_b32 s{S_T}, {hex(WS_KEY)}\ns_mov_b32 exec_lo, 1\ns_mov_b32 exec_hi, 1")
    em.vmem(f"buffer_store_dword v{LNK}, v5, {R4(SRD_WS)}, s{S_T} offen {SC}", "lnst")
    e("s_mov_b64 exec, -1")
    srd(em, SRD_DBG, 4, 256)
    stamp(em, "ln", 0 if not OPT["fine"] & 64 else 128)
    r = Rec(); e = r.e
    e(f"s_lshl_b32 s{S_T}, s{S_WAVE}, 2\nv_bfrev_b32 v5, v4\nv_lshrrev_b32 v5, 30, v5\nv_xor_b32 v5, s{S_T}, v5\nv_xor_b32 v5, v5, v3\nv_lshlrev_b32 v5, 4, v5\nv_lshl_add_u32 v{KA}, v3, 8, v5")
    for s in range(1, 4): e(f"v_xor_b32 v{KA+s}, {s*64}, v{KA}")
    e(f"v_lshl_add_u32 v6, v4, 2, v{RP}\nv_and_b32 v5, 7, v6\nv_lshlrev_b32 v5, 5, v5\nv_lshl_add_u32 v5, v6, 8, v5\nv_lshl_add_u32 v5, v{CP}, 3, v5\nv_add_u32 v{VA}, {hex(LDS_V)}, v5")
    for T in range(1, 8): e(f"v_xor_b32 v{VA+T}, {T*32}, v{VA}")
    e(f"v_xor_b32 v5, v4, v3\nv_lshlrev_b32 v5, 4, v5\nv_lshl_add_u32 v5, v4, 8, v5\nv_add_u32 v{DK}, s{S_W4K}, v5")
    for i in range(1, 4): e(f"v_xor_b32 v{DK+i}, {64*i}, v{DK}")
    e(f"v_lshlrev_b32 v5, 1, v4\nv_xor_b32 v5, v5, v3\nv_lshlrev_b32 v5, 4, v5\nv_lshl_add_u32 v5, v4, 8, v5\nv_add_u32 v{DV}, s{S_W4K}, v5\nv_xor_b32 v{DV+1}, 128, v{DV}")
    e(f"s_mov_b32 s{S_PASS}, 0\ns_lshl_b32 s{S_W8K}, s{S_WAVE}, 13\ns_add_u32 s{S_W8K}, s{S_W8K}, {SPARE}\ns_lshl_b32 s{S_W1K}, s{S_WAVE}, 10")
    e(f"s_lshl_b32 s{S_OB}, s{S_QB}, 4\ns_add_u32 s{S_OB}, s{S_OB}, s{S_KV}\ns_lshl_b32 s{S_OB}, s{S_OB}, 2\ns_add_u32 s{S_OB}, s{S_OB}, s{S_WAVE}\ns_lshl_b32 s{S_OB}, s{S_OB}, 14\ns_add_u32 s{S_OB}, s{S_OB}, {hex(WS_O)}")
    e(f"v_add_u32 v5, s{S_T}, v4\nv_and_b32 v6, 7, v5\nv_lshlrev_b32 v6, 1, v6\nv_xor_b32 v6, v6, v3\nv_mul_u32_u24 v5, 0x480, v5\nv_lshl_add_u32 v{WOV}, v6, 4, v5")
    e(f"v_lshrrev_b32 v5, 3, v0\nv_and_b32 v6, 6, v5\nv_and_b32 v7, 7, v1\nv_xor_b32 v6, v6, v7\nv_mul_u32_u24 v5, 0x480, v5\nv_lshl_add_u32 v{WEV}, v6, 4, v5")
    e(f"v_lshrrev_b32 v5, 2, v1\nv_mul_u32_u24 v5, 0x2400, v5\nv_lshl_add_u32 v{GO4}, v{CP}, 4, v5")
    e(f"s_lshl_b32 s{S_T2}, s{S_NB}, 8\ns_mul_i32 s{S_WOO}, s{S_KQ}, {1024*1152}\ns_add_u32 s{S_WOO}, s{S_WOO}, s{S_T2}")
    e(f"s_mul_i32 s{S_EXO}, s{S_KV}, {256*1152}\ns_add_u32 s{S_SB}, s{S_EXO}, s{S_T2}\ns_add_u32 s{S_EXO}, s{S_EXO}, 1024")
    e(f"s_mov_b64 s[{P}:{P+1}], s[{SRD_OUT}:{SRD_OUT+1}]\ns_mov_b64 s[{P+2}:{P+3}], s[{SRD_SA}:{SRD_SA+1}]\ns_mov_b64 s[{P+4}:{P+5}], s[{SRD_SA+2}:{SRD_SA+3}]")
    srd(r, SRD_OUT, SRD_WD + 2, 2048 * 1152)
    srd(r, SRD_WD, SRD_WD, 4608 * 1152)
    srd(r, SRD_SA, P + 2, 576 * 9216)
    srd(r, SRD_SB, P + 4, 576 * 9216)
    e(f"s_mov_b32 s{S_GD}, 0\ns_lshl_b32 s{S_T}, s{S_NB}, 5\nv_xor_b32 v{XQ+4}, s{S_T}, v{XQ}")
    e(f"s_and_b32 s{S_X0}, s{S_KQ}, 1\ns_lshl_b32 s{S_X0}, s{S_X0}, 7\ns_mul_i32 s{S_XR}, s{S_ROW}, 1152\ns_lshl_b32 s{S_T}, s{S_NB}, 5\ns_add_u32 s{S_XE}, s{S_XR}, s{S_T}\ns_add_u32 s{S_XE}, s{S_XE}, 1024")
    e(f"s_add_u32 s{S_XR}, s{S_XR}, s{S_T2}\ns_add_u32 s{S_XR}, s{S_XR}, s{S_X0}\ns_bitcmp1_b32 s{S_KQ}, 0 ; s_cselect_b32 s{S_XE}, 0x7f000000, s{S_XE}")
    e(f"v_mov_b32 v{XV}, v{DX}\nv_mul_u32_u24 v5, 0x480, v3\nv_lshl_add_u32 v{XE}, v4, 3, v5")
    e(f"v_min_u32 v{WTV}, 35, v1\nv_lshlrev_b32 v{WTV}, 7, v{WTV}\nv_lshlrev_b32 v{PFV}, 3, v1")
    SHADOW[:] = as_items("\n".join(r.t))

def qacc(tau, lam): return QACC + (((tau >> 3) * 2 + lam) * 8 + (tau & 7)) * 4
CSA = (5, 6, 7, T0V)
def csreg(hh, t): return (184 + 4 * t) if hh == 0 else (24 + 4 * t if t < 4 else 136 + 4 * (t - 4) if t < 7 else 244)
def cs_ld(hh, t): return f"ds_read_b128 {vr(csreg(hh,t),4)}, v{CSA[t>>1]} offset:{hh*512 + (t&1)*64}"
def aset(tau): return QA_ + tau * 4
def bset(ks, lam): return QB_ + ((ks & 1) * 2 + lam) * 4
def a_ld(ks, tau):
    c, s = ks >> 1, ks & 1
    return [f"ds_read_b64_tr_b16 {ar(aset(tau)+2*j,2)}, v{WQA+10*(c%3)+(tau&7)} offset:{s*16384 + j*2048 + (tau>>3)*256}" for j in range(2)]
def b_ld(ks, lam):
    c, s = ks >> 1, ks & 1
    return f"ds_read_b128 {ar(bset(ks,lam),4)}, v{WQA+10*(c%3)+8+s} offset:{lam*2048}"
order = [0, 1, 8, 9] + [t for t in range(16) if t not in (0, 1, 8, 9)]
def q_first(em):
    em.wait_vm(("q", 0))
    em.e("s_barrier")
    for lam in range(2): em.dsr(b_ld(0, lam))
    for tau in order:
        for t in a_ld(0, tau): em.dsr(t)
def emit_qproj(em):
    e = em.e
    kin, vin = kv_init()
    kin[-2].tag = "kin"; vin[-2].tag = "vin"
    zero = [It("v", f"v_accvgpr_write_b32 a{AO+i}, 0") for i in range(128)]
    side = list(SHADOW)
    pend = q_dma(2); nextg = 2; PH = [0]
    BG = 6
    PUB = OPT["pub"]
    CK = OPT["ck"]
    def mflist(ks):
        mf = []; fr = {}
        for tau in order:
            for lam in range(2):
                acc = qacc(tau, lam)
                mf.append(f"{MF} {vr(acc,4)}, {ar(aset(tau),4)}, {ar(bset(ks,lam),4)}, {'0' if ks == 0 else vr(acc,4)}")
            if tau in (1, 9):
                mf.append(f"{SMF} {ar(CS_+4*(tau>>3),4)}, {ar(AONE,4)}, {ar(aset(tau-1),8)}, v{SIDX}")
                fr[tau - 1] = len(mf) - 1
            if tau not in (0, 8): fr[tau] = len(mf) - 1
        return mf, fr
    c_ = f2u(128 ** -0.5 * 1.4426950408889634)
    for ks in range(18):
        c, s = ks >> 1, ks & 1
        mf, fr = mflist(ks)
        n = len(mf)
        bar = (s == 1)
        bg = BG if c < 8 else 25
        lo = bg + 1 if bar else 0
        ds = []
        if ks + 1 < 18:
            ds += [It("ds", b_ld(ks + 1, lam), at=lo) for lam in range(2)]
            for tau in order: ds += [It("ds", t, at=max(lo, fr[tau])) for t in a_ld(ks + 1, tau)]
        GAPV = OPT["qgap"]
        cur = []; k = 0; g = nextg
        def takeupto(limit):
            nonlocal g, k
            while pend and g < limit:
                grp = []
                while pend and pend[0].kind != "vm": grp.append(pend.pop(0))
                for j, x in enumerate(grp): x.at = max(first_ok, g - len(grp) + j)
                cur.extend(grp)
                if pend:
                    x = pend.pop(0); x.at = max(g, first_ok + len(grp)); cur.append(x); k += 1; PH[0] += GAPV; g = x.at + PH[0] // 10; PH[0] %= 10
        first_ok = 0
        if bar and c < 8:
            takeupto(bg - 1)
            first_ok = lo; g = max(g, lo + 1)
            new = q_dma(c + 3) if c + 3 < 9 else kin if c == 6 else []
            if ks == 1 and OPT["tkv"]:
                new = new + [It("v", f"v_and_b32 v{T0V}, 1, v1"), It("v", f"v_lshlrev_b32 v{T0V}, 21, v{T0V}"), It("s", f"s_add_u32 s{S_T3}, s{S_WQO}, 0"),
                             It("vm", f"buffer_load_dword v252, v{T0V}, {R4(SRD_W)}, s{S_T3} offen")]
            if ks == 7 and OPT["tkv"]:
                new = new + [It("s", f"s_lshr_b32 s{S_T3}, s2, 5"), It("s", f"s_lshl_b32 s{S_T3}, s{S_T3}, 13"), It("v", f"v_lshlrev_b32 v{T0V}, 5, v0"),
                             It("vm", f"buffer_load_dword v252, v{T0V}, {R4(SRD_K)}, s{S_T3} offen"), It("vm", f"buffer_load_dword v253, v{T0V}, {R4(SRD_V)}, s{S_T3} offen")]
            if ks == CK: new = new + stat_items()
            if ks == 15: new = vin
            pend.extend(new)
        if ks < 17: takeupto(n - 1)
        nextg = max(0, g - n)
        room = 2 * n - len(ds) - 2 * k - (4 if bar else 2)
        st = {"dma": cur, "ds": ds}
        TC = 136
        if ks == 16:
            assert not side
            side = as_items(f"s_lshl_b32 s{S_T}, s{S_WAVE}, 7\ns_add_u32 s{S_T}, s{S_T}, {SCR}\nv_lshl_add_u32 v{TC+8}, v3, 2, s{S_T}\nv_lshl_add_u32 v5, v4, 4, s{S_T}")
            side += [It("v", f"v_xor_b32 v{CSA[k]}, {k*128}, v5") for k in range(1, 4)]
            side += [It("ds", f"ds_read_b64 {ar(AX+8,2)}, v{XQ+4} offset:{QSLOT[2]}")]
            side += as_items(f"v_readlane_b32 s{S_K0}, v{LNK}, 0\nv_readlane_b32 s{S_K1}, v{LNK}, 32")
        if ks == 17:
            assert not side and not zero and not pend, (len(side), len(zero), len(pend))
            sd = [It("s", "s_nop 0", after_vm="st2"), It("v", f"v_accvgpr_write_b32 a{AX+10}, v{STV}"), It("v", f"v_accvgpr_write_b32 a{AX+11}, v{STV+1}"), It("x", f"v_rcp_f32 v{STV+1}, v{STV+1}"), It("x", f"v_rcp_f32 v{STV+3}, v{STV+3}")]
            sd += as_items(f"v_sub_f32 v{STV}, 0, v{STV}\nv_sub_f32 v{STV+2}, 0, v{STV+2}\nv_mul_f32 v{STV+1}, {hex(c_)}, v{STV+1}\nv_mul_f32 v{STV+3}, {hex(c_)}, v{STV+3}")
            cs = []
            cs += [It("v", f"v_accvgpr_read_b32 v{TC+i}, a{CS_+i}", at=(10 if i < 4 else 15)) for i in range(8)]
            cs += [It("v", f"v_add_f32 v{TC+2*i}, v{TC+2*i}, v{TC+2*i+1}") for i in range(4)]
            csw = [It("ds", f"ds_write_b32 v{TC+8}, v{TC+2*i} offset:{(i>>1)*512 + (i&1)*64}", at=19) for i in range(4)]
            post = [It("ds", f"ds_read_b128 {ar(Kf(i>>2,i&3),4)}, v{KA+(i&3)} offset:{kaddr(0) + (i>>2)*4096}", at=fr[i]) for i in range(8)] + [It("ds", cs_ld(0, k), at=lo) for k in range(8)]
            for x in sd: x.at = 21
            zl = [It("v", f"v_accvgpr_write_b32 a{AL+i}, 0", at=lo) for i in range(8)]
            st = {"cs": cs, "csw": csw, "side": sd, "ds": post, "zl": zl}
            packed = pack(n, st, ["cs", "csw", "ds", "side", "zl"], reserve={bg: 8})
            g_add = max(g for g in range(n) for x in packed[g] if x in cs); g_w = min(g for g in range(n) for x in packed[g] if x in csw)
            assert g_add < g_w and max(g for g in range(n) for x in packed[g] if x in csw) < bg, (g_add, g_w)
        else:
            sd = []
            while side and room > 0:
                x = side.pop(0); sd.append(x)
                if x.kind != "s": room -= 1
                if len(sd) >= 30: break
            st["side"] = sd
            if ks >= 2 * PUB + 2 and room > 0:
                st["zero"] = zero[:room]; zero = zero[room:]
            packed = pack(n, st, ["dma", "ds", "side", "zero"], reserve=({bg: 8} if bar else None))
        nxt = mflist(ks + 1)[0][0] if ks + 1 < 18 else None
        if s == 0 and c < 8:
            e(f"s_cmp_eq_u32 s{S_RD}, {c}\ns_cbranch_scc1 K_XP{c}"); em.label(f"K_XP{c}D")
        if not bar:
            emit_packed(em, mf, packed, nxt)
            continue
        emit_packed(em, mf[:bg + 1], packed[:bg] + [[], []], None)
        if ks == CK: cnt_check(em)
        assert not any(x.tag == ("q", c + 1) and not x.done for x in pend + cur), ks
        need = em.tags[("q", c + 1)] if c < 7 else em.tags["kin"]
        if c == PUB: need = max(need, em.tags["lnst"])
        em.ds_all(f"vmcnt({em.vm_n(need)})" if c < 8 else "")
        e("s_barrier")
        stamp(em, f"b{c}", 1)
        if c == PUB or ks == CK - 2:
            lab = f"K_W0_{ks}"
            e(f"s_cmp_lg_u32 s{S_WAVE}, 0\ns_cbranch_scc1 {lab}")
            if c == PUB:
                e(f"s_lshl_b32 s{S_T3}, s{S_QB}, 4\ns_mov_b64 exec, 1")
                e(f"buffer_atomic_add v{T1V}, v{L16}, {R4(SRD_DBG)}, s{S_T3} offen sc1\ns_mov_b64 exec, -1")
            else:
                e(f"v_lshlrev_b32 v{T1V}, 4, v3\nbuffer_load_dword v{T0V}, v{T1V}, {R4(SRD_DBG)}, 0 offen {SC}")
                em.tags["cnt"] = em.vm - 1
            em.label(lab)
        em.items(packed[bg])
        emit_packed(em, mf[bg + 1:], packed[bg + 1:], nxt)
    assert not pend

def cnt_check(em):
    e = em.e
    e(f"s_cmp_lg_u32 s{S_WAVE}, 0\ns_cbranch_scc1 K_CNTOK")
    em.wait_vm("cnt")
    e(f"v_cmp_gt_u32 vcc, 16, v{T0V}\ns_cbranch_vccz K_CNTOK")
    em.label("K_CNTSPIN")
    spin(em, 2)
    e(f"buffer_load_dword v{T0V}, v{T1V}, {R4(SRD_DBG)}, 0 offen {SC}\ns_waitcnt vmcnt(0)\nv_cmp_gt_u32 vcc, 16, v{T0V}\ns_cbranch_vccnz K_CNTSPIN")
    em.label("K_CNTOK")
def stat_items():
    return [It("v", f"v_lshlrev_b32 v{T1V}, 3, v3"), It("s", f"s_lshl_b32 s{S_T3}, s{S_ROW}, 3"), It("s", f"s_add_u32 s{S_T3}, s{S_T3}, {hex(WS_STAT)}"),
            It("vm", f"buffer_load_dwordx2 {vr(STV,2)}, v{T1V}, {R4(SRD_WS)}, s{S_T3} offen {SC}"), It("s", f"s_xor_b32 s{S_T3}, s{S_T3}, 128"),
            It("vm", f"buffer_load_dwordx2 {vr(STV+2,2)}, v{T1V}, {R4(SRD_WS)}, s{S_T3} offen {SC}", tag="st2")]
def key_items():
    r = []
    for i in range(8):
        if (i & 3) == 0: r.append(It("s", f"s_mov_b32 s{S_T3}, {hex(WS_KEY + (i>>2)*4096)}"))
        r.append(It("vm", f"buffer_load_dwordx4 {vr(KEYS+4*i,4)}, v{L16}, {R4(SRD_WS)}, s{S_T3} offen offset:{(i&3)*1024} {SC}", tag="keys"))
    return r
def emit_rank(em):
    e = em.e
    e(f"s_cmp_lg_u32 s{S_PASS}, 0\ns_cbranch_scc1 K_RANKED")
    em.wait_vm("keys")
    e(f"v_max3_u32 v{T1V}, v{KEYS}, v{KEYS+1}, v{KEYS+2}\ns_max_u32 s{S_T3}, s{S_K0}, s{S_K1}")
    for i in range(3, 31, 2): e(f"v_max3_u32 v{T1V}, v{T1V}, v{KEYS+i}, v{KEYS+i+1}")
    e(f"v_max_u32 v{T1V}, v{T1V}, v{KEYS+31}")
    e(f"v_cmp_lt_u32 vcc, s{S_T3}, v{T1V}\ns_bcnt1_i32_b64 s{S_T3}, vcc\ns_cmp_lt_u32 s{S_T3}, 8\ns_cbranch_scc1 K_RANK")
    em.label("K_RANKED")

def emit_xpick(em):
    for c in range(8):
        em.label(f"K_XP{c}")
        sl = QSLOT[c % 3]
        if sl >= 65536:
            for k in range(4): em.e(f"v_add_u32 v{XQ+8+k}, 0x10000, v{XQ+k}")
        for k in range(4): em.e(f"ds_read_b64 {ar(AX+2*k,2)}, v{XQ+k+(8 if sl >= 65536 else 0)} offset:{sl & 0xffff}")
        em.e(f"s_branch K_XP{c}D")

def emit_rank_slow(em):
    e = em.e
    R0, R1, R2 = S_T, S_T2, S_P + 8
    C = 246
    em.label("K_RANK")
    e(f"s_mov_b32 s{R0}, 2")
    em.label("K_RANK1")
    e(f"v_cmp_lt_u32 vcc, s{S_K0}, v{T1V}\ns_bcnt1_i32_b64 s{S_T3}, vcc\ns_cmp_lt_u32 s{S_T3}, 8\ns_cbranch_scc0 K_RANK2")
    e(f"v_mov_b32 v{C}, 0")
    for i in range(32): e(f"v_cmp_lt_u32 vcc, s{S_K0}, v{KEYS+i}\nv_addc_co_u32 v{C}, vcc, 0, v{C}, vcc")
    e(f"s_mov_b32 s{S_T3}, 0")
    for k in range(8): e(f"v_cmp_lt_u32 vcc, {k}, v{C}\ns_bcnt1_i32_b64 s{R1}, vcc\ns_add_u32 s{S_T3}, s{S_T3}, s{R1}")
    e(f"s_cmp_lt_u32 s{S_T3}, 8\ns_cbranch_scc0 K_RANK2")
    e(f"s_and_b32 s{R1}, s{S_K0}, 0xffff\ns_sub_u32 s{R1}, 2048, s{R1}")
    e(f"s_ashr_i32 s{R2}, s{S_K0}, 31\ns_not_b32 s{R2}, s{R2}\ns_or_b32 s{R2}, s{R2}, 0x80000000\ns_xor_b32 s{R2}, s{R2}, s{S_K0}\ns_and_b32 s{R2}, s{R2}, 0xffff0000")
    e(f"v_mov_b32 v{C+1}, s{R2}\nv_mul_f32 v{C+1}, 0xbfb8aa3b, v{C+1}\nv_exp_f32 v{C+1}, v{C+1}\ns_nop 0\nv_add_f32 v{C+1}, 1.0, v{C+1}\nv_rcp_f32 v{C+1}, v{C+1}\ns_nop 0")
    e(f"v_cvt_pk_bf16_f32 v{C+1}, v{C+1}, v{C+1}\nv_lshlrev_b32 v{C+1}, 16, v{C+1}\nv_or_b32 v{C+1}, 1, v{C+1}\nv_mov_b32 v{C}, s{R1}\ns_lshl_b32 s{S_T3}, s{S_T3}, 3\ns_add_u32 s{S_T3}, s{S_T3}, {hex(WS_QT)}\ns_mov_b64 exec, 1")
    e(f"buffer_store_dword v{C}, v{L16}, {R4(SRD_WS)}, s{S_T3} offen offset:4 {SC}\nbuffer_store_dword v{C+1}, v{L16}, {R4(SRD_WS)}, s{S_T3} offen offset:68 {SC}\ns_mov_b64 exec, -1")
    em.label("K_RANK2")
    e(f"s_mov_b32 s{S_K0}, s{S_K1}\ns_sub_u32 s{R0}, s{R0}, 1\ns_cmp_lg_u32 s{R0}, 0\ns_cbranch_scc1 K_RANK1\ns_branch K_RANKED")

def emit_qfin(em):
    from attn import qk, kld
    e = em.e
    for qs in range(4):
        hh, lam = qs >> 1, qs & 1
        st = vr(STV + 2 * lam, 2)
        mf = [qk(0, kt, s, qs - 1, c0="0") for kt in range(2) for s in range(4)] if qs else []
        em.need([r for t in range(8) for r in regs_of(vr(csreg(hh, t), 4))], loose=15)
        for t in range(8):
            cb = csreg(hh, t); acc = qacc(hh * 8 + t, lam)
            for k in range(2): e(f"v_pk_fma_f32 {vr(acc+2*k,2)}, {vr(cb+2*k,2)}, {st}, {vr(acc+2*k,2)} op_sel:[0,0,0] op_sel_hi:[1,0,1]")
            for k in range(2): e(f"v_pk_mul_f32 {vr(acc+2*k,2)}, {vr(acc+2*k,2)}, {st} op_sel:[0,1] op_sel_hi:[1,1]")
        va = []
        for t in range(8):
            acc = qacc(hh * 8 + t, lam); q = Qf(qs, t >> 1) + 2 * (t & 1)
            va += [f"v_cvt_pk_bf16_f32 v{q}, v{acc}, v{acc+1}", f"v_cvt_pk_bf16_f32 v{q+1}, v{acc+2}, v{acc+3}"]
        k = 0
        while mf:
            em.mfma(mf.pop(0))
            if qs == 1: em.dsr(cs_ld(1, k)); k += 1
            else: e(va.pop(0))
            e(va.pop(0))
        for x in va: e(x)
        for s in range(4):
            q = Qf(qs, s)
            e(f"v_permlane16_swap_b32 v{q}, v{q+2}\nv_permlane16_swap_b32 v{q+1}, v{q+3}")
```

```python
import re, struct

def f2u(f): return struct.unpack("<I", struct.pack("<f", f))[0]
def vr(a, n=1): return f"v{a}" if n == 1 else f"v[{a}:{a+n-1}]"
def ar(a, n=1): return f"a{a}" if n == 1 else f"a[{a}:{a+n-1}]"
def sr(a, n=1): return f"s{a}" if n == 1 else f"s[{a}:{a+n-1}]"
def regs_of(op):
    op = op.strip()
    m = re.fullmatch(r"([av])\[(\d+):(\d+)\]", op)
    if m: return [m.group(1) + str(r) for r in range(int(m.group(2)), int(m.group(3)) + 1)]
    m = re.fullmatch(r"([av])(\d+)", op)
    if m: return [op]
    return []

class It:
    def __init__(self, kind, text, at=0, tag=None, needs=(), after_vm=None, after_ds=None):
        self.kind, self.text, self.at, self.tag, self.needs, self.after_vm = kind, text, at, tag, list(needs), after_vm
        self.done = False; self.after_ds = after_ds
    def cost(self): return {"s": 4, "ds": 4, "dw": 8, "vm": 8, "v": 4, "x": 8}[self.kind]

AGE = [10]
class Em:
    def __init__(self):
        self.L = []
        self.vm = 0
        self.ds = 0
        self.ds_done = -1
        self.ldmap = {}
        self.tags = {}
        self.stat = {}
        self.clock = 0; self.dst = {}
    def e(self, s):
        for line in s.split("\n"):
            line = line.strip()
            if line: self.L.append(line)
    def c(self, s): self.L.append("; " + s)
    def label(self, n): self.L.append(n + ":")
    def vmem(self, s, tag=None):
        self.e(s); self.vm += 1
        if tag is not None: self.tags[tag] = self.vm - 1
        return self.vm - 1
    def dsw(self, s):
        self.e(s); self.dst[self.ds] = self.clock; self.ds += 1; return self.ds - 1
    def dsr(self, s):
        dst = s.split(None, 1)[1].split(",")[0]
        idx = self.dsw(s)
        for r in regs_of(dst): self.ldmap[r] = idx
        return idx
    def ds_all(self, extra=""):
        self.e("s_waitcnt " + (extra + " " if extra else "") + "lgkmcnt(0)"); self.ds_done = self.ds - 1
    def need_n(self, regs):
        idx = max([self.ldmap.get(r, -1) for r in regs] + [-1])
        return None if idx <= self.ds_done else self.ds - 1 - idx
    def need(self, regs, loose=6):
        n = self.need_n(regs)
        if n is None: return False
        young = 0
        while young < n and self.dst.get(self.ds - 1 - young, -99) > self.clock - AGE[0]: young += 1
        n = min(n, 15, max(young, 0) if loose < 15 else n)
        self.e(f"s_waitcnt lgkmcnt({n})"); self.ds_done = self.ds - 1 - n
        return True
    def vm_n(self, tag):
        idx = self.tags[tag] if not isinstance(tag, int) else tag
        n = self.vm - 1 - idx
        assert n >= 0
        return min(n, 63)
    def wait_vm(self, tag): self.e(f"s_waitcnt vmcnt({self.vm_n(tag)})")
    def item(self, it):
        it.done = True
        if it.needs: self.need(it.needs)
        if it.after_vm is not None: self.wait_vm(it.after_vm)
        if it.after_ds is not None and self.tags[it.after_ds] > self.ds_done:
            n = min(self.ds - 1 - self.tags[it.after_ds], 15)
            self.e(f"s_waitcnt lgkmcnt({n})"); self.ds_done = self.ds - 1 - n
        if it.kind in ("ds", "dw"):
            idx = self.dsr(it.text) if it.text.startswith(("ds_read", "ds_bperm")) else self.dsw(it.text)
            if it.tag is not None: self.tags[it.tag] = idx
        elif it.kind == "vm": self.vmem(it.text, it.tag)
        else:
            self.e(it.text)
            if it.tag == "drain": self.ds_done = self.ds - 1
    def items(self, its):
        prev = None
        for it in its:
            if it.kind == "vm" and " lds" in it.text and prev is not None and prev.kind == "s" and " m0," in prev.text: self.e("s_nop 0")
            self.item(it); prev = it
    @staticmethod
    def mf_srcs(s):
        ops = s.split(None, 1)[1].split(",")
        return regs_of(ops[1]) + regs_of(ops[2])
    def mfma(self, s):
        self.need(self.mf_srcs(s)); self.e(s); self.clock += 1
    def text(self): return "\n".join(self.L) + "\n"

def pack(n, streams, prio, budget=8, reserve=None):
    out = [[] for _ in range(n + 1)]
    pos = {s: 0 for s in streams}
    lastm0 = {}
    for g in range(n + 1):
        used = (reserve or {}).get(g, 0); sfree = True
        b = budget if g < n else 10 ** 6
        prog = True
        while prog:
            prog = False
            for s in prio:
                if s not in streams or pos[s] >= len(streams[s]): continue
                it = streams[s][pos[s]]
                if it.at > g: continue
                if it.kind == "s":
                    same = any(x in streams[s] and x.kind != "s" for x in out[g])
                    if g < n and (not sfree or same): continue
                    sfree = False
                    if " m0," in it.text: lastm0[s] = g
                else:
                    if used + it.cost() > b: continue
                    if g < n and it.kind == "ds" and any(x in streams[s] and x.kind in "vx" for x in out[g]): continue
                    if it.kind == "vm" and " lds" in it.text and lastm0.get(s, -9) == g and g < n: continue
                    used += it.cost()
                out[g].append(it); pos[s] += 1; prog = True
                break
    for s in streams: assert pos[s] == len(streams[s]), s
    order = {"s": 0, "dw": 1, "ds": 1, "vm": 1, "v": 2, "x": 3}
    return [sorted(g, key=lambda it: order[it.kind]) for g in out[:n]] + [out[n]]

def emit_packed(em, mf, packed, nxt=None):
    n = len(mf)
    for g in range(n):
        em.mfma(mf[g])
        look = mf[g + 1] if g + 1 < n else nxt
        if look is not None:
            has_s = any(it.kind == "s" for it in packed[g])
            w = em.need(Em.mf_srcs(look))
            if not w and not has_s and g + 2 < n and any(it.kind == "s" for it in packed[g + 1]):
                nn = em.need_n(Em.mf_srcs(mf[g + 2]))
                if nn is not None and nn >= 4: em.need(Em.mf_srcs(mf[g + 2]))
        em.items(packed[g])
    em.items(packed[n])
    em.stat["left"] = em.stat.get("left", 0) + len(packed[n])

def srd(em, d, lo, size, add=None):
    if add is None:
        em.e(f"s_mov_b32 s{d}, s{lo}\ns_and_b32 s{d+1}, s{lo+1}, 0xffff")
    else:
        em.e(f"s_add_u32 s{d}, s{lo}, {add}\ns_addc_u32 s{d+1}, s{lo+1}, 0\ns_and_b32 s{d+1}, s{d+1}, 0xffff")
    em.e(f"s_mov_b32 s{d+2}, {size if isinstance(size, str) else hex(size)}\ns_mov_b32 s{d+3}, 0x00020000")

KA_X, KA_K, KA_V, KA_WQ, KA_WO, KA_BX, KA_WR, KA_WG, KA_WU, KA_WD, KA_OUT, KA_DBG, KA_WS = [8 * i for i in range(13)]
WS_XN = 0x0
WS_STAT = 0x240000
WS_KEY = 0x244000
WS_OFL = 0x250000
WS_XFL = 0x280000
WS_EFL = 0x260000
WS_QT = 0x270000
WS_YC = 0x272000
WS_GS = 0x274000
WS_EX = 0x2000000
WS_O = 0x400000
WS_XB = 0x1400000
WS_YP = 0x2400000
WS_DUMP = 0x2800000
WS_PROF = 0x3800000
WS_SIZE = 0x4000000
```

```python
from defs import *
IDXV = T0V
YTS = 18432 + 128
S_T0 = 94
def XF_(k): return ar(212 + 4 * k, 4)
WDX = 232
GA = 104
def RING(i): return ("a", 192 + 4 * i) if i < 4 else ("v", 120 + 4 * (i - 4))
def rr(k, r, n): return f"{k}[{r}:{r+n-1}]"
HF = 244
TAW, TB, TC = 248, 249, 250
S_E0, S_E1, S_E2 = 90, 91, 92
S_MK = 88

def side_items():
    return [It("vm", f"buffer_load_dwordx2 v[252:253], v{PFV}, {R4(SRD_FO)}, s{S_PF} offen sc1"), It("s", f"s_add_u32 s{S_PF}, s{S_PF}, s{S_PFS}"),
            It("vm", f"buffer_load_dword v{T1V}, v{WTV}, {R4(SRD_DBG)}, s{S_WT} offen"), It("s", f"s_add_u32 s{S_WT}, s{S_WT}, {128*4608}"),
            It("vm", f"global_load_dword v{T1V}, v{CPV}, s[{S_PC}:{S_PC+1}]")]
def side_init(em):
    e = em.e
    srd(em, SRD_FO, 6, 512, add=hex(WS_QT))
    srd(em, SRD_W, S_P, 4096 * 1152)
    e(f"s_mul_i32 s{S_T2}, s{S_KQ}, {1024*1152}")
    srd(em, SRD_DBG, S_P, 1024 * 1152, add=f"s{S_T2}")
    e(f"s_mov_b32 s{S_PF}, {hex((-4 * 0x100000) & 0xffffffff)}\ns_mov_b32 s{S_PFS}, 0x100000")
    e(f"s_lshr_b32 s{S_T}, s2, 3\ns_lshl_b32 s{S_T}, s{S_T}, 2\ns_add_u32 s{S_T}, s{S_T}, s{S_WAVE}\ns_mul_i32 s{S_WT}, s{S_T}, 4608\ns_sub_u32 s{S_WT}, s{S_WT}, {OPT['wod']*128*4608}")
    e(f"s_getpc_b64 s[{S_PC}:{S_PC+1}]")
    em.label("PC_c")
    e(f"s_add_u32 s{S_PC}, s{S_PC}, K_LAST-PC_c\ns_addc_u32 s{S_PC+1}, s{S_PC+1}, 0\ns_min_u32 s{S_T}, s{S_T}, (K_CODE_END-K_LAST)>>10\ns_lshl_b32 s{S_T}, s{S_T}, 10\nv_add_u32 v{CPV}, s{S_T}, v{L16}")
    e(f"s_or_b32 s{S_T}, s{S_WAVE}, s{S_NB}\ns_cselect_b32 s{S_H0}, 8, 12\ns_cmp_lg_u32 s{S_PASS}, 0\ns_cselect_b32 s{S_H0}, 0, s{S_H0}\ns_bitset1_b32 s{S_H0}, 8")

def V(t):
    from front import as_items
    r = as_items(t)
    for x in r:
        if x.text.startswith(("v_exp", "v_rcp", "v_permlane")): x.kind = "x"
    return r
def unpack(t, a, m="0xffff0000"): return f"v_lshlrev_b32 v{t}, 16, v{a}\nv_and_b32 v{t+1}, {m}, v{a}\nv_lshlrev_b32 v{t+2}, 16, v{a+1}\nv_and_b32 v{t+3}, {m}, v{a+1}"
def dma(vo, sd, so, lds, sadd=None, fl="", tag=None, needs=()):
    r = [It("s", f"s_add_u32 m0, s{S_W8K}, {lds}")]
    if sadd is not None: r.append(It("s", f"s_add_u32 s{S_T3}, s{so}, {sadd + (0x70000000 if OPT['dbgx'] & 32 else 0)}")); so = S_T3
    return r + [It("vm", f"buffer_load_dwordx4 v{vo}, {R4(sd)}, s{so} offen {fl} lds", tag=tag, after_ds=(needs or None))]
def gu_dma(so, row0, n, lds0, ldsm, tag, needs=()):
    r = []
    for mi, sd in enumerate((SRD_SA, SRD_SB)):
        for i in range(n): r += dma(GO4, sd, so, lds0 + mi * ldsm + 1024 * i, (row0 + 16 * i) * 9216, tag=tag, needs=needs)
    return r
def gu_rd(nks, lds0, ldsm, tag):
    r = []
    for i, (ks, mat, ft) in enumerate([(ks, mat, ft) for ks in range(nks) for mat in range(2) for ft in range(2)]):
        k, g = RING(i)
        r += [It("ds", f"ds_read_b64_tr_b16 {rr(k,g+2*j,2)}, v{TAW} offset:{lds0 + mat*ldsm + ks*2048 + j*256 + ft*32}") for j in range(2)]
    r[-1].tag = ("rd", tag)
    return [It("s", "s_nop 0", after_vm=tag, at=8)] + r
def gu_mf(nks, xk, first):
    r = []
    for i in range(4 * nks):
        acc = vr(GA + (i & 3) * 4, 4)
        r.append(f"{MF} {acc}, {rr(*RING(i),4)}, {XF_(xk + (i>>2))}, {'0' if first else acc}")
    return r
def ringregs(n): return [x for i in range(n) for x in regs_of(rr(*RING(i), 4))]
def merge(a, b):
    def groups(l):
        g = []; c = []
        for x in l:
            c.append(x)
            if x.kind == "vm": g.append(c); c = []
        if c: (g[-1].extend(c) if g else g.append(c))
        return g
    r = []; gb = groups(b)
    for g in groups(a):
        m = [x for x in g if " m0," in x.text]
        if m: M0[0] = m[0].text
        elif DIRTY[0] and " lds" in "".join(x.text for x in g): r.append(It("s", M0[0]))
        if " lds" in "".join(x.text for x in g): DIRTY[0] = False
        r += g
        if gb: r += gb.pop(0); DIRTY[0] = True
    for g in gb: r += g; DIRTY[0] = True
    return r
M0 = [None]; DIRTY = [False]

def emit_side(em):
    import attn
    e = em.e
    em.label("K_HOOK")
    e(f"s_lshl_b32 s{S_T3}, s{S_QB}, 2\ns_add_u32 s{S_T3}, s{S_T3}, s{S_KQ}\ns_cmp_eq_u32 s{S_LOOP}, 3\ns_cbranch_scc1 K_QTW\ns_cmp_eq_u32 s{S_LOOP}, 7\ns_cbranch_scc1 K_PUB")
    e(f"s_memrealtime s[{S_T}:{S_T+1}]\ns_waitcnt lgkmcnt(0)")
    e(f"s_sub_u32 s{S_T2}, s{S_T}, s{S_T0}\ns_mul_i32 s{S_T2}, s{S_T2}, {OPT['kp']}\ns_lshr_b32 s{S_T2}, s{S_T2}, 2\ns_add_u32 s{S_T}, s{S_T}, s{S_T2}\ns_lshl_b32 s{S_T}, s{S_T}, 6\ns_or_b32 s{S_T}, s{S_T}, s{S_T3}\ns_bitset1_b32 s{S_T}, 31")
    e(f"v_mov_b32 v6, s{S_T}\ns_lshl_b32 s{S_T3}, s{S_T3}, 3\ns_mov_b64 exec, 1\nbuffer_store_dword v6, v{L16}, {R4(SRD_FO)}, s{S_T3} offen {SC}\ns_mov_b64 exec, -1\ns_branch K_B4")
    em.label("K_QTSPIN")
    spin(em, 4)
    e(f"buffer_load_dwordx2 v[252:253], v{PFV}, {R4(SRD_FO)}, 0 offen {SC}\ns_waitcnt vmcnt(0)")
    em.label("K_QTW")
    e(f"s_waitcnt vmcnt(2)\nv_cmp_eq_u32 vcc, 0, v252\nv_cmp_eq_u32 s[{S_MK}:{S_MK+1}], 0, v253\nv_readlane_b32 s{S_T}, v252, s{S_T3}\nv_mov_b32 v{IDXV}, v253")
    e(f"s_and_b32 s{S_MK}, s{S_MK}, 0xffff\ns_or_b32 s{S_MK}, s{S_MK}, vcc_lo\ns_or_b32 s{S_MK}, s{S_MK}, vcc_hi\nv_cmp_gt_u32 vcc, s{S_T}, v252\ns_cbranch_scc1 K_QTSPIN\ns_bcnt1_i32_b64 s{S_T}, vcc")
    if OPT["dyn"] == 0: e(f"s_mov_b32 s{S_T}, s{S_T3}")
    e(f"s_cmp_ge_u32 s{S_T}, {0 if OPT['dbgx'] & 1 else 36}\ns_cbranch_scc1 K_B4")
    e(f"s_lshl_b32 s{S_GD}, s{S_T}, 2\ns_add_u32 s{S_GD}, s{S_GD}, s{S_NB}")
    attn.restore(em, attn.LOOPST["b4"])
    em.vm = 100
    P = {u: dict(side=[], vm=[], xmf={}) for u in range(20, 45)}
    e(f"s_lshl_b32 s{S_SA}, s{S_GD}, 6\ns_mul_i32 s{S_E0}, s{S_WAVE}, {32*9216}\ns_add_u32 s{S_E0}, s{S_E0}, s{S_SA}")
    P[20]["vm"] = gu_dma(S_E0, 512, 2, 4096, 2048, "A")
    P[20]["side"] = V(f"""v_lshlrev_b32 v5, 2, v4
v_add_u32 v6, 16, v5
v_and_b32 v7, 28, v1""") + [It("ds", f"ds_bpermute_b32 v{v}, v{v}, v{IDXV}") for v in (5, 6, 7)] + V(f"""s_mul_i32 s{S_E1}, s{S_GD}, 36864
s_lshl_b32 s{S_T}, s{S_WAVE}, 5
s_add_u32 s{S_E2}, s{S_E1}, s{S_T}
s_mul_i32 s{S_T}, s{S_WAVE}, {128*9216}
s_add_u32 s{S_SA}, s{S_SA}, s{S_T}
s_lshl_b32 s{S_T}, s{S_WAVE}, 8
s_add_u32 s{S_E1}, s{S_E1}, s{S_T}
s_and_b32 s{S_T2}, s{S_WAVE}, 1
s_lshl_b32 s{S_T2}, s{S_T2}, 6
s_add_u32 s{S_T2}, s{S_T2}, 1024
s_mov_b32 s{S_MK}, 0x480
v_and_b32 v{TC}, 3, v1""")
    x0 = V(f"""v_lshlrev_b32 v{HF}, 1, v4
v_xor_b32 v{HF}, v{HF}, v3
v_lshlrev_b32 v{HF}, 4, v{HF}
v_xor_b32 v{HF+1}, 128, v{HF}
v_subrev_u32 v{HF}, 0x480, v{HF}
v_subrev_u32 v{HF+1}, 0x480, v{HF+1}
v_lshlrev_b32 v{HF+2}, 4, v{TC}
v_subrev_u32 v{HF+2}, 0x480, v{HF+2}""")
    x1 = [It("v", f"v_mad_u32_u24 v{v}, v{v}, s{S_MK}, v{HF+k}", needs=[f"v{v}"]) for k, v in enumerate((5, 6, 7))]
    xd = sum([dma(v, SRD_WS, (S_T, S_T, S_T2)[k], 1024 * k, fl=SC, tag="A") for k, v in enumerate((5, 6, 7))], [])
    P[21]["side"] = x0 + x1 + V(f"""v_lshrrev_b32 v{TB}, 1, v1
v_mul_u32_u24 v{TB}, 0x480, v{TB}
v_and_b32 v{TAW}, 1, v1
v_lshl_add_u32 v{TB}, v{TAW}, 4, v{TB}
v_bfe_u32 v{TAW}, v1, 2, 2
v_lshl_add_u32 v{TAW}, v4, 3, v{TAW}
v_lshlrev_b32 v{TAW}, 6, v{TAW}
v_lshl_add_u32 v{TAW}, v{TC}, 3, v{TAW}""")
    P[22]["vm"] = xd + dma(TB, SRD_WD, S_E2, 3072, 1024, tag="A")
    P[22]["first"] = True
    P[22]["side"] = V(f"""v_add_u32 v{TAW}, s{S_W8K}, v{TAW}
v_and_b32 v{HF}, 7, v1
v_lshlrev_b32 v{HF+1}, 1, v{HF}
v_xor_b32 v{HF+1}, v{HF+1}, v4
v_lshlrev_b32 v{HF+1}, 4, v{HF+1}
v_lshl_add_u32 v{HF+1}, v{HF}, 8, v{HF+1}
v_add_u32 v{HF+1}, s{S_W8K}, v{HF+1}
v_lshlrev_b32 v{HF+2}, 4, v4
v_lshl_add_u32 v{HF+2}, v{HF}, 6, v{HF+2}
s_cmp_lt_u32 s{S_WAVE}, 2""")
    ra = gu_rd(1, 4096, 2048, "A"); ra[0].at = 7
    P[23]["side"] = V(f"""v_add_u32 v{HF+2}, s{S_W8K}, v{HF+2}
v_xor_b32 v5, 64, v{HF+1}
v_xor_b32 v6, 128, v{HF+1}
v_xor_b32 v7, 192, v{HF+1}
v_lshrrev_b32 v{TB}, 2, v1
v_lshlrev_b32 v{TB}, 5, v{TB}
v_lshl_add_u32 v{TB}, v{TC}, 3, v{TB}
v_add_u32 v{TB}, s{S_W8K}, v{TB}""")
    P[24]["side"] = ra + [It("ds", f"ds_read_b128 {XF_(4)}, v{HF+2} offset:2048")] + [It("ds", f"ds_read_b128 {XF_(k)}, v{(HF+1, 5, 6, 7)[k]}") for k in range(2)]
    P[25]["side"] = [It("ds", f"ds_read_b128 {XF_(k)}, v{(HF+1, 5, 6, 7)[k]}") for k in range(2, 4)] + [It("ds", f"ds_read_b64_tr_b16 {ar(WDX+2*j,2)}, v{TB} offset:{3072 + j*512}", tag=("rdA", j)) for j in range(2)]
    P[25]["xmf"] = {2 * i + 1: [m] for i, m in enumerate(gu_mf(1, 4, True))}
    def spread(g, plan):
        for v, n in plan: P[v]["vm"] += g[:3 * n]; g = g[3 * n:]
        assert not g
    g = gu_dma(S_SA, 0, 4, 0, 4096, "B", needs=("rdA", 1))
    for x in g[12:]:
        if x.kind == "vm": x.after_ds = ("rd", "A")
    spread(g[12:] + g[:12], ((25, 3), (26, 3), (27, 2)))
    P[27]["first"] = True
    rb = gu_rd(2, 0, 4096, "B"); rb[0].at = 0
    P[29]["side"] = rb
    m = gu_mf(2, 0, False)
    P[30]["xmf"] = {i: [m[i]] for i in range(8)}
    spread(gu_dma(S_SA, 64, 4, 0, 4096, "C", needs=("rd", "B")), ((30, 4), (31, 4)))
    P[31]["first"] = True
    P[28]["side"] = V(f"""v_add_u32 v5, s{S_W8K}, v{L16}
s_add_u32 s{S_T}, s{S_W1K}, {SPARE}
v_add_u32 v6, s{S_T}, v{L16}
v_lshlrev_b32 v7, 1, v4
v_xor_b32 v7, v7, v3
v_mul_u32_u24 v{TB}, 0x480, v4
v_lshl_add_u32 v{TB}, v7, 4, v{TB}
v_and_b32 v7, 8, v7
v_lshlrev_b32 v7, 5, v7
v_sub_u32 v{TC}, v{TB}, v7
v_add_u32 v{TC}, 128, v{TC}""")
    rc = gu_rd(2, 0, 4096, "C"); rc[0].at = 20
    P[33]["side"] = rc[:11]; P[34]["side"] = rc[11:]
    wd = lambda h, needs: sum([dma((TB, TC)[i & 1], SRD_WD, S_E1, 4096 + (i & 3) * 1024, i * 4 * 1152, tag=("D", h), needs=needs) for i in range(4 * h, 4 * h + 4)], [])
    m = gu_mf(2, 2, False)
    P[34]["xmf"] = {0: m[0:1], 1: m[1:2], 2: m[2:3], 3: m[3:4], 5: m[4:5], 6: m[5:6], 7: m[6:8]}
    P[35]["vm"] = wd(0, ("rd", "C")); P[35]["first"] = True
    X = 120
    AD = 128
    P[35]["side"] = [It("dw", f"ds_write_b128 v5, {vr(GA+4*c,4)} offset:{c*1024}", at=10 + 4 * c) for c in range(4)] + \
        V(f"s_sub_u32 s{S_T}, s{S_W8K}, {hex(LDS_V - 4096)}\n" + "\n".join(f"v_add_u32 v{AD+T}, s{S_T}, v{VA+T}" for T in range(0)))
    si = V("\n".join(f"v_add_f32 v{GA+r}, v{GA+r}, v{GA+4+r}\nv_add_f32 v{GA+8+r}, v{GA+8+r}, v{GA+12+r}" for r in range(4)) + "\n" +
           "\n".join(f"v_add_f32 v{GA+r}, v{GA+r}, v{GA+8+r}" for r in range(4)) + f"\nv_cvt_pk_bf16_f32 v{HF}, v{GA}, v{GA+1}\nv_cvt_pk_bf16_f32 v{HF+1}, v{GA+2}, v{GA+3}\n" +
           unpack(GA, HF) + "".join(f"\nv_mul_f32 v{X+r}, 0xbfb8aa3b, v{GA+r}" for r in range(4)) + "".join(f"\nv_exp_f32 v{X+r}, v{X+r}" for r in range(4)) +
           "".join(f"\nv_add_f32 v{X+r}, 1.0, v{X+r}" for r in range(4)) + "".join(f"\nv_rcp_f32 v{X+r}, v{X+r}" for r in range(4)) + "".join(f"\nv_mul_f32 v{GA+r}, v{GA+r}, v{X+r}" for r in range(4)) +
           f"\nv_cvt_pk_bf16_f32 v{X}, v{GA}, v{GA+1}\nv_cvt_pk_bf16_f32 v{X+1}, v{GA+2}, v{GA+3}\nv_cndmask_b32 v{HF}, v{HF}, v{X}, s[{S_MK}:{S_MK+1}]\nv_cndmask_b32 v{HF+1}, v{HF+1}, v{X+1}, s[{S_MK}:{S_MK+1}]")
    si[0].needs = regs_of(vr(GA, 16)); si[0].at = 30
    DAr = lambda T: 192 + 4 * T if T < 4 else 212 + 4 * (T - 4)
    drd = lambda h: [It("ds", f"ds_read_b64_tr_b16 {ar(DAr(T)+2*h,2)}, v{AD+T}", after_vm=(("D", h) if T == 0 else None), tag=("dr", h)) for T in range(8)]
    P[36]["side"] = V("\n".join(f"v_add_u32 v{AD+T}, s{S_T}, v{VA+T}" for T in range(3))) + \
        [It("ds", f"ds_read_b128 {vr(GA+4*w,4)}, v6 offset:{w*8192}", at=OPT["barg"] + 1) for w in range(4)] + si[:8]
    P[35]["scal"] = V("\n".join(f"v_add_u32 v{AD+T}, s{S_E0}, v{VA+T}" for T in range(3, 8)))
    P[34]["scal"] = V(f"s_sub_u32 s{S_E0}, s{S_W8K}, {hex(LDS_V - 4096)}")
    P[37]["side"] = si[8:24]
    P[38]["side"] = si[24:33]; P[38]["scal"] = drd(0)[:4]
    P[39]["side"] = si[33:] + [It("ds", f"ds_write_b64 v6, {vr(HF,2)} offset:{w*8192}") for w in range(4)]
    P[39]["scal"] = drd(0)[4:]
    hh = V("\n".join(unpack(GA + 8 + 4 * k, GA + 2 * k) for k in range(4)) + "".join(f"\nv_mul_f32 v{GA+8+r}, v{GA+8+r}, v{GA+16+r}" for r in range(8)) +
           "".join(f"\nv_cvt_pk_bf16_f32 v{HF+k}, v{GA+8+2*k}, v{GA+9+2*k}" for k in range(4)))
    hh[0].needs = regs_of(vr(GA, 8)); hh[0].at = 0
    P[40]["vm"] = wd(1, ("dr", 0)); P[40]["first"] = True
    P[40]["side"] = [It("ds", f"ds_read_b64 {vr(GA+2*k,2)}, v5 offset:{k*1024}", at=OPT["barg"] + 1) for k in range(4)] + \
        V(f"v_and_b32 v7, 7, v1\nv_mul_u32_u24 v{TAW}, {YTS}, v4\nv_lshl_add_u32 v{TAW}, v7, 4, v{TAW}")
    P[40]["scal"] = V(f"""s_lshl_b32 s{S_E0}, s{S_GD}, 7
s_add_u32 s{S_E0}, s{S_E0}, {hex(WS_YP)}
s_add_u32 s{S_T2}, s{S_WAVE}, 32
s_mul_i32 s{S_E2}, s{S_T2}, {4*YTS}
s_add_u32 s{S_E2}, s{S_E2}, s{S_E0}
s_mul_i32 s{S_T2}, s{S_WAVE}, {32*YTS}
s_add_u32 s{S_E0}, s{S_E0}, s{S_T2}""")
    P[41]["side"] = hh[:18]
    P[42]["side"] = hh[18:]; P[42]["scal"] = drd(1)
    m = [f"{MF} {vr(104+4*T,4)}, {ar(DAr(T),4)}, {vr(HF,4)}, 0" for T in range(8)] + [f"{MF} {ar(228,4)}, {ar(WDX,4)}, {vr(HF,4)}, 0"]
    P[43]["xmf"] = {0: [m[8]] + m[0:4], 1: m[4:8]}
    st = [It("vm", f"buffer_store_dwordx4 {ar(228,4)}, v{TAW}, {R4(SRD_WS)}, s{S_E2} offen {SC}")]
    for T in range(8):
        st += [It("s", f"s_add_u32 s{S_T3}, s{S_E0}, {T*4*YTS}"), It("vm", f"buffer_store_dwordx4 {vr(104+4*T,4)}, v{TAW}, {R4(SRD_WS)}, s{S_T3} offen {SC}")]
    P[43]["vm"] = st; P[43]["last"] = True
    P[43]["side"] = V(f"s_mov_b32 s{S_LOOP}, 6\ns_cmp_eq_u32 s{S_WAVE}, 0 ; s_cselect_b32 s{S_H0}, 0x180, s{S_H0}\ns_add_u32 s{S_GD}, s{S_GD}, 1")
    U0 = OPT["trk"]
    for v in range(20, 45):
        u = v - 20 + U0
        base = attn.period_dma(u >> 2)[u & 3]
        if OPT["dbgx"] & 64 and v < 43: P[v] = dict(side=[], vm=[], xmf={})
        if OPT["dbgx"] & 64: P[v]["vm"] = []
        vm = merge([], P[v]["vm"]) + merge(base, []) if P[v].get("first") else merge(base, P[v]["vm"])
        if P[v].get("last"): vm = base + P[v]["vm"]
        attn.emit_step(em, u, vm=vm, scal=P[v].get("scal", ()), bar=(u & 3) == 0, vmw=("kv" if v > 20 else 3), nxt=attn.first(u + 1), side=P[v]["side"], xmf=P[v]["xmf"])
    sv = attn.LOOPST["b5"]
    e(f"s_waitcnt lgkmcnt({min(15, sv[0] - 1 - sv[1])})\ns_branch K_B5")
    em.label("K_PUB")
    e(f"v_mov_b32 v5, 1\ns_and_b32 s{S_T}, s{S_GD}, 15\ns_lshl_b32 s{S_T}, s{S_T}, 7\ns_add_u32 s{S_T}, s{S_T}, {hex(WS_YC)}\ns_mov_b64 exec, 1\nbuffer_atomic_add v5, v{L16}, {R4(SRD_WS)}, s{S_T} offen sc1\ns_mov_b64 exec, -1\ns_branch K_B4")
```

```python
from defs import *
from attn import pv, smf, snap, restore
from moe import IDXV
def OB(hh, ks, lam): return 8 + ((hh * 4 + ks) * 2 + lam) * 4
def FB(i, hh, ks, lam): return ((hh * 3 + i - 1) * 8 + ks * 2 + lam) * 4
def ACC(lam, j): return 136 + (lam * 8 + j) * 4 if j < 8 else 72 + (lam * 4 + j - 8) * 4
AF = 192
PA0, PA2 = 200, 208
PE = 216
LV = 104
S_PW, S_PO = 42, 90
S_VAL, S_X1, S_X2 = 93, 94, 95
RB = 16 * 1152
SLOT = [3 * U, 4 * U, U, 2 * U, 3 * U, 4 * U, 0, U]
L_CHK = 2 * U + 3 * 4096
SNV, SNY, RWV, FLV, L8 = 246, 247, 248, 249, 250
GG, XF, TU = 8, 72, 28
XL = 120
XW = 242
M, NL, SLO, SHI = 56, 57, 58, 59
S_RX, S_TX, S_XFL, S_EV, S_EFL, S_EB, S_ES, S_FM = 60, 64, 63, 67, 86, 87, 88, 38

def wdma(vo, i0, i1, soff, sadd, step, lds, tag=None):
    r = []
    for i in range(i0, i1):
        r += [It("s", f"s_add_u32 m0, s{S_W1K}, {lds + i*4096}"), It("s", f"s_add_u32 s{S_T3}, s{soff}, {sadd + i*step}"),
              It("vm", f"buffer_load_dwordx4 v{vo}, {R4(SRD_W)}, s{S_T3} offen lds", tag=tag)]
    return r
def wo_dma(st, i0=0, i1=8):
    i, hh = ((st - 2) % 3 + 1, (st - 2) // 3)
    return wdma(WOV, i0, i1, S_PW + i - 1, hh * 128 * 1152 + (0x70000000 if OPT['dbgx'] & 8 else 0), RB, SLOT[st], tag=("wo", st))
def last_side():
    from front import as_items
    t = ""
    for i in range(1, 4):
        t += f"s_add_u32 s{S_T}, s{S_NB}, {i}\ns_and_b32 s{S_T}, s{S_T}, 3\ns_mul_i32 s{S_PW+i-1}, s{S_T}, {256*1152}\ns_add_u32 s{S_PW+i-1}, s{S_PW+i-1}, s{S_WOO}\n"
    t += f"s_cmp_eq_u32 s{S_WAVE}, s{S_NB}\ns_cmp_lg_u32 s{S_RD}, 0 ; s_cselect_b32 s{S_T2}, 0, 0x7f000000\nv_lshlrev_b32 v7, 7, v3\nv_add_u32 v7, {hex(WS_YC)}, v7"
    return as_items(t)
LASTQ = []
def last_vm(em, u):
    if u == 60: LASTQ[:] = wdma(WOV, 0, 8, S_SB, 0, RB, SLOT[0]) + wdma(WEV, 0, 8, S_EXO, 0, 2 * RB, 0) + wdma(WOV, 8, 16, S_SB, 0, RB, SLOT[0]) + wo_dma(2, 0, 4)
    if u == 62: LASTQ.extend(wo_dma(2, 4, 8) + wo_dma(3, 0, 3) + [It("vm", f"buffer_load_dword v{SNY}, v7, {R4(SRD_WS)}, s{S_T2} offen {SC}")])
    take = {60: 10, 61: 12, 62: 14, 63: 0}[u]
    r = []; k = 0
    while LASTQ and k < take:
        x = LASTQ.pop(0); r.append(x)
        if x.kind == "vm": k += 1
    if u == 63: assert not LASTQ
    return r

def oflag(em, h):
    em.e(f"s_mov_b64 exec, 1")
    em.vmem(f"buffer_store_dword v5, v{L16}, {R4(SRD_WS)}, s{S_X2} offen offset:{4*h} {SC}")
    em.e("s_mov_b64 exec, -1")
def interleave(em, mf, fill, per=2):
    fill = list(fill)
    for m in mf:
        em.mfma(m)
        for _ in range(per):
            if fill: em.e(fill.pop(0))
    for f in fill: em.e(f)
def ost(hh, ks, lam):
    f = (hh * 4 + ks) * 2 + lam
    return [It("s", f"s_add_u32 s{S_X1}, s{S_OB}, {(f>>2)*4096 + (0x70000000 if OPT['dbgx'] & 2 else 0)}"),
            It("vm", f"buffer_store_dwordx4 {vr(OB(hh,ks,lam),4)}, v{L16}, {R4(SRD_WS)}, s{S_X1} offen offset:{(f&3)*1024} {SC}", tag=("ost", hh))]

def emit_final(em):
    e = em.e
    pr = 1
    T2 = 136
    chk = ["s_nop 0"] * 2
    for qs in range(4): chk += [f"v_accvgpr_read_b32 v{LV+2*qs}, a{AL+2*qs}", f"v_accvgpr_read_b32 v{LV+2*qs+1}, a{AL+2*qs+1}"]
    for qs in range(4): chk += [f"v_add_f32 v{LV+2*qs}, v{LV+2*qs}, v{LV+2*qs+1}"]
    chk += [f"v_max3_f32 v{T2}, v{LV}, v{LV+2}, v{LV+4}", f"v_add_f32 v{T2+1}, v{LV}, v{LV+2}", f"v_max_f32 v{T2}, v{T2}, v{LV+6}", f"v_add_f32 v{T2+1}, v{T2+1}, v{LV+4}",
            f"v_cmp_nge_f32 vcc, 0x5f800000, v{T2}", f"v_add_f32 v{T2+1}, v{T2+1}, v{LV+6}", f"v_cmp_u_f32 s[{S_X1}:{S_X2}], v{T2+1}, v{T2+1}"]
    mf = [smf(pr, 0), smf(pr, 1)] + [pv(pr, T, qs) for qs in (0, 1) for T in range(8)]
    pre = [f"s_lshl_b32 s{S_T}, s{S_WAVE}, 2\nv_and_b32 v{T2+2}, 3, v1", f"s_add_u32 s{S_T}, s{S_T}, {L_CHK}\nv_lshlrev_b32 v{T2+2}, 10, v{T2+2}",
           f"s_add_u32 s{S_T2}, s{S_W1K}, {L_CHK}\nv_add_u32 v{T2+2}, s{S_T}, v{T2+2}", f"v_mov_b32 v{T2+3}, s{S_T2}"]
    for k in range(4): em.mfma(mf[k]); e(pre[k])
    interleave(em, mf[4:], chk)
    e(f"s_or_b64 vcc, vcc, s[{S_X1}:{S_X2}]\ns_cmp_lg_u64 vcc, 0\ns_cselect_b32 s{S_T3}, 1, 0\nv_mov_b32 v{T2}, s{S_T3}")
    em.dsw(f"ds_write_b32 v{T2+2}, v{T2}")
    for qs in range(4): e(f"v_rcp_f32 v{LV+2*qs}, v{LV+2*qs}")
    em.ds_all("vmcnt(0)")
    e("s_barrier")
    em.vm = 0
    stamp(em, "t0bar", 66)
    em.dsr(f"ds_read_b128 {vr(T2+4,4)}, v{T2+3}")
    def rd(qs, t): return [f"v_accvgpr_read_b32 v{t+4*T+r}, a{Oacc(T,qs)+r}" for T in range(8) for r in range(4)]
    def fin(qs, t, after):
        hh, lam = qs >> 1, qs & 1
        for ks in range(4):
            a = t + 8 * ks; d = OB(hh, ks, lam)
            for k in range(4): e(f"v_pk_mul_f32 {vr(a+2*k,2)}, {vr(a+2*k,2)}, {vr(LV+2*qs,2)} op_sel_hi:[1,0]")
            for k in range(4): e(f"v_cvt_pk_bf16_f32 v{d+k}, v{a+2*k}, v{a+2*k+1}")
            after(hh, ks, lam)
    interleave(em, [pv(pr, T, qs) for qs in (2, 3) for T in range(8)], rd(0, 40))
    st0 = lambda hh, ks, lam: em.items(ost(hh, ks, lam))
    fin(0, 40, st0)
    for x in rd(1, 72): e(x)
    fin(1, 72, st0)
    stamp(em, "h0st", 2)
    em.need(regs_of(vr(T2 + 4, 4)))
    e(f"v_or3_b32 v{T2+4}, v{T2+4}, v{T2+5}, v{T2+6}\nv_or_b32 v{T2+4}, v{T2+4}, v{T2+7}\ns_nop 0\nv_readfirstlane_b32 s{S_T}, v{T2+4}")
    e(f"s_andn2_b32 s{S_T}, s{S_T}, s{S_PASS}\ns_cbranch_scc1 K_FB")
    e(f"s_cmp_lg_u32 s{S_RD}, 0\ns_cbranch_scc1 K_YR0")
    em.label("K_YR0D")
    for k in range(12): e(f"v_accvgpr_read_b32 v{XL+k}, a{AX+k}")
    for t in range(8): e(f"v_xor_b32 v{VA+t}, s{S_X0}, v{VA+t}")
    e(f"v_bfe_u32 v5, v1, 2, 2\nv_lshl_add_u32 v5, v4, 2, v5\nv_bfe_u32 v6, v5, 1, 2\nv_lshlrev_b32 v6, 5, v6\nv_lshl_add_u32 v6, v5, 7, v6\nv_and_b32 v5, 3, v1\nv_lshl_add_u32 v{PE}, v5, 3, v6")
    for t in range(1, 4): e(f"v_xor_b32 v{PE+t}, {32*t}, v{PE}")
    for j in range(12):
        for x in a_rd(0, j): em.dsr(x)
    H1.clear()
    for ks in range(4):
        for lam in range(2):
            qs = 2 + lam; d = OB(1, ks, lam); a = 112
            src = [Oacc(2 * ks + (r >> 2), qs) + (r & 3) for r in range(8)]
            if ks < OPT["e1"]:
                for r in range(8): e(f"v_accvgpr_read_b32 v{a+r}, a{src[r]}")
                for k in range(4): e(f"v_pk_mul_f32 {vr(a+2*k,2)}, {vr(a+2*k,2)}, {vr(LV+2*qs,2)} op_sel_hi:[1,0]")
                for k in range(4): e(f"v_cvt_pk_bf16_f32 v{d+k}, v{a+2*k}, v{a+2*k+1}")
                H1.append((ks, [], ost(1, ks, lam)))
            else:
                it = [It("v", f"v_accvgpr_read_b32 v{a+r}, a{src[r]}") for r in range(8)] + [It("v", f"v_mul_f32 v{a+r}, v{LV+2*qs}, v{a+r}") for r in range(8)]
                it += [It("v", f"v_cvt_pk_bf16_f32 v{d+k}, v{a+2*k}, v{a+2*k+1}") for k in range(4)]
                H1.append((ks, it, ost(1, ks, lam)))
H1 = []; W3 = []

def fo_ld(hh, i):
    r = []
    for f in range(8):
        r.append(It("s", f"s_add_u32 s{S_X1}, s{S_PO+i-1}, {hh*8192 + (f>>2)*4096 + (0x70000000 if OPT['dbgx'] & 4 else 0)}"))
        r.append(It("vm", f"buffer_load_dwordx4 {ar(FB(i,hh,f>>1,f&1),4)}, v{L16}, {R4(SRD_WS)}, s{S_X1} offen offset:{(f&3)*1024} {SC}", tag=("fo", hh, i)))
    return r
def snapld(tag): return It("vm", f"buffer_load_dword v{SNV}, v6, {R4(SRD_WS)}, s{S_OFL} offen {SC}", tag=tag)
def a_rd(t, j):
    st, kk = t >> 2, t & 3
    if j >= 8: return [f"ds_read_b64_tr_b16 {ar(AF+4*j+2*h,2)}, v{PE+j-8} offset:{st*16384 + kk*4096 + h*2048}" for h in range(2)]
    reg, off = ((PA0, VA, PA2)[SLOT[st] >> 16], SLOT[st] & 0xffff)
    return [f"ds_read_b64_tr_b16 {ar(AF+4*j+2*h,2)}, v{reg+j} offset:{off + kk*8192 + h*4096}" for h in range(2)]
def bfrag(t, lam):
    st, kk = t >> 2, t & 3
    if st < 2: return vr(OB(st, kk, lam), 4)
    return ar(FB((st - 2) % 3 + 1, (st - 2) // 3, kk, lam), 4)
def ntile(t): return 12 if t < 8 else 8
def mfl(t): return [f"{MF} {vr(ACC(lam,j),4)}, {ar(AF+4*j,4)}, {bfrag(t,lam)}, {'0' if t == 0 else vr(ACC(lam,j),4)}" for j in range(ntile(t)) for lam in range(2)]
BG = 4
NEXTG = [0]
FR = [0.0, 1.0]
def vcost(x): return OPT["gs"] if "store_dwordx4" in x.text else OPT["gs"] // 2 if "store" in x.text else OPT["gl"]
def kstep(em, t, pend, vfill, barrier=None, after=None, sfill=None):
    mf = mfl(t); n = len(mf)
    lo = BG + 1 if barrier else 0
    ds = []
    if t + 1 < 32:
        for j in range(ntile(t + 1)): ds += [It("ds", x, at=max(lo, 2 * j + 1)) for x in a_rd(t + 1, j)]
    if barrier:
        packed = pack(BG, {"v": vfill[:2 * BG]}, ["v"])
        del vfill[:2 * BG]
        vfill[:0] = packed[BG]
        emit_packed(em, mf[:BG + 1], packed[:BG] + [[], []], None)
        barrier(em)
        if after: after()
    cur = []; k = 0; g = max(NEXTG[0], lo + 2 if barrier else 0)
    while pend and g < n - 1:
        grp = []
        while pend[0].kind != "vm": grp.append(pend.pop(0))
        x = pend.pop(0); x.at = max(g, lo + len(grp))
        for j, y in enumerate(grp): y.at = max(lo, x.at - len(grp) + j)
        cur += grp + [x]; k += 1; FR[0] += vcost(x) * FR[1]; g = x.at + max(2, int(FR[0])); FR[0] -= int(FR[0])
    NEXTG[0] = max(0, g - n)
    st = {"vm": cur, "ds": ds}
    room = max(0, 2 * (n - lo) - len(ds) - 2 * k - 1); ns = n - lo - sum(1 for x in cur if x.kind == "s") - 3
    tk = 0
    for x in vfill:
        c = {"s": 0, "v": 1, "x": 2}[x.kind]
        if room < c or (x.kind == "s" and ns <= 0): break
        room -= c; tk += 1
        if x.kind == "s": ns -= 1
    st["v"] = vfill[:tk]; del vfill[:tk]
    for x in st["v"]: x.at = max(x.at, lo)
    st["s"] = sfill[:max(0, ns)]; del sfill[:max(0, ns)]
    for x in st["s"]: x.at = lo
    packed = pack(n, st, ["vm", "ds", "v", "s"])
    left = [x for x in packed[n] if x in st["s"]]
    sfill[:0] = left; packed[n] = [x for x in packed[n] if x not in left]
    left = [x for x in packed[n] if x in st["v"]]
    for x in left: x.at = 0
    vfill[:0] = left; packed[n] = [x for x in packed[n] if x not in left]
    emit_packed(em, mf[lo:], packed[lo:], mfl(t + 1)[0] if t + 1 < 32 else None)

def setup_items():
    from front import as_items
    T, T2 = S_EV, S_T2
    t = "\n".join(f"v_add_u32 v{PA2+k}, 0x10000, v{VA+k}" for k in range(8)) + "\n"
    t += f"""s_lshl_b32 s{S_X2}, s{S_NB}, 3
v_mov_b32 v5, 1
v_and_b32 v6, 7, v1
s_add_u32 s{S_X2}, s{S_X2}, s{S_OFL}
v_lshlrev_b32 v6, 2, v6
v_lshlrev_b32 v{L8}, 3, v1
"""
    for i in range(1, 4):
        t += f"s_add_u32 s{T}, s{S_NB}, {i}\ns_and_b32 s{T}, s{T}, 3\ns_sub_u32 s{T}, s{T}, s{S_NB}\ns_lshl_b32 s{T}, s{T}, 16\ns_add_u32 s{S_PO+i-1}, s{S_OB}, s{T}\n"
    t += "\n".join(f"v_subrev_u32 v{PA0+k}, 0x10000, v{VA+k}" for k in range(8)) + "\n"
    t += f"""s_lshl_b32 s{T}, s{S_QB}, 2
s_add_u32 s{T}, s{T}, s{S_WAVE}
s_lshl_b32 s{S_EFL}, s{T}, 7
s_add_u32 s{S_EFL}, s{S_EFL}, {hex(WS_EFL)}
s_lshl_b32 s{T}, s{T}, 1
s_lshr_b32 s{T2}, s{S_KQ}, 1
s_add_u32 s{T}, s{T}, s{T2}
s_lshl_b32 s{S_EB}, s{T}, 15
s_add_u32 s{S_EB}, s{S_EB}, {hex(WS_EX)}
s_lshl_b32 s{T}, s{S_KV}, 9
s_add_u32 s{S_ES}, s{S_EB}, s{T}
s_xor_b32 s{S_ES+1}, s{S_ES}, 0x8000
s_lshl_b32 s{T2}, s{S_QB}, 2
s_add_u32 s{T2}, s{T2}, s{S_NB}
s_lshl_b32 s{S_XFL}, s{T2}, 2
s_add_u32 s{S_XFL}, s{S_XFL}, s{S_WAVE}
s_lshl_b32 s{S_XFL}, s{S_XFL}, 9
s_add_u32 s{S_XFL}, s{S_XFL}, {hex(WS_XFL)}
s_lshl_b32 s{T2}, s{T2}, 6
s_add_u32 s{T2}, s{T2}, s{S_WAVE}
s_lshl_b32 s{T2}, s{T2}, 11
s_mul_i32 s{T}, s{S_KQ}, {32768 + 8192}
s_add_u32 s{T}, s{T}, s{T2}
s_add_u32 s{T}, s{T}, {hex(WS_XB)}
s_mov_b32 s{NL}, 0xbfb8aa3b
s_mov_b32 s{M}, 0xffff0000
s_mov_b32 s{SLO}, 0x00003f80
s_mov_b32 s{SHI}, 0x3f800000
s_lshl_b32 s{T2}, s{S_NB}, 13
s_add_u32 s{S_EB}, s{S_EB}, s{T2}
s_mov_b32 s{S_FM}, 15
s_bitset0_b32 s{S_FM}, s{S_KQ}
v_lshlrev_b32 v{FLV}, 7, v1
v_lshlrev_b32 v7, 2, v3
v_subrev_u32 v{RWV}, s{S_ROW}, v{IDXV}
v_subrev_u32 v{RWV}, 1, v{RWV}"""
    for d in (1, 2, 3): t += f"\ns_xor_b32 s{S_RX+d-1}, s{T}, {d*8192}\ns_xor_b32 s{S_TX+d-1}, s{T}, {d*32768}"
    t += f"\nv_add_u32 v{XA}, s{S_W4K}, v{XA}\nv_add_u32 v{XA}, {2*U}, v{XA}" + "".join(f"\nv_xor_b32 v{XA+k}, {32*k}, v{XA}" for k in range(1, 4))
    return as_items(t)

def need_flags(em, mask, lab, tag):
    e = em.e
    stamp(em, "c" + tag, 64)
    em.wait_vm(tag)
    stamp(em, "w" + tag, 64)
    e(f"v_cmp_ne_u32 vcc, 1, v{SNV}\ns_and_b32 s{S_T}, vcc_lo, {mask}\ns_cbranch_scc0 {lab}_OK")
    em.label(lab)
    spin(em, 1)
    e(f"buffer_load_dword v{SNV}, v6, {R4(SRD_WS)}, s{S_OFL} offen {SC}\ns_waitcnt vmcnt(0)\nv_cmp_ne_u32 vcc, 1, v{SNV}\ns_and_b32 s{S_T}, vcc_lo, {mask}\ns_cbranch_scc1 {lab}")
    em.label(lab + "_OK")
    stamp(em, "k" + tag, 64)
def unpack_l(t, a): return [f"v_lshlrev_b32 v{t}, 16, v{a}", f"v_and_b32 v{t+1}, s{M}, v{a}", f"v_lshlrev_b32 v{t+2}, 16, v{a+1}", f"v_and_b32 v{t+3}, s{M}, v{a+1}"]

YW = [0]
def rnd(em, t): em.e(f"v_cvt_pk_bf16_f32 v{TU}, v{t}, v{t+1}\nv_cvt_pk_bf16_f32 v{TU+1}, v{t+2}, v{t+3}\n" + "\n".join(unpack_l(t, TU)))
def gcalc(em, k):
    e = em.e
    t = GG + 4 * k; u = TU + 2; x = XF + 4 * k; MS = vr(XL + 10, 2); RS = vr(XL + 12, 2)
    e("\n".join(unpack_l(x, XL + 2 * k)))
    for h in (0, 2): e(f"v_pk_add_f32 {vr(u+h,2)}, {vr(x+h,2)}, {MS} op_sel_hi:[1,0] neg_lo:[0,1] neg_hi:[0,1]")
    rnd(em, u)
    for h in (0, 2): e(f"v_pk_mul_f32 {vr(t+h,2)}, {vr(u+h,2)}, {RS} op_sel_hi:[1,0]")
    for h in (0, 2): e(f"v_pk_fma_f32 {vr(u+h,2)}, {vr(t+h,2)}, {MS}, {vr(u+h,2)} op_sel:[0,1,0] op_sel_hi:[1,1,1] neg_lo:[1,0,0] neg_hi:[1,0,0]")
    for h in (0, 2): e(f"v_pk_fma_f32 {vr(t+h,2)}, {vr(u+h,2)}, {RS}, {vr(t+h,2)} op_sel_hi:[1,0,1]")
    rnd(em, t)
    for i in range(4): e(f"v_mul_f32 v{u+i}, s{NL}, v{t+i}")
    for i in range(4): e(f"v_exp_f32 v{u+i}, v{u+i}")
    e("s_nop 0")
    for i in range(4): e(f"v_add_f32 v{u+i}, 1.0, v{u+i}")
    for i in range(4): e(f"v_rcp_f32 v{u+i}, v{u+i}")
    e("s_nop 0")
    e(f"v_pk_mul_f32 {vr(t,2)}, {vr(t,2)}, {vr(u,2)}\nv_pk_mul_f32 {vr(t+2,2)}, {vr(t+2,2)}, {vr(u+2,2)}")
    rnd(em, t)

def emit_p2(em):
    e = em.e
    su = setup_items()
    PK = 72
    exs = []
    for lam in range(2):
        for j in range(4):
            exs += [It("s", f"s_add_u32 s{S_X1}, s{S_ES+lam}, {j*8192 + (0x70000000 if OPT['dbgx'] & 16 else 0)}"),
                    It("vm", f"buffer_store_dwordx2 {vr(ACC(lam,8+j),2)}, v{L8}, {R4(SRD_WS)}, s{S_X1} offen {SC}", tag="exs")]
    sv = [x for x in su if x.kind == "v"]; ss = [x for x in su if x.kind == "s"]
    h1v = [x for g in H1 for x in g[1]]
    n0 = sum(len(g[1]) for g in H1 if g[0] < 2)
    vf = sv[:8] + h1v[:n0] + sv[8:20] + h1v[n0:]
    late = sv[20:]
    em.items(su[8:14])
    vf = [x for x in vf if not x.done]; ss = [x for x in ss if not x.done]
    pend = wo_dma(3, 3, 8); h1 = list(H1); h1st = [x for g in H1 for x in g[2]]
    NEXTG[0] = OPT["ng0"]
    TF0, TS0, TC0, TF1, TS1, TC1, TE = OPT["tf0"], OPT["ts0"], OPT["tc0"], OPT["tf1"], OPT["ts1"], OPT["tc1"], OPT["te"]
    BARS = dict(tuple(map(int, x.split(":"))) for x in OPT["bars"].split(",")); REL = []; vis = 2
    def deadline(tag):
        if tag == "exs": return TE
        if tag is None: return 99
        if tag[0] == "wo": return min(t_ for t_, v_ in BARS.items() if v_ >= tag[1])
        if tag[0] == "fo": return 4 * (2 + 3 * tag[1] + tag[2] - 1)
        if tag[0] == "ost": return TF1 - OPT["h1b"]
    def add(items):
        grp = []; cur = []
        for x in pend + items:
            cur.append(x)
            if x.kind == "vm": grp.append(cur); cur = []
        grp.sort(key=lambda g: deadline(g[-1].tag))
        pend[:] = [x for g in grp for x in g]
    def barw(tag):
        def f(em):
            assert not any(x.tag == tag for x in pend) or tag is None, tag
            em.ds_all(f"vmcnt({em.vm_n(tag)})" if tag else ""); e("s_barrier")
        return f
    for t in range(32):
        st, kk = t >> 2, t & 3
        if t in (4, 8, 12, 16, 20, 24, 28): stamp(em, f"t{t}", 2)
        if t == TF0:
            stamp(em, "tf0", 64); em.wait_vm(("ost", 0)); stamp(em, "ack0", 64); oflag(em, 0)
        if t >= TF0:
            while h1 and all(x.done for x in h1[0][1]): add(h1.pop(0)[2])
        if 4 <= t < 8:
            k = 0
            while not all(x.done for g in H1 if g[0] <= t - 4 for x in g[1]): em.item(vf.pop(0)); k += 1
            if k: e("s_nop 1"); print("flushed", t, k)
        if t == 3: assert all(x.done for x in sv[:8])
        if t == 7: assert all(x.done for x in sv[:20])
        if t == TS0: em.item(snapld("sn0"))
        if t == TC0:
            assert all(x.done for x in su[14:29])
            need_flags(em, 0x55, "K_F0", "sn0")
            add(fo_ld(0, 1) + fo_ld(0, 2))
        if t == 8: add(fo_ld(0, 3))
        if t == TF1:
            assert all(x.done for x in h1st)
            stamp(em, "tf1", 64); em.wait_vm(("ost", 1)); stamp(em, "ack1", 64); oflag(em, 1)
        if t == TS1: em.item(snapld("sn1"))
        if t == TC1:
            need_flags(em, 0xaa, "K_F1", "sn1")
            add(fo_ld(1, 1) + fo_ld(1, 2) + fo_ld(1, 3))
        if t == 8:
            assert not vf and not ss, (len(vf), len(ss))
            for lam in range(2):
                for j in range(4):
                    a = ACC(lam, 8 + j)
                    vf += [It("v", f"v_cvt_pk_bf16_f32 v{a}, v{a}, v{a+1}", at=(0 if vf else 3)), It("v", f"v_cvt_pk_bf16_f32 v{a+1}, v{a+2}, v{a+3}")]
            cv = list(vf); vf += late
            e(f"s_cmp_lg_u32 s{S_RD}, 0\ns_cbranch_scc1 K_YR1")
            em.label("K_YR1D")
            YW[0] = em.vm
        if t == 11:
            assert all(x.done for x in cv)
            add(exs)
        if t == 12:
            YW[0] = em.vm - YW[0]
            e(f"s_cmp_lg_u32 s{S_RD}, 0\ns_cbranch_scc1 K_YR2")
            em.label("K_YR2D")
        if kk == 0 and st >= 2:
            tg = ("fo", (st - 2) // 3, (st - 2) % 3 + 1)
            assert not any(x.tag == tg for x in pend), (t, tg)
            stamp(em, f"b{t}", 64)
            em.wait_vm(tg)
            if t > 8: stamp(em, f"w{t}", 64)
        if t == 8: stamp(em, "p2own")
        if t == TE:
            assert exs[-1].done
            em.wait_vm("exs")
            e(f"s_lshl_b32 s{S_T}, s{S_KV}, 2\ns_add_u32 s{S_T}, s{S_T}, s{S_EFL}\ns_mov_b64 exec, 1")
            em.vmem(f"buffer_store_dword v5, v{L16}, {R4(SRD_WS)}, s{S_T} offen {SC}")
            e("s_mov_b64 exec, -1")
        if t == 29:
            e(f"v_cmp_gt_u32 vcc, 16, v{RWV}\nv_lshlrev_b32 v6, 7, v3\nv_add_u32 v6, {hex(WS_YC + 2048)}, v6\ns_and_b32 s{S_VAL}, vcc_lo, 0xff\ns_cselect_b32 s{S_T2}, 0, 0x7f000000")
            pend += [It("vm", f"buffer_load_dword v{SNV}, v7, {R4(SRD_WS)}, s{S_EFL} offen {SC}"), It("vm", f"buffer_load_dword v{SNY}, v6, {R4(SRD_WS)}, s{S_T2} offen {SC}")]
        bar = after = None
        if t in BARS:
            rel = [st_ for st_, tt in ((4, 3), (5, 7), (6, 7), (7, 11)) if tt <= t and st_ not in REL]
            REL.extend(rel)
            bar, after = barw(("wo", BARS[t]) if BARS[t] else None), (lambda rel=rel: add(sum([wo_dma(x) for x in rel], [])))
            vis = max(vis, BARS[t])
        if kk == 3 and t < 31: assert vis >= st + 1, t
        f = 1.0; c = NEXTG[0]
        for x in pend:
            if x.kind == "vm":
                avail = sum(2 * ntile(tt) for tt in range(t, max(t + 1, min(32, deadline(x.tag) - OPT["lat"])))) - 2
                if c > 0: f = min(f, avail / c)
                c += vcost(x)
        FR[1] = f
        kstep(em, t, pend, vf, bar, after, ss)
        if OPT["verb"]: print(t, len([x for x in pend if x.kind == "vm"]), [x.tag for x in pend if x.kind == "vm"][:1], round(f, 2))
    assert not pend
    stamp(em, "p2main")

def ERr(k): return 40 + 2 * k
def RCr(i, h): return 96 + 8 * i + 4 * h
def ex_ld(k, so): return f"buffer_load_dwordx2 {vr(ERr(k),2)}, v{L8}, {R4(SRD_WS)}, s{so} offen offset:{(k&7)*512} {SC}"
def rc_ld(): return [f"buffer_load_dwordx4 {vr(RCr(d-1,h),4)}, v{L16}, {R4(SRD_WS)}, s{S_RX+d-1} offen offset:{h*1024} {SC}" for h in range(2) for d in (1, 2, 3)]

def emit_xchg(em):
    e = em.e
    p = 200
    e(f"s_lshl_b32 s{S_X2}, s{S_KQ}, 2\ns_add_u32 s{S_X2}, s{S_X2}, s{S_XFL}\ns_lshl_b32 s{S_T}, s{S_KQ}, 7\ns_add_u32 s{S_XFL}, s{S_XFL}, s{S_T}")
    for d in (2, 1, 3):
        lam, j0 = d >> 1, (d & 1) * 4
        for h in range(2):
            for k in range(2):
                a = ACC(lam, j0 + 2 * h + k)
                e(f"v_cvt_pk_bf16_f32 v{p+2*k}, v{a}, v{a+1}\nv_cvt_pk_bf16_f32 v{p+2*k+1}, v{a+2}, v{a+3}")
            e(f"buffer_store_dwordx4 {vr(p,4)}, v{L16}, {R4(SRD_WS)}, s{S_TX+d-1} offen offset:{h*1024} {SC}")
            p += 4
    def acc4(a, b): e(f"v_dot2_f32_bf16 v{a}, v{b}, s{SLO}, v{a}\nv_dot2_f32_bf16 v{a+1}, v{b}, s{SHI}, v{a+1}\nv_dot2_f32_bf16 v{a+2}, v{b+1}, s{SLO}, v{a+2}\nv_dot2_f32_bf16 v{a+3}, v{b+1}, s{SHI}, v{a+3}")
    def finish(a, k):
        g = GG + 4 * k
        rnd(em, a)
        e(f"v_pk_mul_f32 {vr(a,2)}, {vr(a,2)}, {vr(g,2)}\nv_pk_mul_f32 {vr(a+2,2)}, {vr(a+2,2)}, {vr(g+2,2)}")
        rnd(em, a)
        e(f"v_pk_add_f32 {vr(a,2)}, {vr(a,2)}, {vr(XF+4*k,2)}\nv_pk_add_f32 {vr(a+2,2)}, {vr(a+2,2)}, {vr(XF+4*k+2,2)}")
        e(f"v_cvt_pk_bf16_f32 v{a}, v{a}, v{a+1}\nv_cvt_pk_bf16_f32 v{a+1}, v{a+2}, v{a+3}")
    EA = 36
    def exsum():
        e("\n".join(unpack_l(EA, ERr(0))))
        for k in range(1, 16): acc4(EA, ERr(k))
    stamp(em, "sent", 16)
    e(f"s_waitcnt vmcnt(6)\nv_cmp_ne_u32 vcc, 1, v{SNV}\ns_and_b32 s{S_T}, s{S_KQ}, 1\ns_or_b32 s{S_T}, s{S_T}, vcc_lo\ns_cselect_b32 s{S_EV}, 0, 1\ns_cbranch_scc1 K_NOER\ns_add_u32 s{S_T3}, s{S_EB}, 4096")
    for k in range(16): e(ex_ld(k, (S_EB, S_T3)[k >> 3]))
    em.label("K_NOER")
    e(f"v_rcp_f32 v{XL+12}, v{XL+11}")
    for k in range(3): gcalc(em, k)
    PV, PX = 152, 153
    e(f"s_mov_b32 s{S_T2}, s{S_EV}\ns_and_b32 s{S_T}, s{S_KQ}, 1\ns_or_b32 s{S_EV}, s{S_EV}, s{S_T}\ns_cselect_b32 s{S_T}, 0, 16")
    e(f"v_and_b32 v{PX}, 3, v1\nv_lshl_add_u32 v{PX}, v{PX}, 2, s{S_XFL}\nv_add_u32 v7, s{S_EFL}, v7\nv_cmp_gt_u32 vcc, s{S_T}, v1\ns_add_u32 s{S_T3}, s{S_KQ}, 16\ns_nop 0\nv_cndmask_b32 v{PV}, v{PX}, v7, vcc")
    poll = f"buffer_load_dword v{SNV}, v{PV}, {R4(SRD_WS)}, 0 offen {SC}"
    e(f"s_waitcnt vmcnt(16)\ns_cmp_lg_u32 s{S_T2}, 0\ns_cbranch_scc1 K_FLAGGED\ns_waitcnt vmcnt(0)")
    em.label("K_FLAGGED")
    e(f"{poll}\ns_mov_b32 exec_lo, s{S_FM}\ns_mov_b32 exec_hi, 0\nbuffer_store_dword v5, v{FLV}, {R4(SRD_WS)}, s{S_X2} offen {SC}\ns_mov_b64 exec, -1")
    stamp(em, "flagd", 16)
    gcalc(em, 3); gcalc(em, 4)
    e("s_waitcnt vmcnt(2)")
    exsum()
    if not OPT["dbgx"] & 1: e(f"s_cmp_lg_u32 s{S_VAL}, 0\ns_cbranch_scc1 K_YG")
    em.label("K_YGD")
    e(f"s_waitcnt vmcnt(1)\ns_branch K_XW")
    em.label("K_XPOLL")
    spin(em, OPT["xs"])
    e(f"{poll}\ns_waitcnt vmcnt(0)")
    em.label("K_XW")
    e(f"v_writelane_b32 v{SNV}, 1, s{S_T3}\nv_cmp_ne_u32 vcc, 1, v{SNV}\ns_cmp_lg_u32 s{S_EV}, 0\ns_cbranch_scc1 K_XW2\ns_and_b32 s{S_T}, vcc_lo, 0xffff\ns_cbranch_scc1 K_XPOLL")
    e(f"s_add_u32 s{S_T}, s{S_EB}, 4096\ns_mov_b32 s{S_EV}, 2\nv_mov_b32 v{PV}, v{PX}")
    for k in range(16): e(ex_ld(k, (S_EB, S_T)[k >> 3]))
    em.label("K_XW2")
    e(f"s_and_b32 s{S_T}, vcc_lo, 0xf0000\ns_cbranch_scc1 K_XPOLL")
    for x in rc_ld(): e(x)
    stamp(em, "xchg")
    e(f"s_cmp_lg_u32 s{S_EV}, 2\ns_cbranch_scc1 K_EFIN\ns_waitcnt vmcnt(6)")
    exsum()
    e("s_nop 1")
    em.label("K_EFIN")
    finish(EA, 4)
    e(f"buffer_store_dwordx2 {vr(EA,2)}, v{XE}, {R4(SRD_OUT)}, s{S_XE} offen\ns_add_u32 s{S_T}, s{S_W4K}, {2*U}\nv_add_u32 v5, s{S_T}, v{L16}\ns_add_u32 s{S_T}, s{S_XR}, {8*1152}")
    for h in range(2):
        e(f"s_waitcnt vmcnt({4 - 3*h})")
        for i in range(3):
            for k in (2 * h, 2 * h + 1): acc4(ACC(0, k), RCr(i, h) + 2 * (k & 1))
        for k in (2 * h, 2 * h + 1):
            finish(ACC(0, k), k)
            e(f"ds_write_b64 v{XA+k}, {vr(ACC(0,k),2)}")
    e(f"ds_read_b128 {vr(40,4)}, v5\nds_read_b128 {vr(44,4)}, v5 offset:1024")
    for i in range(2):
        e(f"s_waitcnt lgkmcnt({1-i})\nbuffer_store_dwordx4 {vr(40+4*i,4)}, v{XV}, {R4(SRD_OUT)}, s{(S_XR, S_T)[i]} offen")

def emit_ygather(em):
    e = em.e
    from moe import YTS, unpack
    RD = [128 + 4 * i for i in range(16)] + [248, 252]
    XR, AD = 134, 245
    em.label("K_YSPIN")
    spin(em, 4)
    e(f"buffer_load_dword v{SNY}, v7, {R4(SRD_WS)}, 0 offen {SC}\ns_waitcnt vmcnt(0)")
    em.label("K_YR0")
    e(f"v_cmp_gt_u32 vcc, 9, v{SNY}\ns_cbranch_vccnz K_YSPIN")
    e(f"s_sub_u32 s{S_T}, s{S_RD}, 1\ns_mul_i32 s{S_T3}, s{S_T}, {YTS}\ns_add_u32 s{S_T3}, s{S_T3}, {hex(WS_YP)}\ns_lshl_b32 s{S_SA}, s{S_T}, 3")
    e(f"v_subrev_u32 v{AD}, 1, v{IDXV}\nv_and_b32 v{AD}, 0x7ff, v{AD}\nv_mul_u32_u24 v{AD}, 0x480, v{AD}")
    for i in range(18):
        e(f"buffer_load_dwordx4 {ar(RD[i],4)}, v{L16}, {R4(SRD_WS)}, s{S_T3} offen offset:{(i&3)*1024} {SC}")
        if (i & 3) == 3: e(f"s_add_u32 s{S_T3}, s{S_T3}, 4096")
    e(f"s_mov_b64 exec, 0xff\nbuffer_load_dwordx2 {vr(XR,2)}, v{AD}, {R4(SRD_WS)}, s{S_SA} offen {SC}\ns_mov_b64 exec, -1\ns_branch K_YR0D")
    em.label("K_YR1")
    A, B = 8, 12
    for r in range(4): e(f"v_accvgpr_read_b32 v{A+r}, a{RD[0]+r}")
    for i in range(1, 18):
        for r in range(4): e(f"v_accvgpr_read_b32 v{B+r}, a{RD[i]+r}")
        e(f"v_pk_add_f32 {vr(A,2)}, {vr(A,2)}, {vr(B,2)}\nv_pk_add_f32 {vr(A+2,2)}, {vr(A+2,2)}, {vr(B+2,2)}")
    e(f"v_mov_b32_dpp v16, v{IDXV} row_ror:8 row_mask:0xf bank_mask:0xf\nv_mul_u32_u24 v{AD}, 0x480, v1")
    for r in range(4): e(f"v_add_f32_dpp v{A+r}, v{A+r}, v{A+r} row_ror:8 row_mask:0xf bank_mask:0xf")
    e(f"v_and_b32 v16, s{M}, v16")
    for op in ("v_permlane16_swap_b32", "v_permlane32_swap_b32"):
        for r in range(4): e(f"v_mov_b32 v{B+r}, v{A+r}")
        for r in range(4): e(f"{op} v{A+r}, v{B+r}")
        e(f"v_pk_add_f32 {vr(A,2)}, {vr(A,2)}, {vr(B,2)}\nv_pk_add_f32 {vr(A+2,2)}, {vr(A+2,2)}, {vr(B+2,2)}")
    rnd(em, A)
    for r in range(4): e(f"v_mul_f32 v{A+r}, v16, v{A+r}")
    rnd(em, A)
    e(unpack(B, XR))
    e(f"v_pk_add_f32 {vr(A,2)}, {vr(A,2)}, {vr(B,2)}\nv_pk_add_f32 {vr(A+2,2)}, {vr(A+2,2)}, {vr(B+2,2)}")
    rnd(em, A)
    for r in range(4): e(f"v_mul_f32 v{B+r}, s{NL}, v{A+r}")
    for r in range(4): e(f"v_exp_f32 v{B+r}, v{B+r}")
    e("s_nop 0")
    for r in range(4): e(f"v_add_f32 v{B+r}, 1.0, v{B+r}")
    for r in range(4): e(f"v_rcp_f32 v{B+r}, v{B+r}")
    e(f"s_add_u32 s{S_T}, s{S_SA}, {hex(WS_GS)}")
    e(f"v_pk_mul_f32 {vr(A,2)}, {vr(A,2)}, {vr(B,2)}\nv_pk_mul_f32 {vr(A+2,2)}, {vr(A+2,2)}, {vr(B+2,2)}")
    e(f"v_cvt_pk_bf16_f32 v{XR}, v{A}, v{A+1}\nv_cvt_pk_bf16_f32 v{XR+1}, v{A+2}, v{A+3}\ns_mov_b64 exec, 0xff")
    e(f"buffer_store_dwordx2 {vr(XR,2)}, v{AD}, {R4(SRD_WS)}, s{S_T} offen {SC}\ns_mov_b64 exec, -1\ns_branch K_YR1D")
    em.label("K_YR2")
    e(f"s_waitcnt vmcnt({YW[0]})\ns_and_b32 s{S_T}, s{S_RD}, 15\ns_lshl_b32 s{S_T}, s{S_T}, 7\ns_add_u32 s{S_T}, s{S_T}, {hex(WS_YC + 2048)}\ns_mov_b64 exec, 1\nbuffer_atomic_add v5, v{L16}, {R4(SRD_WS)}, s{S_T} offen sc1\ns_mov_b64 exec, -1\ns_branch K_YR2D")
    em.label("K_YG")
    e(f"v_mov_b32 v157, -1")
    em.label("K_YG1")
    e(f"s_ff1_i32_b32 s{S_T}, s{S_VAL}\ns_bitset0_b32 s{S_VAL}, s{S_T}\nv_readlane_b32 s{S_T2}, v{RWV}, s{S_T}\nv_mov_b32 v158, s{S_T}\ns_nop 0\nv_cmp_eq_u32 vcc, s{S_T2}, v3\ns_cmp_lg_u32 s{S_VAL}, 0\ns_nop 0\nv_cndmask_b32 v157, v157, v158, vcc\ns_cbranch_scc1 K_YG1")
    e(f"v_mul_u32_u24 v158, 0x480, v157\nv_lshl_add_u32 v158, v4, 3, v158")
    e(f"s_lshl_b32 s{S_T}, s{S_NB}, 8\ns_add_u32 s{S_T}, s{S_T}, s{S_X0}\ns_add_u32 s{S_T}, s{S_T}, {hex(WS_GS)}\ns_lshl_b32 s{S_T2}, s{S_NB}, 5\ns_add_u32 s{S_T2}, s{S_T2}, {hex(WS_GS + 1024)}\ns_branch K_YG3")
    em.label("K_YG2")
    spin(em, 2)
    e(f"buffer_load_dword v{SNY}, v6, {R4(SRD_WS)}, 0 offen {SC}\ns_waitcnt vmcnt(0)")
    em.label("K_YG3")
    e(f"v_cmp_gt_u32 vcc, 9, v{SNY}\ns_cbranch_vccnz K_YG2")
    e("v_cmp_gt_u32 vcc, 8, v157\ns_nop 1\ns_mov_b64 exec, vcc")
    for k in range(5): e(f"buffer_load_dwordx2 {vr(160+2*k,2)}, v158, {R4(SRD_WS)}, s{S_T if k < 4 else S_T2} offen offset:{k*32 if k < 4 else 0} {SC}")
    e("s_waitcnt vmcnt(0)")
    for k in range(5): e("\n".join(unpack_l(GG + 4 * k, 160 + 2 * k)))
    e("s_mov_b64 exec, -1\ns_branch K_YGD")
```

```python
import sys, os
sys.path.insert(0, os.path.dirname(__file__))
from defs import *
import front, attn, tail, moe
KN = "recurrent_scan__gqa_block_cached__moe_arch_mod__prompt_kernel"
HDR = open(os.path.join(os.path.dirname(__file__), "..", "gen", "header.txt")).read().rstrip("\n") + "\n"
def build(out):
    em = Em(); e = em.e
    e(f".globl {KN}\n.p2align 8\n.type {KN},@function"); em.label(KN)
    front.emit_front(em, KN)
    front.emit_qproj(em)
    stamp(em, "qproj", 0 if not OPT["fine"] & 64 else 128)
    front.emit_qfin(em)
    if OPT["dump"] == "q":
        e(f"s_lshl_b32 s{S_T}, s2, 2\ns_add_u32 s{S_T}, s{S_T}, s{S_WAVE}\ns_lshl_b32 s{S_T}, s{S_T}, 14\ns_add_u32 s{S_T}, s{S_T}, {hex(WS_DUMP)}")
        for f in range(16): e(f"buffer_store_dwordx4 {vr(Q0+4*f,4)}, v{L16}, {R4(SRD_WS)}, s{S_T} offen\ns_add_u32 s{S_T}, s{S_T}, 1024")
    stamp(em, "qfin", 0 if not OPT["fine"] & 64 else 128)
    if OPT["stop"]: e("s_branch K_PROFOUT")
    attn.emit_pre(em)
    stamp(em, "pre")
    attn.emit_loop(em, tail.last_vm)
    stamp(em, "last")
    tail.emit_final(em)
    stamp(em, "oepi")
    tail.emit_p2(em)
    tail.emit_xchg(em)
    if OPT["prof"]:
        e("s_waitcnt vmcnt(0)")
        stamp(em, "fin")
        em.label("K_PROFOUT")
        e(f"v_writelane_b32 v2, s{S_GD}, 30")
        e(f"s_lshl_b32 s{S_T}, s2, 2\ns_add_u32 s{S_T}, s{S_T}, s{S_WAVE}\ns_lshl_b32 s{S_T}, s{S_T}, 8\ns_add_u32 s{S_T}, s{S_T}, {hex(WS_PROF)}\nv_lshlrev_b32 v5, 2, v1")
        e(f"buffer_store_dword v2, v5, {R4(SRD_WS)}, s{S_T} offen {SC}")
    em.label("K_END")
    e("s_endpgm")
    tail.emit_ygather(em)
    em.label("K_TAIL_END")
    moe.emit_side(em)
    front.emit_rank_slow(em)
    front.emit_xpick(em)
    attn.emit_soft_spin(em)
    em.label("K_CODE_END")
    attn.emit_fallback(em)
    s = HDR + "; @launch grid=(256,1,1) block=(256,1,1) lds=163840\n"
    if OPT["prof"]: s += "; stamps: " + " ".join(STN) + "\n"
    s += '.amdgcn_target "amdgcn-amd-amdhsa--gfx950"\n.text\n' + em.text()
    s += f""".section .rodata,"a"
.p2align 6
.amdhsa_kernel {KN}
  .amdhsa_next_free_vgpr 512
  .amdhsa_next_free_sgpr 102
  .amdhsa_accum_offset 256
  .amdhsa_group_segment_fixed_size 0
  .amdhsa_kernarg_size 104
  .amdhsa_user_sgpr_count 2
  .amdhsa_user_sgpr_kernarg_segment_ptr 1
  .amdhsa_system_sgpr_workgroup_id_x 1
  .amdhsa_float_denorm_mode_32 3
.end_amdhsa_kernel
"""
    open(out, "w").write(s)
    print("leftover items:", em.stat)
if __name__ == "__main__":
    for a in sys.argv[2:]:
        k, v = a.split("="); OPT[k] = type(OPT[k])(v)
    build(sys.argv[1])
```

```python
from defs import *
from front import dma_k, dma_v, kaddr, vaddr, kv_init
import copy

def qk(bw, kt, s, qs, c0=None):
    D = Sreg(bw, qs, kt)
    C = (vr(NM + qs * 4, 4) if c0 is None else c0) if s == 0 else vr(D, 4)
    return f"{MF} {vr(D,4)}, {ar(Kf(kt,s),4)}, {vr(Qf(qs,s),4)}, {C}"
def pv(pr, T, qs):
    O = Oacc(T, qs)
    return f"{MF} {ar(O,4)}, {ar(Vf(T),4)}, {vr(Preg(pr,qs),4)}, {ar(O,4)}"
def smf(pr, h): return f"{SMF} {ar(AL+h*4,4)}, {ar(AONE,4)}, {vr(Preg(pr,2*h),8)}, v{SIDX}"
def kld(blk, i): return f"ds_read_b128 {ar(Kf(i>>2,i&3),4)}, v{KA+(i&3)} offset:{kaddr(blk) + (i>>2)*4096}"
def vld(blk, T, j): return f"ds_read_b64_tr_b16 {ar(Vf(T)+2*j,2)}, v{VA+T} offset:{vaddr(blk) + j*4096}"

EPV, FWA, FRA, FLV_ = 5, 6, 7, 250
def sync_init():
    import front, moe
    return front.as_items(f"v_mov_b32 v{EPV}, 0\ns_lshl_b32 s{S_T}, s{S_WAVE}, 2\ns_add_u32 s{S_T}, s{S_T}, {moe.L_FLG}\nv_mov_b32 v{FWA}, s{S_T}\nv_and_b32 v{FRA}, 12, v1\nv_add_u32 v{FRA}, {moe.L_FLG}, v{FRA}") + [It("ds", f"ds_write_b32 v{FWA}, v{EPV}", at=40)]
NSOFT = [0]; SOFTL = []
def emit_soft_spin(em):
    for lab in SOFTL[1:]:
        em.label(lab)
        em.e(f"ds_read_b32 v{FLV_}, v{FRA}\ns_add_u32 s101, s101, 1\ns_bitcmp1_b32 s101, 23\ns_cbranch_scc1 K_END\ns_waitcnt lgkmcnt(0)\nv_cmp_gt_u32 vcc, v{EPV}, v{FLV_}\ns_cbranch_vccnz {lab}\ns_branch {lab}D")
def step_mf(u, do_qk=True, do_pv=True, xmf=None):
    bw = (u + 1) & 1; pr = (u + 1) & 1
    mf = []; fr = []
    for i in range(8):
        if do_qk:
            kt, qs = i >> 2, i & 3
            for s in range(4):
                mf.append(qk(bw, kt, s, qs))
                if qs == 3: fr.append((len(mf) - 1, "K", kt * 4 + s))
        if do_pv:
            for qs in range(4): mf.append(pv(pr, i, qs))
            fr.append((len(mf) - 1, "V", i))
            if (i & 3) == 1: mf.append(smf(pr, i >> 2))
        mf += (xmf or {}).get(i, [])
    return mf, fr

def emit_step(em, u, do_qk=True, do_pv=True, ld_k=True, vm=(), post=(), bar=False, hook=None, nxt=None, vmspan=None, vmw=4, side=(), xmf=None, scal=(), hard=False):
    br = u & 1
    mf, fr = step_mf(u, do_qk, do_pv, xmf)
    n = len(mf)
    BG = OPT["barg"]
    soft = bar and not hard and OPT["soft"]
    lo = (OPT["sg2"] + 2 if soft else BG + 1) if bar else 0
    dsl = []
    for g, kind, i in fr:
        if kind == "K" and ld_k: dsl.append((g, kld(u + 2, i)))
        if kind == "V": dsl += [(g, vld(u, i, 0)), (g, vld(u, i, 1))]
    if not do_pv:
        for i in range(8): dsl += [((i * n) // 10, vld(u, i, j)) for j in range(2)]
    dsl.sort(key=lambda x: x[0])
    st = {"ds": [It("ds", t, at=max(g, lo)) for g, t in dsl], "side": list(side), "scal": list(scal)}
    vm = list(vm)
    nv = sum(1 for x in vm if x.kind == "vm"); k = 0
    for x in vm:
        x.at = lo + 1 + (k * ((vmspan or n) - 4 - lo)) // max(nv, 1)
        if x.kind == "vm": k += 1
    st["vm"] = vm
    st["post"] = [It("s", t, at=n - 2 - len(post) + k) for k, t in enumerate(post)]
    if soft:
        NSOFT[0] += 1; lab = f"K_SY{NSOFT[0]}"
        st["sync"] = [It("v", f"v_add_u32 v{EPV}, 1, v{EPV}", at=1), It("s", f"s_waitcnt vmcnt({vmw}) lgkmcnt(0)", at=BG, tag="drain"), It("ds", f"ds_write_b32 v{FWA}, v{EPV}", at=BG),
                      It("ds", f"ds_read_b32 v{FLV_}, v{FRA}", at=OPT["sg1"]), It("v", f"v_cmp_gt_u32 vcc, v{EPV}, v{FLV_}", at=OPT["sg2"], needs=[f"v{FLV_}"]),
                      It("s", f"s_cbranch_vccnz {lab}\n{lab}D:", at=OPT["sg2"] + 1)]
        SOFTL.append(lab)
    budget = 8 if n > 40 else 16
    ex = [(x * (n - 4)) // 32 for x in range(32)]
    st["exp"] = [It("x", f"v_exp_f32 v{S0+br*32+x}, v{S0+br*32+x}", at=ex[x]) for x in range(32)]
    est = [ex[2 * j + 1] + 1 for j in range(16)]
    for itn in range(30):
        st["cvt"] = [It("v", f"v_cvt_pk_bf16_f32 v{P0+br*16+j}, v{S0+br*32+2*j}, v{S0+br*32+2*j+1}", at=est[j]) for j in range(16)]
        packed = pack(n, st, ["sync", "exp", "vm", "ds", "cvt", "post", "side", "scal"], budget=budget)
        eg = [g for g, items in enumerate(packed) for it in items if it in st["exp"]]
        new = [eg[2 * j + 1] + 1 for j in range(16)]
        if all(a <= b for a, b in zip(new, est)): break
        est = [max(a, b) for a, b in zip(new, est)]
    else: raise RuntimeError("no fixpoint")
    assert not any(it in st["exp"] for it in packed[n])
    if side and packed[n]: print("step", u, "overflow", len(packed[n]))
    em.c(f"--- step {u}")
    if soft:
        gb = [g for g in range(n) if st["sync"][-1] in packed[g]][0]
        assert gb < lo, (gb, lo)
    if bar and not soft:
        emit_packed(em, mf[:BG + 1], packed[:BG + 1] + [[]], None)
        if vmw == "kv": vmw = em.vm_n("kv")
        em.ds_all(f"vmcnt({vmw})" if vmw is not None else "")
        em.e("s_barrier")
        if OPT["fine"] & 32:
            if u == 0: em.e("s_mov_b32 s101, 44")
            em.e(f"{'s_memrealtime' if OPT['fine'] & 256 else 's_memtime'} s[98:99]\ns_mov_b32 m0, s101\ns_add_u32 s101, s101, 1\ns_waitcnt lgkmcnt(0)\nv_writelane_b32 v2, s98, m0")
        if hook: hook(em)
        emit_packed(em, mf[BG + 1:], packed[BG + 1:], nxt)
    else:
        emit_packed(em, mf, packed, nxt)

def rowmax_groups(em, v, t):
    e = em.e
    e(f"v_mov_b32 v{t}, v{v}\ns_nop 1\nv_permlane16_swap_b32 v{v}, v{t}\nv_max_f32 v{v}, v{v}, v{t}")
    e(f"v_mov_b32 v{t}, v{v}\ns_nop 1\nv_permlane32_swap_b32 v{v}, v{t}\nv_max_f32 v{v}, v{v}, v{t}")

def emit_pre(em):
    e = em.e
    def mx(qs):
        b = S0 + qs * 8; m = NM + 4 * qs
        return [f"v_max3_f32 v{m}, v{b}, v{b+1}, v{b+2}", f"v_max3_f32 v{m}, v{m}, v{b+3}, v{b+4}", f"v_max3_f32 v{m}, v{m}, v{b+5}, v{b+6}", f"v_max_f32 v{m}, v{m}, v{b+7}", f"v_mov_b32 v{m+1}, v{m}"]
    va = mx(0) + mx(1)
    e(va.pop(0)); e(va.pop(0))
    for kt in range(2):
        for s in range(4):
            em.mfma(qk(0, kt, s, 3, c0="0"))
            em.dsr(kld(1, kt * 4 + s))
            e(va.pop(0))
    import front
    ki = front.key_items()
    em.items(ki[:5])
    for x in mx(2): e(x)
    em.items(ki[5:])
    for x in mx(3): e(x)
    for op in ("v_permlane16_swap_b32", "v_permlane32_swap_b32"):
        for qs in range(4): e(f"{op} v{NM+4*qs}, v{NM+4*qs+1}")
        for qs in range(4):
            m = NM + 4 * qs
            e(f"v_max_f32 v{m}, v{m}, v{m+1}")
            if "16" in op: e(f"v_mov_b32 v{m+1}, v{m}")
    for qs in range(4):
        m = NM + 4 * qs
        for r in (3, 2, 1, 0): e(f"v_sub_f32 v{m+r}, 0, v{m}")
    em.label("K_HAVEMAX")
    for qs in range(4):
        for x in range(0, 8, 2):
            e(f"v_pk_add_f32 {vr(S0+qs*8+x,2)}, {vr(S0+qs*8+x,2)}, {vr(NM+qs*4,2)}")

def period_dma(p):
    its = dma_v(LDS_V + vaddr(4 * p + 4)) + dma_k(kaddr(4 * p + 6)) + dma_v(LDS_V + vaddr(4 * p + 6)) + dma_k(kaddr(4 * p + 8), tag="kv")
    ns = OPT["dmasteps"]
    per = [[] for _ in range(4)]
    k = 0
    for x in its:
        per[min((k * ns) // 16, ns - 1)].append(x)
        if x.kind == "vm": k += 1
    import moe
    per[3] = moe.side_items()
    return per

def snap(em): return (em.ds, em.ds_done, dict(em.ldmap), em.clock, dict(em.dst))
def restore(em, s): em.ds, em.ds_done, em.ldmap, em.clock, em.dst = s[0], s[1], dict(s[2]), s[3], dict(s[4])

LOOPST = {}
def first(u): return step_mf(u)[0][0]
def emit_loop(em, last_vm):
    import front, moe, tail
    e = em.e
    em.items(sync_init())
    if not OPT["fine"] & 32: e("s_mov_b32 s101, 0")
    emit_step(em, 0, do_pv=False, vm=period_dma(0)[0], bar=True, vmw=8, hard=True)
    front.emit_rank(em)
    e("s_memrealtime s[94:95]")
    em.ds_all()
    e(f"s_mov_b32 s{S_LOOP}, 0")
    keep = em.L; em.L = []
    emit_step(em, 7, vm=period_dma(1)[3], vmspan=40); emit_step(em, 8, vm=period_dma(2)[0], bar=True, nxt=first(9))
    em.L = keep
    e(".p2align 6")
    em.label("K_LOOP")
    for b in (1, 2, 3, 4, 5, 6, 7, 8):
        u = b + 8
        post = ()
        if b == 3: post = (f"s_add_u32 s{S_LOOP}, s{S_LOOP}, 1", f"s_bitcmp1_b32 s{S_H0}, s{S_LOOP}")
        emit_step(em, u, vm=period_dma(u >> 2)[u & 3], bar=(u & 3) == 0, post=post, vmspan=(40 if (u & 3) == 3 else None), nxt=first(u + 1))
        if b == 3:
            e("s_cbranch_scc1 K_EXIT"); LOOPST["b4"] = snap(em)
            em.label("K_B4")
        if b == 4:
            LOOPST["b5"] = snap(em)
            em.label("K_B5")
    e("s_branch K_LOOP")
    restore(em, LOOPST["b4"])
    em.label("K_EXIT")
    e(f"s_cmp_lg_u32 s{S_LOOP}, 8\ns_cbranch_scc1 K_HOOK")
    e(f"s_cmp_lg_u32 s{S_GD}, 0\ns_cbranch_scc1 K_YR0")
    em.label("K_LAST")
    stamp(em, "loop", 0 if not OPT["fine"] & 64 else 128)
    em.vm = 0
    for u in (60, 61, 62, 63):
        emit_step(em, u, do_qk=(u < 63), ld_k=(u < 62), vm=last_vm(em, u), bar=(u in (60, 62)), hard=True, vmw=(4 if u == 60 else None),
                  side=(tail.last_side() if u == 60 else ()), nxt=(first(u + 1) if u < 62 else None))

def emit_fallback(em):
    e = em.e
    em.label("K_FB")
    e(f"s_mov_b32 s{S_PASS}, 1\ns_waitcnt vmcnt(0) lgkmcnt(0)\ns_barrier")
    for qs in range(4): e(f"v_mov_b32 v{NM+4*qs}, 0xff800000")
    e(f"s_mov_b32 s{S_KOFF}, 0\ns_mov_b32 s{S_LOOP}, 32")
    em.label("K_FBLOOP")
    em.items(dma_k(kaddr(4)))
    e("s_waitcnt vmcnt(0)\ns_barrier")
    for half in range(2):
        for i in range(8): e(kld(4 + half, i))
        e("s_waitcnt lgkmcnt(0)")
        for qs in range(4):
            for kt in range(2):
                for s in range(4): e(qk(0, kt, s, qs, c0="0"))
        e("s_nop 7")
        for qs in range(4):
            b = S0 + qs * 8; m = NM + 4 * qs
            e(f"v_max3_f32 v{m}, v{m}, v{b}, v{b+1}\nv_max3_f32 v{m}, v{m}, v{b+2}, v{b+3}\nv_max3_f32 v{m}, v{m}, v{b+4}, v{b+5}\nv_max3_f32 v{m}, v{m}, v{b+6}, v{b+7}")
    e(f"s_barrier\ns_sub_u32 s{S_LOOP}, s{S_LOOP}, 1\ns_cmp_lg_u32 s{S_LOOP}, 0\ns_cbranch_scc1 K_FBLOOP")
    for qs in range(4):
        m = NM + 4 * qs
        rowmax_groups(em, m, m + 1)
        for r in (3, 2, 1, 0): e(f"v_sub_f32 v{m+r}, 0, v{m}")
    k, v = kv_init()
    em.items(k + v)
    import moe
    moe.side_refresh(em)
    e(f"s_mov_b32 s{S_LOOP}, 0")
    for i in range(128): e(f"v_accvgpr_write_b32 a{AO+i}, 0")
    for i in range(8): e(f"v_accvgpr_write_b32 a{AL+i}, 0")
    e("s_waitcnt vmcnt(0)\ns_barrier")
    for i in range(8): e(kld(0, i))
    e("s_waitcnt lgkmcnt(0)")
    for qs in range(4):
        for kt in range(2):
            for s in range(4): e(qk(0, kt, s, qs, c0="0"))
    for i in range(8): e(kld(1, i))
    e("s_waitcnt lgkmcnt(0)\ns_branch K_HAVEMAX")
```

```python
from defs import *

def reduce32(em, v, t):
    e = em.e
    for rot in (8, 4, 2, 1):
        e(f"s_nop 1\nv_add_f32_dpp v{t}, v{v}, v{v} row_ror:{rot} row_mask:0xf bank_mask:0xf")
        v, t = t, v
    e(f"v_mov_b32 v{t}, v{v}\ns_nop 1\nv_permlane16_swap_b32 v{v}, v{t}\nv_add_f32 v{v}, v{v}, v{t}")
def bf16r(em, d, s): em.e(f"v_cvt_pk_bf16_f32 v{d}, v{s}, v{s}\nv_lshlrev_b32 v{d}, 16, v{d}")

S_RX_ = (72, 73)
S_PM = 40
S_G3 = 74
def q_dma(c):
    sl = QSLOT[c % 3]
    r = []
    for h in range(2):
        r.append(It("s", f"s_add_u32 m0, s{(S_MX, S_MX2)[h]}, {sl + 32768}"))
        r += [It("vm", f"buffer_load_dwordx4 v{DX+2*h+i}, {R4(SRD_X)}, s{S_XO} offen offset:{i*1024}{NT(1)} lds", tag=("q", c)) for i in range(2)]
    r.append(It("s", f"s_cmp_eq_u32 s{S_G3}, {8-c}\ns_cselect_b32 s{S_RX_[0]}, s{S_RX_[1]}, 128"))
    r.append(It("s", f"s_add_u32 s{S_XO}, s{S_XO}, s{S_RX_[0]}"))
    for h in range(2):
        r.append(It("s", f"s_add_u32 m0, s{S_MW}, {sl + h*4096}"))
        r += [It("vm", f"buffer_load_dwordx4 v{DW+4*h+i}, {R4(SRD_W)}, s{S_WQO} offen offset:{i*1024}{NT(2)} lds", tag=("q", c)) for i in range(4)]
    r.append(It("s", f"s_lshl_b32 s{S_RX_[0]}, s{S_RX_[0]}, 12"))
    r.append(It("s", f"s_add_u32 s{S_WQO}, s{S_WQO}, s{S_RX_[0]}"))
    return r
def dma_k(lds, tag=None):
    return [It("s", f"s_add_u32 m0, s{S_W4K}, {lds}")] + \
           [It("vm", f"buffer_load_dwordx4 v{DK+i}, {R4(SRD_K)}, s{S_KOFF} offen offset:{i*1024}{NT(4)} lds", tag=tag) for i in range(4)] + \
           [It("s", f"s_add_u32 s{S_KOFF}, s{S_KOFF}, 16384")]
def dma_v(lds, tag=None):
    return [It("s", f"s_add_u32 m0, s{S_W4K}, {lds}")] + \
           [It("vm", f"buffer_load_dwordx4 v{DV+(i&1)}, {R4(SRD_V)}, s{S_VOFF} offen offset:{i*1024}{NT(4)} lds", tag=tag) for i in range(4)] + \
           [It("s", f"s_add_u32 s{S_VOFF}, s{S_VOFF}, 16384")]
def kaddr(b): return LDS_K + (((b - 2) >> 2) & 1) * 32768 + (b & 3) * 8192
def vaddr(b): return (1 - ((b >> 2) & 1)) * 32768 + (b & 3) * 8192
def kv_init():
    k = [It("s", f"s_mov_b32 s{S_KOFF}, 0")] + dma_k(kaddr(0)) + dma_k(kaddr(2)) + dma_k(kaddr(4))
    v = [It("s", f"s_mov_b32 s{S_VOFF}, 0")] + dma_v(LDS_V + vaddr(0)) + dma_v(LDS_V + vaddr(2))
    return k, v

def as_items(text):
    r = []
    for l in text.split("\n"):
        l = l.strip()
        if l: r.append(It("s" if l.startswith("s_") else "v", l.replace(" ; ", "\n")))
    return r
class Rec:
    def __init__(self): self.t = []
    def e(self, s): self.t.append(s)
SHADOW = []
XQ = 152
def shadow_setup(RP, CP):
    P = S_P
    r = Rec(); e = r.e
    e(f"s_lshl_b32 s{S_T}, s{S_WAVE}, 2\nv_bfrev_b32 v5, v4\nv_lshrrev_b32 v5, 30, v5\nv_xor_b32 v5, s{S_T}, v5\nv_xor_b32 v5, v5, v3\nv_lshlrev_b32 v5, 4, v5\nv_lshl_add_u32 v{KA}, v3, 8, v5")
    for s in range(1, 4): e(f"v_xor_b32 v{KA+s}, {s*64}, v{KA}")
    e(f"v_lshl_add_u32 v6, v4, 2, v{RP}\nv_and_b32 v5, 7, v6\nv_lshlrev_b32 v5, 5, v5\nv_lshl_add_u32 v5, v6, 8, v5\nv_lshl_add_u32 v5, v{CP}, 3, v5\nv_add_u32 v{VA}, {hex(LDS_V)}, v5")
    for T in range(1, 8): e(f"v_xor_b32 v{VA+T}, {T*32}, v{VA}")
    e(f"v_xor_b32 v5, v4, v3\nv_lshlrev_b32 v5, 4, v5\nv_lshl_add_u32 v5, v4, 8, v5\nv_add_u32 v{DK}, s{S_W4K}, v5")
    for i in range(1, 4): e(f"v_xor_b32 v{DK+i}, {64*i}, v{DK}")
    e(f"v_lshlrev_b32 v5, 1, v4\nv_xor_b32 v5, v5, v3\nv_lshlrev_b32 v5, 4, v5\nv_lshl_add_u32 v5, v4, 8, v5\nv_add_u32 v{DV}, s{S_W4K}, v5\nv_xor_b32 v{DV+1}, 128, v{DV}")
    e(f"s_mov_b32 s{S_PASS}, 0\ns_lshl_b32 s{S_W8K}, s{S_WAVE}, 13\ns_add_u32 s{S_W8K}, s{S_W8K}, {SPARE}\ns_lshl_b32 s{S_W1K}, s{S_WAVE}, 10")
    e(f"s_lshl_b32 s{S_OB}, s{S_QB}, 4\ns_add_u32 s{S_OB}, s{S_OB}, s{S_KV}\ns_lshl_b32 s{S_OB}, s{S_OB}, 2\ns_add_u32 s{S_OB}, s{S_OB}, s{S_WAVE}\ns_lshl_b32 s{S_OB}, s{S_OB}, 14\ns_add_u32 s{S_OB}, s{S_OB}, {hex(WS_O)}")
    e(f"v_add_u32 v5, s{S_T}, v4\nv_and_b32 v6, 7, v5\nv_lshlrev_b32 v6, 1, v6\nv_xor_b32 v6, v6, v3\nv_mul_u32_u24 v5, 0x480, v5\nv_lshl_add_u32 v{WOV}, v6, 4, v5")
    e(f"v_lshrrev_b32 v5, 3, v0\nv_and_b32 v6, 6, v5\nv_and_b32 v7, 7, v1\nv_xor_b32 v6, v6, v7\nv_mul_u32_u24 v5, 0x480, v5\nv_lshl_add_u32 v{WEV}, v6, 4, v5")
    e(f"v_lshrrev_b32 v5, 2, v1\nv_mul_u32_u24 v5, 0x2400, v5\nv_lshl_add_u32 v{GO4}, v{CP}, 4, v5")
    e(f"s_lshl_b32 s{S_T2}, s{S_NB}, 8\ns_mul_i32 s{S_WOO}, s{S_KQ}, {1024*1152}\ns_add_u32 s{S_WOO}, s{S_WOO}, s{S_T2}")
    e(f"s_mul_i32 s{S_EXO}, s{S_KV}, {256*1152}\ns_add_u32 s{S_SB}, s{S_EXO}, s{S_T2}\ns_add_u32 s{S_EXO}, s{S_EXO}, 1024")
    e(f"s_mov_b64 s[{P}:{P+1}], s[{SRD_OUT}:{SRD_OUT+1}]\ns_mov_b64 s[{P+2}:{P+3}], s[{SRD_SA}:{SRD_SA+1}]\ns_mov_b64 s[{P+4}:{P+5}], s[{SRD_SA+2}:{SRD_SA+3}]")
    srd(r, SRD_OUT, SRD_WD + 2, 2048 * 1152)
    srd(r, SRD_WD, SRD_WD, 4608 * 1152)
    srd(r, SRD_SA, P + 2, 576 * 9216)
    srd(r, SRD_SB, P + 4, 576 * 9216)
    e(f"s_mov_b32 s{S_GD}, 0")
    e(f"s_and_b32 s{S_X0}, s{S_KQ}, 1\ns_lshl_b32 s{S_X0}, s{S_X0}, 7\ns_mul_i32 s{S_XR}, s{S_ROW}, 1152\ns_lshl_b32 s{S_T}, s{S_NB}, 5\ns_add_u32 s{S_XE}, s{S_XR}, s{S_T}\ns_add_u32 s{S_XE}, s{S_XE}, 1024")
    e(f"s_add_u32 s{S_XR}, s{S_XR}, s{S_T2}\ns_add_u32 s{S_XR}, s{S_XR}, s{S_X0}\ns_bitcmp1_b32 s{S_KQ}, 0 ; s_cselect_b32 s{S_XE}, 0x7f000000, s{S_XE}")
    e(f"v_mov_b32 v{XV}, v{DX}\nv_mul_u32_u24 v5, 0x480, v3\nv_lshl_add_u32 v{XE}, v4, 3, v5")
    e(f"v_min_u32 v{WTV}, 35, v1\nv_lshlrev_b32 v{WTV}, 7, v{WTV}\nv_lshlrev_b32 v{PFV}, 3, v1")
    SHADOW[:] = as_items("\n".join(r.t))


def emit_front(em, kname):
    e = em.e
    P = S_P
    e("s_cmp_ge_u32 s2, 256\ns_cbranch_scc1 K_END")
    stamp(em, "entry")
    if OPT["cpf0"]:
        e("s_getpc_b64 s[96:97]\nv_lshlrev_b32 v7, 5, v0")
        em.vmem("global_load_dword a4, v7, s[96:97]")
    e(f"s_load_dwordx8 s[{P+2}:{P+9}], s[0:1], 0")
    e(f"s_load_dwordx2 s[{P}:{P+1}], s[0:1], {KA_WR}")
    e(f"s_load_dwordx4 s[4:7], s[0:1], {KA_DBG}")
    e("v_and_b32 v1, 63, v0\nv_lshrrev_b32 v5, 6, v0")
    e(f"s_bfe_u32 s{S_KQ}, s2, {'0x20000' if OPT['map2'] else '0x20001'}\ns_bfe_u32 s{S_NB}, s2, 0x20003")
    e(f"v_readfirstlane_b32 s{S_WAVE}, v5")
    e(f"s_lshl_b32 s{S_KV}, s{S_KQ}, 2\ns_add_u32 s{S_KV}, s{S_KV}, s{S_NB}")
    e(f"s_and_b32 s{S_QB}, s2, {4 if OPT['map2'] else 1}\ns_lshl_b32 s{S_QB}, s{S_QB}, {1 if OPT['map2'] else 3}\ns_lshr_b32 s{S_T}, s2, 5\ns_add_u32 s{S_QB}, s{S_QB}, s{S_T}")
    e(f"s_lshl_b32 s{S_T}, s{S_QB}, 7\ns_lshl_b32 s{S_T2}, s{S_KV}, 3\ns_add_u32 s3, s{S_T}, s{S_T2}")
    LR, LT, LO, LW = 8, 9, 10, 11
    e(f"v_lshrrev_b32 v{LR}, 5, v0\nv_add_u32 v{LR}, s3, v{LR}\nv_and_b32 v{LT}, 31, v0\nv_mul_u32_u24 v{LW}, 12, v{LT}")
    e(f"v_mul_u32_u24 v{LO}, 0x480, v{LR}\nv_add_u32 v{LO}, v{LO}, v{LW}")
    e(f"v_lshrrev_b32 v5, 3, v1\nv_and_b32 v6, 7, v1\nv_xor_b32 v6, v6, v5\nv_mul_u32_u24 v5, 0x480, v5\nv_lshl_add_u32 v{DX}, v6, 4, v5")
    e(f"v_add_u32 v{DX+1}, {9216-1024}, v{DX}\nv_add_u32 v{DX+2}, {18432}, v{DX}\nv_add_u32 v{DX+3}, {27648-1024}, v{DX}")
    e(f"s_lshl_b32 s{S_T2}, s{S_WAVE}, 5\ns_add_u32 s{S_ROW}, s{S_T}, s{S_T2}\ns_mul_i32 s{S_XO}, s{S_ROW}, 1152")
    e(f"s_and_b32 s{S_G3}, s{S_QB}, 7\ns_mul_i32 s{S_G3}, s{S_G3}, {OPT['ra']}\ns_mul_i32 s{S_T2}, s{S_NB}, {OPT['rb']}\ns_add_u32 s{S_G3}, s{S_G3}, s{S_T2}\ns_mul_i32 s{S_T2}, s{S_G3}, 57\ns_lshr_b32 s{S_T2}, s{S_T2}, 9\ns_mul_i32 s{S_T2}, s{S_T2}, 9\ns_sub_u32 s{S_G3}, s{S_G3}, s{S_T2}\ns_movk_i32 s{S_RX_[1]}, -1024")
    e(f"s_lshl_b32 s{S_T2}, s{S_G3}, 7\ns_add_u32 s{S_XO}, s{S_XO}, s{S_T2}")
    e(f"s_lshl_b32 s{S_W4K}, s{S_WAVE}, 12\ns_lshr_b32 s{S_T}, s{S_KQ}, 1\ns_lshl_b32 s{S_T2}, s{S_T}, 11\ns_or_b32 s{S_MX}, s{S_W4K}, s{S_T2}\ns_xor_b32 s{S_MX2}, s{S_MX}, 2048")
    e(f"s_lshl_b32 s{S_T}, s{S_T}, 4\ns_add_u32 s{S_ROW}, s{S_ROW}, s{S_T}")
    X, W, F = 12, 24, 40
    xr = [X + 4 * (i // 3) + i % 3 for i in range(9)]
    wr = [W + 4 * (i // 3) + i % 3 for i in range(9)]
    e(f"s_mov_b32 s{SRD_X+2}, {hex(2048*1152)}\ns_mov_b32 s{SRD_X+3}, 0x00020000")
    e("s_waitcnt lgkmcnt(0)")
    stamp(em, "karg", 1)
    e(f"s_mov_b32 s{SRD_X}, s{P+2}\ns_and_b32 s{SRD_X+1}, s{P+3}, 0xffff")
    for i in range(3): em.vmem(f"buffer_load_dwordx3 {vr(X+4*i,3)}, v{LO}, {R4(SRD_X)}, 0 offen offset:{i*384}", "lnx")
    srd(em, SRD_DBG, P, 1152)
    def wld():
        for i in range(3): em.vmem(f"buffer_load_dwordx3 {vr(W+4*i,3)}, v{LW}, {R4(SRD_DBG)}, 0 offen offset:{i*384}", "lnw")
    if not OPT["wl"]: wld()
    q0 = q_dma(0)
    em.items(q0[:8])
    srd(em, SRD_W, P + 8, 576 * 8192)
    e(f"v_lshrrev_b32 v5, 5, v1\nv_and_b32 v6, 31, v1\nv_lshlrev_b32 v7, 1, v5\nv_xor_b32 v6, v6, v7\nv_lshlrev_b32 v6, 4, v6\nv_lshl_add_u32 v{DW}, v5, 13, v6")
    e(f"s_lshl_b32 s{S_WQO}, s{S_KV}, 9\ns_lshl_b32 s{S_T}, s{S_WAVE}, 17\ns_add_u32 s{S_WQO}, s{S_WQO}, s{S_T}\ns_lshl_b32 s{S_MW}, s{S_WAVE}, 13\ns_lshl_b32 s{S_T}, s{S_G3}, 19\ns_add_u32 s{S_WQO}, s{S_WQO}, s{S_T}")
    for i in range(1, 8):
        x = (((2 * i) & 3) | (((i >> 2) & 1) << 2)) << 5
        if x: e(f"v_xor_b32 v{DW+i}, {x}, v{DW}\nv_add_u32 v{DW+i}, {i*16384 - (i&3)*1024}, v{DW+i}")
        else: e(f"v_add_u32 v{DW+i}, {i*16384 - (i&3)*1024}, v{DW}")
    em.items(q0[8:8 + OPT["n0"]])
    if OPT["cpf"] and not OPT["wl"]: code_prefetch(em, kname, "K_CODE_END", "a[0:3]", "a", False)
    stamp(em, "start", 0 if not OPT["fine"] & 64 else 128)
    e(f"s_load_dwordx2 s[{SRD_OUT}:{SRD_OUT+1}], s[0:1], {KA_WO}")
    e(f"s_load_dwordx4 s[{SRD_SA}:{SRD_SA+3}], s[0:1], {KA_WG}")
    e(f"s_load_dwordx4 s[{SRD_WD}:{SRD_WD+3}], s[0:1], {KA_WD}")
    e(f"s_mov_b32 s{S_SPIN}, 0\nv_and_b32 v3, 15, v1\nv_lshrrev_b32 v4, 4, v1\nv_lshlrev_b32 v{L16}, 4, v1\nv_mov_b32 v{T1V}, 1")
    e(f"s_lshl_b32 s{S_T}, s{S_KV}, 19")
    srd(em, SRD_K, P + 4, 524288, add=f"s{S_T}")
    srd(em, SRD_V, P + 6, 524288, add=f"s{S_T}")
    srd(em, SRD_WS, 6, WS_SIZE)
    RP, CP = 248, 249
    e(f"v_bfe_u32 v{RP}, v1, 2, 2\nv_and_b32 v{CP}, 3, v1")
    e(f"v_and_b32 v5, 1, v4\nv_lshl_add_u32 v5, v5, 2, v{RP}\ns_lshl_b32 s{S_T}, s{S_WAVE}, 1\nv_xor_b32 v5, s{S_T}, v5\nv_lshlrev_b32 v5, 5, v5")
    e(f"v_lshl_add_u32 v6, v4, 3, v{RP}\nv_lshl_add_u32 v5, v6, 9, v5\nv_lshl_add_u32 v{WQA}, v{CP}, 3, v5")
    for t in range(1, 8): e(f"v_xor_b32 v{WQA+t}, {t*32}, v{WQA}")
    e(f"v_and_b32 v5, 7, v3\nv_xor_b32 v5, v5, v4\nv_lshlrev_b32 v5, 4, v5\nv_lshl_add_u32 v5, v3, 7, v5\nv_add_u32 v5, s{S_W4K}, v5\nv_add_u32 v{WQA+8}, 0x8000, v5\nv_xor_b32 v{WQA+9}, 64, v{WQA+8}")
    for k in (1, 2):
        for t in range(10): e(f"v_add_u32 v{WQA+10*k+t}, {hex(QSLOT[k])}, v{WQA+t}")
    e(f"v_lshrrev_b32 v5, 1, v4\nv_and_b32 v6, 7, v3\nv_xor_b32 v5, v5, v6\nv_lshlrev_b32 v5, 4, v5\nv_lshl_add_u32 v5, v3, 7, v5\nv_and_b32 v6, 1, v4\nv_lshl_add_u32 v{XA}, v6, 3, v5")
    e(f"s_lshl_b32 s{S_RD}, s{S_NB}, 1\ns_and_b32 s{S_T}, s{S_KQ}, 1\ns_add_u32 s{S_RD}, s{S_RD}, s{S_T}\ns_sub_u32 s{S_RD}, s{S_RD}, s{S_G3}\ns_cselect_b32 s{S_T}, 9, 0\ns_add_u32 s{S_RD}, s{S_RD}, s{S_T}\ns_add_u32 s{S_T}, s{S_W4K}, 0x8000\nv_add_u32 v{XQ}, s{S_T}, v{XA}")
    for k in range(1, 4): e(f"v_xor_b32 v{XQ+k}, {32*k}, v{XQ}")
    e(f"s_lshl_b32 s{S_T}, s{S_NB}, 5\nv_xor_b32 v{XQ+4}, s{S_T}, v{XQ}\ns_lshr_b32 s{S_PM}, 0x100, s{S_G3}\ns_bitset1_b32 s{S_PM}, s{S_RD}")
    e(f"v_bfe_u32 v5, v1, 1, 1\nv_bfe_u32 v6, v1, 5, 1\nv_cmp_eq_u32 vcc, v5, v6\nv_mov_b32 v7, 0x3f803f80\nv_and_b32 v5, 1, v1\nv_cndmask_b32 v7, 0, v7, vcc")
    for i in range(4): e(f"v_accvgpr_write_b32 a{AONE+i}, v7")
    e(f"v_mul_u32_u24 v5, 0xaaaa, v5\nv_add_u32 v{SIDX}, 0x4444, v5")
    for i in range(8): e(f"v_accvgpr_write_b32 a{CS_+i}, 0")
    FX, FE = S_KOFF, S_VOFF
    e(f"s_lshl_b32 s{S_T}, s{S_QB}, 2\ns_add_u32 s{S_T2}, s{S_T}, s{S_KQ}\ns_lshl_b32 s{S_T2}, s{S_T2}, 2\ns_add_u32 s{S_T2}, s{S_T2}, s{S_WAVE}\ns_lshl_b32 s{S_OFL}, s{S_T2}, 7\ns_add_u32 s{S_OFL}, s{S_OFL}, {hex(WS_OFL)}")
    e(f"s_add_u32 s{S_T2}, s{S_T}, s{S_NB}\ns_lshl_b32 s{S_T2}, s{S_T2}, 2\ns_add_u32 s{S_T2}, s{S_T2}, s{S_WAVE}\ns_lshl_b32 s{S_T2}, s{S_T2}, 7\ns_add_u32 s{S_T2}, s{S_T2}, s{S_KQ}\ns_lshl_b32 s{S_T2}, s{S_T2}, 2\ns_add_u32 s{FX}, s{S_T2}, {hex(WS_XFL)}")
    e(f"s_add_u32 s{S_T}, s{S_T}, s{S_WAVE}\ns_lshl_b32 s{S_T}, s{S_T}, 5\ns_add_u32 s{S_T}, s{S_T}, s{S_KV}\ns_lshl_b32 s{S_T}, s{S_T}, 2\ns_add_u32 s{FE}, s{S_T}, {hex(WS_EFL)}")
    e(f"s_lshl_b32 s{S_T}, s{S_NB}, 3\ns_add_u32 s{S_T}, s{S_T}, s{S_OFL}\ns_add_u32 s{S_T2}, s{S_T}, 4\nv_lshl_add_u32 v60, v1, 7, s{FX}\nv_mov_b32 v61, 0\nv_writelane_b32 v60, s{S_T}, 4\nv_writelane_b32 v60, s{S_T2}, 5\nv_writelane_b32 v60, s{FE}, 6")
    e(f"s_lshl_b32 s{S_T}, s{S_QB}, 2\ns_add_u32 s{S_T}, s{S_T}, s{S_KQ}\ns_lshl_b32 s{S_T}, s{S_T}, 3\ns_add_u32 s{S_T}, s{S_T}, {hex(WS_QT)}\ns_or_b32 s{S_T2}, s{S_NB}, s{S_WAVE}\ns_cselect_b32 s{S_T}, 0x7f000000, s{S_T}\nv_writelane_b32 v60, s{S_T}, 7\ns_add_u32 s{S_T}, s{S_T}, 4\nv_writelane_b32 v60, s{S_T}, 8")
    e(f"s_lshl_b32 s{S_T2}, s{S_WAVE}, 8\ns_or_b32 s{S_T2}, s{S_T2}, s2\ns_lshl_b32 s{S_T}, s2, 7\ns_add_u32 s{S_T}, s{S_T}, {hex(WS_YC)}\ns_cmp_lt_u32 s{S_T2}, 32\ns_cselect_b32 s{S_T}, s{S_T}, 0x7f000000\nv_writelane_b32 v60, s{S_T}, 9")
    shadow_setup(RP, CP)
    if OPT["wl"]:
        wld()
        code_prefetch(em, kname, "K_CODE_END", "a[0:3]", "a", False)
    if OPT["early"]:
        e("s_waitcnt lgkmcnt(0)")
        em.items(SHADOW); SHADOW.clear()
        for i in range(16, 128): e(f"v_accvgpr_write_b32 a{AO+i}, 0")
    C576, EPS, MSK = P + 6, P + 7, P + 8
    e(f"s_mov_b32 s{C576}, 0x3ae38e39\ns_mov_b32 s{EPS}, 0x3727c5ac\ns_mov_b32 s{MSK}, 0xffff0000")
    stamp(em, "setup", 1)
    em.items(q0[8 + OPT["n0"]:])
    if OPT["tlb"]:
        e(f"v_and_b32 v5, 3, v1\nv_lshlrev_b32 v5, 21, v5")
        em.vmem(f"buffer_load_dword a7, v61, {R4(SRD_K)}, 0 offen")
        em.vmem(f"buffer_load_dword a8, v61, {R4(SRD_V)}, 0 offen")
        em.vmem(f"buffer_load_dword a9, v5, {R4(SRD_W)}, 0 offen")
    e("s_mov_b64 exec, 0x3ff")
    em.vmem(f"buffer_store_dword v61, v60, {R4(SRD_WS)}, 0 offen {SC}")
    e("s_mov_b64 exec, -1")
    stamp(em, "dma1", 1)
    em.wait_vm("lnx" if OPT["wl"] else "lnw")
    stamp(em, "lnx", 1)
    spr = q_dma(1); cnt = [0]
    def e(t):
        for l in t.split("\n"):
            em.e(l)
            if l.startswith("v_"):
                cnt[0] += 1
                if cnt[0] % OPT["spr"] == 0 and spr:
                    while spr[0].kind == "s": em.e(spr.pop(0).text)
                if cnt[0] % OPT["spr"] == 1 and spr and spr[0].kind == "vm" and cnt[0] > 1:
                    em.item(spr.pop(0))
                    if spr and all(x.kind == "s" for x in spr):
                        while spr: em.e(spr.pop(0).text)
    class W_:
        pass
    ew = W_(); ew.e = e
    for i in range(9): e(f"v_lshlrev_b32 v{F+2*i}, 16, v{xr[i]}\nv_and_b32 v{F+2*i+1}, s{MSK}, v{xr[i]}")
    A0, A1, A2, A3, A4, A5, A6, A7 = 64, 65, 66, 67, 68, 69, 70, 71
    pr = lambda a: vr(a, 2)
    e(f"v_pk_add_f32 {pr(A0)}, {pr(F)}, {pr(F+2)}\nv_pk_add_f32 {pr(A2)}, {pr(F+4)}, {pr(F+6)}")
    for i in range(4, 9): e(f"v_pk_add_f32 {pr(A0+2*(i&1))}, {pr(A0+2*(i&1))}, {pr(F+2*i)}")
    e(f"v_pk_add_f32 {pr(A0)}, {pr(A0)}, {pr(A2)}\nv_add_f32 v{A0}, v{A0}, v{A1}")
    reduce32(ew, A0, A1)
    e(f"v_mul_f32 v{A0}, s{C576}, v{A0}")
    D = 72
    for i in range(9): e(f"v_pk_add_f32 {pr(D+2*i)}, {pr(F+2*i)}, {pr(A0)} op_sel_hi:[1,0] neg_lo:[0,1] neg_hi:[0,1]")
    e(f"v_pk_mul_f32 {pr(A2)}, {pr(D)}, {pr(D)}\nv_pk_mul_f32 {pr(A4)}, {pr(D+2)}, {pr(D+2)}")
    for i in range(2, 9): e(f"v_pk_fma_f32 {pr(A2+2*(i&1))}, {pr(D+2*i)}, {pr(D+2*i)}, {pr(A2+2*(i&1))}")
    e(f"v_pk_add_f32 {pr(A2)}, {pr(A2)}, {pr(A4)}\nv_add_f32 v{A5}, v{A2}, v{A3}")
    bf16r(ew, A0, A0)
    sub = []
    for i in range(9):
        sub += [f"v_pk_add_f32 {pr(F+2*i)}, {pr(F+2*i)}, {pr(A0)} op_sel_hi:[1,0] neg_lo:[0,1] neg_hi:[0,1]", f"v_cvt_pk_bf16_f32 v{xr[i]}, v{F+2*i}, v{F+2*i+1}"]
    for i in range(9):
        sub += [f"v_lshlrev_b32 v{F+2*i}, 16, v{xr[i]}", f"v_and_b32 v{F+2*i+1}, s{MSK}, v{xr[i]}"]
    rec = Rec(); reduce32(rec, A5, A4)
    rec.e(f"v_mul_f32 v{A5}, s{C576}, v{A5}"); bf16r(rec, A5, A5); rec.e(f"v_add_f32 v{A5}, s{EPS}, v{A5}"); bf16r(rec, A5, A5)
    rec.e(f"v_sqrt_f32 v{A5}, v{A5}\ns_nop 1"); bf16r(rec, A1, A5); rec.e(f"v_rcp_f32 v{A2}, v{A1}\ns_nop 1")
    for l in "\n".join(rec.t).split("\n"):
        if l == "s_nop 1": e(sub.pop(0)); e(sub.pop(0))
        else: e(l)
    for l in sub: e(l)
    e(f"v_lshlrev_b32 v5, 3, v{LR}\ns_mov_b32 s{S_T}, {hex(WS_STAT)}\ns_mov_b32 exec_lo, 1\ns_mov_b32 exec_hi, 1")
    em.vmem(f"buffer_store_dwordx2 v[{A0}:{A1}], v5, {R4(SRD_WS)}, s{S_T} offen {SC}")
    e("s_mov_b64 exec, -1")
    e(f"v_mov_b32 v{A6}, 0\ns_waitcnt lgkmcnt(0)")
    if not OPT["qlate"]: q_first(em)
    for i in range(9):
        a = F + 2 * i; q = D + 2 * i
        e(f"v_pk_mul_f32 {pr(q)}, {pr(a)}, {pr(A2)} op_sel_hi:[1,0]")
        e(f"v_pk_fma_f32 {pr(a)}, {pr(q)}, {pr(A0)}, {pr(a)} op_sel:[0,1,0] op_sel_hi:[1,1,1] neg_lo:[1,0,0] neg_hi:[1,0,0]")
        e(f"v_pk_fma_f32 {pr(q)}, {pr(a)}, {pr(A2)}, {pr(q)} op_sel_hi:[1,0,1]")
        e(f"v_cvt_pk_bf16_f32 v{xr[i]}, v{q}, v{q+1}")
        if i % 3 == 2: em.vmem(f"buffer_store_dwordx3 {vr(X+4*(i//3),3)}, v{LO}, {R4(SRD_WS)}, 0 offen offset:{(i//3)*384} {SC}")
    em.wait_vm("lnw")
    for i in range(9): e(f"v_dot2_f32_bf16 v{A6}, v{xr[i]}, v{wr[i]}, v{A6}")
    e(f"v_sub_u32 v{A4}, 2047, v{LR}\nv_lshlrev_b32 v5, 2, v{LR}")
    reduce32(ew, A6, A7)
    e(f"v_cvt_pk_bf16_f32 v{A6}, v{A6}, v{A6}\nv_ashrrev_i32 v{A7}, 31, v{A6}\nv_or_b32 v{A7}, 0x80000000, v{A7}\nv_xor_b32 v{A6}, v{A6}, v{A7}")
    e(f"v_and_or_b32 v{LNK}, v{A6}, s{MSK}, v{A4}")
    em.items(spr)
    e(f"s_mov_b32 s{S_T}, {hex(WS_KEY)}\ns_mov_b32 exec_lo, 1\ns_mov_b32 exec_hi, 1")
    em.vmem(f"buffer_store_dword v{LNK}, v5, {R4(SRD_WS)}, s{S_T} offen {SC}", "lnst")
    e("s_mov_b64 exec, -1")
    srd(em, SRD_DBG, 4, 256)
    if OPT["qlate"]: q_first(em)
    if OPT["touchq"]:
        e(f"s_lshr_b32 s{S_T}, s2, 3\ns_lshl_b32 s{S_T}, s{S_T}, 2\ns_add_u32 s{S_T}, s{S_T}, s{S_WAVE}")
        e(f"v_lshrrev_b32 v5, 3, v1\nv_mul_u32_u24 v5, 0x480, v5\nv_and_b32 v6, 7, v1\nv_lshl_add_u32 v5, v6, 7, v5")
        e(f"s_and_b32 s{S_T2}, s2, 1\ns_lshl_b32 s{S_T2}, s{S_T2}, 7\ns_add_u32 s{S_T2}, s{S_T2}, s{S_T}\ns_mul_i32 s{S_T2}, s{S_T2}, {8*1152}")
        em.vmem(f"buffer_load_dword a5, v5, {R4(SRD_X)}, s{S_T2} offen offset:128")
        e(f"v_lshlrev_b32 v5, 13, v4\nv_lshl_add_u32 v5, v3, 7, v5")
        e(f"s_lshl_b32 s{S_T}, s{S_T}, 15\ns_lshl_b32 s{S_T2}, s{S_KQ}, 11\ns_add_u32 s{S_T}, s{S_T}, s{S_T2}\ns_add_u32 s{S_T}, s{S_T}, {128*8192}")
        em.vmem(f"buffer_load_dword a6, v5, {R4(SRD_W)}, s{S_T} offen")
    stamp(em, "ln", 0 if not OPT["fine"] & 64 else 128)

def qacc(tau, lam): return QACC + (((tau >> 3) * 2 + lam) * 8 + (tau & 7)) * 4
CSA = (5, 6, 7, T0V)
def csreg(hh, t): return (184 + 4 * t) if hh == 0 else (24 + 4 * t if t < 4 else 136 + 4 * (t - 4) if t < 7 else 244)
def cs_ld(hh, t): return f"ds_read_b128 {vr(csreg(hh,t),4)}, v{CSA[t>>1]} offset:{hh*512 + (t&1)*64}"
def aset(tau): return QA_ + tau * 4
def bset(ks, lam): return QB_ + ((ks & 1) * 2 + lam) * 4
def a_ld(ks, tau):
    c, s = ks >> 1, ks & 1
    return [f"ds_read_b64_tr_b16 {ar(aset(tau)+2*j,2)}, v{WQA+10*(c%3)+(tau&7)} offset:{s*16384 + j*2048 + (tau>>3)*256}" for j in range(2)]
def b_ld(ks, lam):
    c, s = ks >> 1, ks & 1
    return f"ds_read_b128 {ar(bset(ks,lam),4)}, v{WQA+10*(c%3)+8+s} offset:{lam*2048}"
order = [0, 1, 8, 9] + [t for t in range(16) if t not in (0, 1, 8, 9)]
def q_first(em):
    em.wait_vm(("q", 0))
    em.e("s_barrier")
    for lam in range(2): em.dsr(b_ld(0, lam))
    for tau in order:
        for t in a_ld(0, tau): em.dsr(t)
def emit_qproj(em):
    e = em.e
    kin, vin = kv_init()
    kin[-2].tag = "kin"; vin[-2].tag = "vin"
    zero = [It("v", f"v_accvgpr_write_b32 a{AO+i}, 0") for i in range(16 if OPT["early"] else 128)]
    side = list(SHADOW)
    pend = q_dma(2); nextg = 2; PH = [0]
    BG = 6
    PUB = OPT["pub"]
    CK = OPT["ck"]
    def mflist(ks):
        mf = []; fr = {}
        for tau in order:
            for lam in range(2):
                acc = qacc(tau, lam)
                mf.append(f"{MF} {vr(acc,4)}, {ar(aset(tau),4)}, {ar(bset(ks,lam),4)}, {'0' if ks == 0 else vr(acc,4)}")
            if tau in (1, 9):
                mf.append(f"{SMF} {ar(CS_+4*(tau>>3),4)}, {ar(AONE,4)}, {ar(aset(tau-1),8)}, v{SIDX}")
                fr[tau - 1] = len(mf) - 1
            if tau not in (0, 8): fr[tau] = len(mf) - 1
        return mf, fr
    c_ = f2u(128 ** -0.5 * 1.4426950408889634)
    for ks in range(18):
        c, s = ks >> 1, ks & 1
        mf, fr = mflist(ks)
        n = len(mf)
        bar = (s == 1)
        bg = BG if c < 8 else 25
        lo = bg + 1 if bar else 0
        ds = []
        if ks + 1 < 18:
            ds += [It("ds", b_ld(ks + 1, lam), at=lo) for lam in range(2)]
            for tau in order: ds += [It("ds", t, at=max(lo, fr[tau])) for t in a_ld(ks + 1, tau)]
        GAPV = OPT["qgap"]
        cur = []; k = 0; g = nextg
        def takeupto(limit):
            nonlocal g, k
            while pend and g < limit:
                grp = []
                while pend and pend[0].kind != "vm": grp.append(pend.pop(0))
                for j, x in enumerate(grp): x.at = max(first_ok, g - len(grp) + j)
                cur.extend(grp)
                if pend:
                    x = pend.pop(0); x.at = max(g, first_ok + len(grp)); cur.append(x); k += 1; PH[0] += GAPV; g = x.at + PH[0] // 10; PH[0] %= 10
        first_ok = 0
        if bar and c < 8:
            takeupto(bg - 1)
            first_ok = lo; g = max(g, lo + 1)
            new = q_dma(c + 3) if c + 3 < 9 else kin if c == 6 else []
            if ks == 1 and OPT["tkv"] and not OPT["tlb"]:
                new = new + [It("v", f"v_and_b32 v{T0V}, 1, v1"), It("v", f"v_lshlrev_b32 v{T0V}, 21, v{T0V}"), It("s", f"s_add_u32 s{S_T3}, s{S_WQO}, 0"),
                             It("vm", f"buffer_load_dword v252, v{T0V}, {R4(SRD_W)}, s{S_T3} offen")]
            if ks == 7 and OPT["tkv"]:
                new = new + [It("s", f"s_lshr_b32 s{S_T3}, s2, 5"), It("s", f"s_lshl_b32 s{S_T3}, s{S_T3}, 13"), It("v", f"v_lshlrev_b32 v{T0V}, 5, v0"),
                             It("vm", f"buffer_load_dword v252, v{T0V}, {R4(SRD_K)}, s{S_T3} offen"), It("vm", f"buffer_load_dword v253, v{T0V}, {R4(SRD_V)}, s{S_T3} offen")]
            if ks == CK: new = new + stat_items()
            if ks == 15: new = vin
            pend.extend(new)
        if ks < 17: takeupto(n - 1)
        nextg = max(0, g - n)
        room = 2 * n - len(ds) - 2 * k - (4 if bar else 2)
        st = {"dma": cur, "ds": ds}
        TC = 136
        if ks == 14:
            import moe
            assert not side
            side = as_items(moe.side_text())
        if ks == 16:
            assert not side
            side = as_items(f"s_lshl_b32 s{S_T}, s{S_WAVE}, 7\ns_add_u32 s{S_T}, s{S_T}, {SCR}\nv_lshl_add_u32 v{TC+8}, v3, 2, s{S_T}\nv_lshl_add_u32 v5, v4, 4, s{S_T}")
            side += [It("v", f"v_xor_b32 v{CSA[k]}, {k*128}, v5") for k in range(1, 4)]
            side += as_items(f"v_readlane_b32 s{S_K0}, v{LNK}, 0\nv_readlane_b32 s{S_K1}, v{LNK}, 32")
        if ks == 17:
            assert not side and not zero and not pend, (len(side), len(zero), len(pend))
            sd = [It("s", "s_nop 0", after_vm="st2"), It("v", f"v_accvgpr_write_b32 a{AX+10}, v{STV}"), It("v", f"v_accvgpr_write_b32 a{AX+11}, v{STV+1}"), It("x", f"v_rcp_f32 v{STV+1}, v{STV+1}"), It("x", f"v_rcp_f32 v{STV+3}, v{STV+3}")]
            sd += as_items(f"v_sub_f32 v{STV}, 0, v{STV}\nv_sub_f32 v{STV+2}, 0, v{STV+2}\nv_mul_f32 v{STV+1}, {hex(c_)}, v{STV+1}\nv_mul_f32 v{STV+3}, {hex(c_)}, v{STV+3}")
            cs = []
            cs += [It("v", f"v_accvgpr_read_b32 v{TC+i}, a{CS_+i}", at=(10 if i < 4 else 15)) for i in range(8)]
            cs += [It("v", f"v_add_f32 v{TC+2*i}, v{TC+2*i}, v{TC+2*i+1}") for i in range(4)]
            csw = [It("ds", f"ds_write_b32 v{TC+8}, v{TC+2*i} offset:{(i>>1)*512 + (i&1)*64}", at=19) for i in range(4)]
            post = [It("ds", f"ds_read_b128 {ar(Kf(i>>2,i&3),4)}, v{KA+(i&3)} offset:{kaddr(0) + (i>>2)*4096}", at=fr[i]) for i in range(8)] + [It("ds", cs_ld(0, k), at=lo) for k in range(8)]
            for x in sd: x.at = 21
            zl = [It("v", f"v_accvgpr_write_b32 a{AL+i}, 0", at=lo) for i in range(8)]
            st = {"cs": cs, "csw": csw, "side": sd, "ds": post, "zl": zl}
            packed = pack(n, st, ["cs", "csw", "ds", "side", "zl"], reserve={bg: 8})
            g_add = max(g for g in range(n) for x in packed[g] if x in cs); g_w = min(g for g in range(n) for x in packed[g] if x in csw)
            assert g_add < g_w and max(g for g in range(n) for x in packed[g] if x in csw) < bg, (g_add, g_w)
        else:
            sd = []
            while side and room > 0:
                x = side.pop(0); sd.append(x)
                if x.kind != "s": room -= 1
                if len(sd) >= 30: break
            st["side"] = sd
            if ks >= 2 * PUB + 2 and room > 0:
                st["zero"] = zero[:room]; zero = zero[room:]
            packed = pack(n, st, ["dma", "ds", "side", "zero"], reserve=({bg: 8} if bar else None))
        nxt = mflist(ks + 1)[0][0] if ks + 1 < 18 else None
        if s == 0:
            e(f"s_bitcmp1_b32 s{S_PM}, {c}\ns_cbranch_scc1 K_XP{c}"); em.label(f"K_XP{c}D")
        if not bar:
            emit_packed(em, mf, packed, nxt)
            continue
        emit_packed(em, mf[:bg + 1], packed[:bg] + [[], []], None)
        if ks == CK: cnt_check(em)
        assert not any(x.tag == ("q", c + 1) and not x.done for x in pend + cur), ks
        need = em.tags[("q", c + 1)] if c < 7 else em.tags["kin"]
        if c == PUB: need = max(need, em.tags["lnst"])
        em.ds_all(f"vmcnt({em.vm_n(need)})" if c < 8 else "")
        e("s_barrier")
        stamp(em, f"b{c}", 1)
        if c == PUB or ks == CK - 2:
            lab = f"K_W0_{ks}"
            e(f"s_cmp_lg_u32 s{S_WAVE}, 0\ns_cbranch_scc1 {lab}")
            if c == PUB:
                e(f"s_lshl_b32 s{S_T3}, s{S_QB}, 4\ns_mov_b64 exec, 1")
                e(f"buffer_atomic_add v{T1V}, v{L16}, {R4(SRD_DBG)}, s{S_T3} offen sc1\ns_mov_b64 exec, -1")
            else:
                e(f"v_lshlrev_b32 v{T1V}, 4, v3\nbuffer_load_dword v{T0V}, v{T1V}, {R4(SRD_DBG)}, 0 offen {SC}")
                em.tags["cnt"] = em.vm - 1
            em.label(lab)
        em.items(packed[bg])
        emit_packed(em, mf[bg + 1:], packed[bg + 1:], nxt)
    assert not pend

def cnt_check(em):
    e = em.e
    e(f"s_cmp_lg_u32 s{S_WAVE}, 0\ns_cbranch_scc1 K_CNTOK")
    em.wait_vm("cnt")
    e(f"v_cmp_gt_u32 vcc, 16, v{T0V}\ns_cbranch_vccz K_CNTOK")
    em.label("K_CNTSPIN")
    spin(em, 2)
    e(f"buffer_load_dword v{T0V}, v{T1V}, {R4(SRD_DBG)}, 0 offen {SC}\ns_waitcnt vmcnt(0)\nv_cmp_gt_u32 vcc, 16, v{T0V}\ns_cbranch_vccnz K_CNTSPIN")
    em.label("K_CNTOK")
def stat_items():
    return [It("v", f"v_lshlrev_b32 v{T1V}, 3, v3"), It("s", f"s_lshl_b32 s{S_T3}, s{S_ROW}, 3"), It("s", f"s_add_u32 s{S_T3}, s{S_T3}, {hex(WS_STAT)}"),
            It("vm", f"buffer_load_dwordx2 {vr(STV,2)}, v{T1V}, {R4(SRD_WS)}, s{S_T3} offen {SC}"), It("s", f"s_xor_b32 s{S_T3}, s{S_T3}, 128"),
            It("vm", f"buffer_load_dwordx2 {vr(STV+2,2)}, v{T1V}, {R4(SRD_WS)}, s{S_T3} offen {SC}", tag="st2")]
def key_items():
    r = []
    for i in range(8):
        if (i & 3) == 0: r.append(It("s", f"s_mov_b32 s{S_T3}, {hex(WS_KEY + (i>>2)*4096)}"))
        r.append(It("vm", f"buffer_load_dwordx4 {vr(KEYS+4*i,4)}, v{L16}, {R4(SRD_WS)}, s{S_T3} offen offset:{(i&3)*1024} {SC}", tag="keys"))
    return r
def emit_rank(em):
    e = em.e
    e(f"s_cmp_lg_u32 s{S_PASS}, 0\ns_cbranch_scc1 K_RANKED")
    em.wait_vm("keys")
    e(f"v_max3_u32 v{T1V}, v{KEYS}, v{KEYS+1}, v{KEYS+2}\ns_max_u32 s{S_T3}, s{S_K0}, s{S_K1}")
    for i in range(3, 31, 2): e(f"v_max3_u32 v{T1V}, v{T1V}, v{KEYS+i}, v{KEYS+i+1}")
    e(f"v_max_u32 v{T1V}, v{T1V}, v{KEYS+31}")
    e(f"v_cmp_lt_u32 vcc, s{S_T3}, v{T1V}\ns_bcnt1_i32_b64 s{S_T3}, vcc\ns_cmp_lt_u32 s{S_T3}, 8\ns_cbranch_scc1 K_RANK")
    em.label("K_RANKED")

def emit_xpick(em):
    for c in range(9):
        em.label(f"K_XP{c}")
        sl = QSLOT[c % 3]; o = 8 if sl >= 65536 else 0
        if o:
            for k in range(5): em.e(f"v_add_u32 v{XQ+8+k}, 0x10000, v{XQ+k}")
        em.e(f"s_cmp_eq_u32 s{S_RD}, {c}\ns_cbranch_scc1 K_XM{c}\nds_read_b64 {ar(AX+8,2)}, v{XQ+4+o} offset:{sl & 0xffff}\ns_branch K_XP{c}D")
        em.label(f"K_XM{c}")
        for k in range(4): em.e(f"ds_read_b64 {ar(AX+2*k,2)}, v{XQ+k+o} offset:{sl & 0xffff}")
        em.e(f"s_branch K_XP{c}D")

def emit_rank_slow(em):
    e = em.e
    R0, R1, R2 = S_T, S_T2, S_P + 8
    C = 246
    em.label("K_RANK")
    e(f"s_mov_b32 s{R0}, 2")
    em.label("K_RANK1")
    e(f"v_cmp_lt_u32 vcc, s{S_K0}, v{T1V}\ns_bcnt1_i32_b64 s{S_T3}, vcc\ns_cmp_lt_u32 s{S_T3}, 8\ns_cbranch_scc0 K_RANK2")
    e(f"v_mov_b32 v{C}, 0")
    for i in range(32): e(f"v_cmp_lt_u32 vcc, s{S_K0}, v{KEYS+i}\nv_addc_co_u32 v{C}, vcc, 0, v{C}, vcc")
    e(f"s_mov_b32 s{S_T3}, 0")
    for k in range(8): e(f"v_cmp_lt_u32 vcc, {k}, v{C}\ns_bcnt1_i32_b64 s{R1}, vcc\ns_add_u32 s{S_T3}, s{S_T3}, s{R1}")
    e(f"s_cmp_lt_u32 s{S_T3}, 8\ns_cbranch_scc0 K_RANK2")
    e(f"s_and_b32 s{R1}, s{S_K0}, 0xffff\ns_sub_u32 s{R1}, 2048, s{R1}")
    e(f"s_ashr_i32 s{R2}, s{S_K0}, 31\ns_not_b32 s{R2}, s{R2}\ns_or_b32 s{R2}, s{R2}, 0x80000000\ns_xor_b32 s{R2}, s{R2}, s{S_K0}\ns_and_b32 s{R2}, s{R2}, 0xffff0000")
    e(f"v_mov_b32 v{C+1}, s{R2}\nv_mul_f32 v{C+1}, 0xbfb8aa3b, v{C+1}\nv_exp_f32 v{C+1}, v{C+1}\ns_nop 0\nv_add_f32 v{C+1}, 1.0, v{C+1}\nv_rcp_f32 v{C+1}, v{C+1}\ns_nop 0")
    e(f"v_cvt_pk_bf16_f32 v{C+1}, v{C+1}, v{C+1}\nv_lshlrev_b32 v{C+1}, 16, v{C+1}\nv_or_b32 v{C+1}, 1, v{C+1}\nv_mov_b32 v{C}, s{R1}\ns_lshl_b32 s{S_T3}, s{S_T3}, 3\ns_add_u32 s{S_T3}, s{S_T3}, {hex(WS_QT)}\ns_mov_b64 exec, 1")
    e(f"buffer_store_dword v{C}, v{L16}, {R4(SRD_WS)}, s{S_T3} offen offset:4 {SC}\nbuffer_store_dword v{C+1}, v{L16}, {R4(SRD_WS)}, s{S_T3} offen offset:68 {SC}\ns_mov_b64 exec, -1")
    em.label("K_RANK2")
    e(f"s_mov_b32 s{S_K0}, s{S_K1}\ns_sub_u32 s{R0}, s{R0}, 1\ns_cmp_lg_u32 s{R0}, 0\ns_cbranch_scc1 K_RANK1\ns_branch K_RANKED")

def emit_qfin(em):
    from attn import qk, kld
    e = em.e
    for qs in range(4):
        hh, lam = qs >> 1, qs & 1
        st = vr(STV + 2 * lam, 2)
        mf = [qk(0, kt, s, qs - 1, c0="0") for kt in range(2) for s in range(4)] if qs else []
        em.need([r for t in range(8) for r in regs_of(vr(csreg(hh, t), 4))], loose=15)
        for t in range(8):
            cb = csreg(hh, t); acc = qacc(hh * 8 + t, lam)
            for k in range(2): e(f"v_pk_fma_f32 {vr(acc+2*k,2)}, {vr(cb+2*k,2)}, {st}, {vr(acc+2*k,2)} op_sel:[0,0,0] op_sel_hi:[1,0,1]")
            for k in range(2): e(f"v_pk_mul_f32 {vr(acc+2*k,2)}, {vr(acc+2*k,2)}, {st} op_sel:[0,1] op_sel_hi:[1,1]")
        va = []
        for t in range(8):
            acc = qacc(hh * 8 + t, lam); q = Qf(qs, t >> 1) + 2 * (t & 1)
            va += [f"v_cvt_pk_bf16_f32 v{q}, v{acc}, v{acc+1}", f"v_cvt_pk_bf16_f32 v{q+1}, v{acc+2}, v{acc+3}"]
        k = 0
        while mf:
            em.mfma(mf.pop(0))
            if qs == 1: em.dsr(cs_ld(1, k)); k += 1
            else: e(va.pop(0))
            e(va.pop(0))
        for x in va: e(x)
        for s in range(4):
            q = Qf(qs, s)
            e(f"v_permlane16_swap_b32 v{q}, v{q+2}\nv_permlane16_swap_b32 v{q+1}, v{q+3}")
```

```python
from defs import *
IDXV = T0V
YTS = 18432 + 128
S_T0 = 94
def XF_(k): return ar(212 + 4 * k, 4)
WDX = 232
GA = 104
def RING(i): return ("a", 192 + 4 * i) if i < 4 else ("v", 120 + 4 * (i - 4))
def rr(k, r, n): return f"{k}[{r}:{r+n-1}]"
HF = 244
TAW, TB, TC = 248, 249, 250
S_E0, S_E1, S_E2 = 90, 91, 92
OTV = 0
S_MK = 88

def side_items():
    return [It("vm", f"buffer_load_dwordx2 v[252:253], v{PFV}, {R4(SRD_FO)}, s{S_PF} offen sc1"), It("s", f"s_add_u32 s{S_PF}, s{S_PF}, s{S_PFS}"),
            It("vm", f"buffer_load_dword v{T1V}, v{WTV}, {R4(SRD_DBG)}, s{S_WT} offen{NT(16)}"), It("s", f"s_add_u32 s{S_WT}, s{S_WT}, {128*4608}"),
            It("vm", f"global_load_dword v{T1V}, v{CPV}, s[{S_PC}:{S_PC+1}]"),
            It("vm", f"buffer_load_dword v{T1V}, v{OTV}, {R4(SRD_X)}, s{S_PFM} offen{NT(64)}"), It("s", f"s_add_u32 s{S_PFM}, s{S_PFM}, 4096")]
L_FLG = 5 * U - 64
def side_text():
    A, B = S_T, S_T2
    return f"""s_add_u32 s{SRD_FO}, s6, {hex(WS_QT)}
s_and_b32 s{SRD_FO+1}, s{SRD_FO+1}, 0xffff
s_mov_b32 s{SRD_FO+2}, 512
s_mov_b32 s{SRD_FO+3}, 0x00020000
s_mov_b32 s{SRD_W}, s{S_P}
s_and_b32 s{SRD_W+1}, s{S_P+1}, 0xffff
s_mov_b32 s{SRD_W+2}, {4096*1152}
s_mul_i32 s{B}, s{S_KQ}, {1024*1152}
s_add_u32 s{SRD_DBG}, s{S_P}, s{B}
s_and_b32 s{SRD_DBG+1}, s{SRD_DBG+1}, 0xffff
s_mov_b32 s{SRD_DBG+2}, {1024*1152}
s_mov_b32 s{S_PF}, {hex((-4 * 0x100000) & 0xffffffff)}
s_mov_b32 s{S_PFS}, 0x100000
s_lshr_b32 s{A}, s2, 3
s_lshl_b32 s{A}, s{A}, 2
s_add_u32 s{A}, s{A}, s{S_WAVE}
s_mul_i32 s{S_WT}, s{A}, 4608
s_sub_u32 s{S_WT}, s{S_WT}, {OPT['wod']*128*4608}
s_min_u32 s{A}, s{A}, (K_CODE_END-K_LAST)>>10
s_lshl_b32 s{A}, s{A}, 10
v_add_u32 v{CPV}, s{A}, v{L16}
s_lshl_b32 s{B}, s2, 2
s_add_u32 s{B}, s{B}, s{S_WAVE}
s_cmp_ge_u32 s{B}, 324
s_cmp_ge_u32 s{B}, 648
s_sub_u32 s{B}, s{B}, s{A}
s_min_u32 s{B}, s{B}, 323
s_lshl_b32 s{B}, s{B}, 14
s_add_u32 s{SRD_X}, s{SRD_X}, s{B}
s_mov_b32 s{SRD_X+2}, 16384
s_mov_b32 s{S_PFM}, 0
v_lshlrev_b32 v{OTV}, 6, v1
s_or_b32 s{A}, s{S_WAVE}, s{S_NB} ; s_cselect_b32 s{S_H0}, 8, 12
s_bitset1_b32 s{S_H0}, 8
s_getpc_b64 s[{S_PC}:{S_PC+1}]"""
def side_refresh(em):
    em.e(f"s_mov_b32 s{SRD_FO+2}, 0\ns_mov_b32 s{S_PF}, 0\ns_mov_b32 s{S_PFS}, 0\ns_mov_b32 s{S_PFM}, 0x100000\ns_mov_b32 s{S_H0}, 0x100")

def V(t):
    from front import as_items
    r = as_items(t)
    for x in r:
        if x.text.startswith(("v_exp", "v_rcp", "v_permlane")): x.kind = "x"
    return r
def unpack(t, a, m="0xffff0000"): return f"v_lshlrev_b32 v{t}, 16, v{a}\nv_and_b32 v{t+1}, {m}, v{a}\nv_lshlrev_b32 v{t+2}, 16, v{a+1}\nv_and_b32 v{t+3}, {m}, v{a+1}"
def dma(vo, sd, so, lds, sadd=None, fl="", tag=None, needs=()):
    r = [It("s", f"s_add_u32 m0, s{S_W8K}, {lds}")]
    if sadd is not None: r.append(It("s", f"s_add_u32 s{S_T3}, s{so}, {sadd + (0x70000000 if OPT['dbgx'] & 32 else 0)}")); so = S_T3
    return r + [It("vm", f"buffer_load_dwordx4 v{vo}, {R4(sd)}, s{so} offen {fl or NT(8)} lds", tag=tag, after_ds=(needs or None))]
def gu_dma(so, row0, n, lds0, ldsm, tag, needs=()):
    r = []
    for mi, sd in enumerate((SRD_SA, SRD_SB)):
        for i in range(n): r += dma(GO4, sd, so, lds0 + mi * ldsm + 1024 * i, (row0 + 16 * i) * 9216, tag=tag, needs=needs)
    return r
def gu_rd(nks, lds0, ldsm, tag):
    r = []
    for i, (ks, mat, ft) in enumerate([(ks, mat, ft) for ks in range(nks) for mat in range(2) for ft in range(2)]):
        k, g = RING(i)
        r += [It("ds", f"ds_read_b64_tr_b16 {rr(k,g+2*j,2)}, v{TAW} offset:{lds0 + mat*ldsm + ks*2048 + j*256 + ft*32}") for j in range(2)]
    r[-1].tag = ("rd", tag)
    return [It("s", "s_nop 0", after_vm=tag, at=8)] + r
def gu_mf(nks, xk, first):
    r = []
    for i in range(4 * nks):
        acc = vr(GA + (i & 3) * 4, 4)
        r.append(f"{MF} {acc}, {rr(*RING(i),4)}, {XF_(xk + (i>>2))}, {'0' if first else acc}")
    return r
def ringregs(n): return [x for i in range(n) for x in regs_of(rr(*RING(i), 4))]
def merge(a, b):
    def groups(l):
        g = []; c = []
        for x in l:
            c.append(x)
            if x.kind == "vm": g.append(c); c = []
        if c: (g[-1].extend(c) if g else g.append(c))
        return g
    r = []; gb = groups(b)
    for g in groups(a):
        m = [x for x in g if " m0," in x.text]
        if m: M0[0] = m[0].text
        elif DIRTY[0] and " lds" in "".join(x.text for x in g): r.append(It("s", M0[0]))
        if " lds" in "".join(x.text for x in g): DIRTY[0] = False
        r += g
        if gb: r += gb.pop(0); DIRTY[0] = True
    for g in gb: r += g; DIRTY[0] = True
    return r
M0 = [None]; DIRTY = [False]

def emit_side(em):
    import attn
    e = em.e
    em.label("K_HOOK")
    e(f"s_lshl_b32 s{S_T3}, s{S_QB}, 2\ns_add_u32 s{S_T3}, s{S_T3}, s{S_KQ}\ns_cmp_eq_u32 s{S_LOOP}, 3\ns_cbranch_scc1 K_QTW\ns_cmp_eq_u32 s{S_LOOP}, 7\ns_cbranch_scc1 K_PUB")
    e(f"s_memrealtime s[{S_T}:{S_T+1}]\ns_waitcnt lgkmcnt(0)")
    e(f"s_sub_u32 s{S_T2}, s{S_T}, s{S_T0}\ns_mul_i32 s{S_T2}, s{S_T2}, {OPT['kp']}\ns_lshr_b32 s{S_T2}, s{S_T2}, 2\ns_add_u32 s{S_T}, s{S_T}, s{S_T2}\ns_lshl_b32 s{S_T}, s{S_T}, 6\ns_or_b32 s{S_T}, s{S_T}, s{S_T3}\ns_bitset1_b32 s{S_T}, 31")
    e(f"v_mov_b32 v244, s{S_T}\ns_lshl_b32 s{S_T3}, s{S_T3}, 3\ns_mov_b64 exec, 1\nbuffer_store_dword v244, v{L16}, {R4(SRD_FO)}, s{S_T3} offen {SC}\ns_mov_b64 exec, -1\ns_branch K_B4")
    em.label("K_QTSPIN")
    spin(em, 4)
    e(f"buffer_load_dwordx2 v[252:253], v{PFV}, {R4(SRD_FO)}, 0 offen {SC}\ns_waitcnt vmcnt(0)")
    em.label("K_QTW")
    e(f"s_waitcnt vmcnt(3)\nv_cmp_eq_u32 vcc, 0, v252\nv_cmp_eq_u32 s[{S_MK}:{S_MK+1}], 0, v253\nv_readlane_b32 s{S_T}, v252, s{S_T3}\nv_mov_b32 v{IDXV}, v253")
    e(f"s_and_b32 s{S_MK}, s{S_MK}, 0xffff\ns_or_b32 s{S_MK}, s{S_MK}, vcc_lo\ns_or_b32 s{S_MK}, s{S_MK}, vcc_hi\nv_cmp_gt_u32 vcc, s{S_T}, v252\ns_cbranch_scc1 K_QTSPIN\ns_bcnt1_i32_b64 s{S_T}, vcc")
    if OPT["dyn"] == 0: e(f"s_mov_b32 s{S_T}, s{S_T3}")
    e(f"s_cmp_ge_u32 s{S_T}, {0 if OPT['dbgx'] & 1 else 36}\ns_cbranch_scc1 K_B4")
    e(f"s_lshl_b32 s{S_GD}, s{S_T}, 2\ns_add_u32 s{S_GD}, s{S_GD}, s{S_NB}")
    attn.restore(em, attn.LOOPST["b4"])
    em.vm = 100
    P = {u: dict(side=[], vm=[], xmf={}) for u in range(20, 45)}
    e(f"s_lshl_b32 s{S_SA}, s{S_GD}, 6\ns_mul_i32 s{S_E0}, s{S_WAVE}, {32*9216}\ns_add_u32 s{S_E0}, s{S_E0}, s{S_SA}")
    P[20]["vm"] = gu_dma(S_E0, 512, 2, 4096, 2048, "A")
    P[20]["side"] = V(f"""v_lshlrev_b32 v5, 2, v4
v_add_u32 v6, 16, v5
v_and_b32 v7, 28, v1""") + [It("ds", f"ds_bpermute_b32 v{v}, v{v}, v{IDXV}") for v in (5, 6, 7)] + V(f"""s_mul_i32 s{S_E1}, s{S_GD}, 36864
s_lshl_b32 s{S_T}, s{S_WAVE}, 5
s_add_u32 s{S_E2}, s{S_E1}, s{S_T}
s_mul_i32 s{S_T}, s{S_WAVE}, {128*9216}
s_add_u32 s{S_SA}, s{S_SA}, s{S_T}
s_lshl_b32 s{S_T}, s{S_WAVE}, 8
s_add_u32 s{S_E1}, s{S_E1}, s{S_T}
s_and_b32 s{S_T2}, s{S_WAVE}, 1
s_lshl_b32 s{S_T2}, s{S_T2}, 6
s_add_u32 s{S_T2}, s{S_T2}, 1024
s_mov_b32 s{S_MK}, 0x480
v_and_b32 v{TC}, 3, v1""")
    x0 = V(f"""v_lshlrev_b32 v{HF}, 1, v4
v_xor_b32 v{HF}, v{HF}, v3
v_lshlrev_b32 v{HF}, 4, v{HF}
v_xor_b32 v{HF+1}, 128, v{HF}
v_subrev_u32 v{HF}, 0x480, v{HF}
v_subrev_u32 v{HF+1}, 0x480, v{HF+1}
v_lshlrev_b32 v{HF+2}, 4, v{TC}
v_subrev_u32 v{HF+2}, 0x480, v{HF+2}""")
    x1 = [It("v", f"v_mad_u32_u24 v{v}, v{v}, s{S_MK}, v{HF+k}", needs=[f"v{v}"]) for k, v in enumerate((5, 6, 7))]
    xd = sum([dma(v, SRD_WS, (S_T, S_T, S_T2)[k], 1024 * k, fl=SC, tag="A") for k, v in enumerate((5, 6, 7))], [])
    P[21]["side"] = x0 + x1 + V(f"""v_lshrrev_b32 v{TB}, 1, v1
v_mul_u32_u24 v{TB}, 0x480, v{TB}
v_and_b32 v{TAW}, 1, v1
v_lshl_add_u32 v{TB}, v{TAW}, 4, v{TB}
v_bfe_u32 v{TAW}, v1, 2, 2
v_lshl_add_u32 v{TAW}, v4, 3, v{TAW}
v_lshlrev_b32 v{TAW}, 6, v{TAW}
v_lshl_add_u32 v{TAW}, v{TC}, 3, v{TAW}""")
    P[22]["vm"] = xd + dma(TB, SRD_WD, S_E2, 3072, 1024, tag="A")
    P[22]["first"] = True
    P[22]["side"] = V(f"""v_add_u32 v{TAW}, s{S_W8K}, v{TAW}
v_and_b32 v{HF}, 7, v1
v_lshlrev_b32 v{HF+1}, 1, v{HF}
v_xor_b32 v{HF+1}, v{HF+1}, v4
v_lshlrev_b32 v{HF+1}, 4, v{HF+1}
v_lshl_add_u32 v{HF+1}, v{HF}, 8, v{HF+1}
v_add_u32 v{HF+1}, s{S_W8K}, v{HF+1}
v_lshlrev_b32 v{HF+2}, 4, v4
v_lshl_add_u32 v{HF+2}, v{HF}, 6, v{HF+2}
s_cmp_lt_u32 s{S_WAVE}, 2""")
    ra = gu_rd(1, 4096, 2048, "A"); ra[0].at = 7
    P[23]["side"] = V(f"""v_add_u32 v{HF+2}, s{S_W8K}, v{HF+2}
v_xor_b32 v5, 64, v{HF+1}
v_xor_b32 v6, 128, v{HF+1}
v_xor_b32 v7, 192, v{HF+1}
v_lshrrev_b32 v{TB}, 2, v1
v_lshlrev_b32 v{TB}, 5, v{TB}
v_lshl_add_u32 v{TB}, v{TC}, 3, v{TB}
v_add_u32 v{TB}, s{S_W8K}, v{TB}""")
    P[24]["side"] = ra + [It("ds", f"ds_read_b128 {XF_(4)}, v{HF+2} offset:2048")] + [It("ds", f"ds_read_b128 {XF_(k)}, v{(HF+1, 5, 6, 7)[k]}") for k in range(2)]
    P[25]["side"] = [It("ds", f"ds_read_b128 {XF_(k)}, v{(HF+1, 5, 6, 7)[k]}") for k in range(2, 4)] + [It("ds", f"ds_read_b64_tr_b16 {ar(WDX+2*j,2)}, v{TB} offset:{3072 + j*512}", tag=("rdA", j)) for j in range(2)]
    P[25]["xmf"] = {2 * i + 1: [m] for i, m in enumerate(gu_mf(1, 4, True))}
    def spread(g, plan):
        for v, n in plan: P[v]["vm"] += g[:3 * n]; g = g[3 * n:]
        assert not g
    g = gu_dma(S_SA, 0, 4, 0, 4096, "B", needs=("rdA", 1))
    for x in g[12:]:
        if x.kind == "vm": x.after_ds = ("rd", "A")
    spread(g[12:] + g[:12], ((25, 3), (26, 3), (27, 2)))
    P[27]["first"] = True
    rb = gu_rd(2, 0, 4096, "B"); rb[0].at = 0
    P[29]["side"] = rb
    m = gu_mf(2, 0, False)
    P[30]["xmf"] = {i: [m[i]] for i in range(8)}
    spread(gu_dma(S_SA, 64, 4, 0, 4096, "C", needs=("rd", "B")), ((30, 4), (31, 4)))
    P[31]["first"] = True
    P[28]["side"] = V(f"""v_add_u32 v5, s{S_W8K}, v{L16}
s_add_u32 s{S_T}, s{S_W1K}, {SPARE}
v_add_u32 v6, s{S_T}, v{L16}
v_lshlrev_b32 v7, 1, v4
v_xor_b32 v7, v7, v3
v_mul_u32_u24 v{TB}, 0x480, v4
v_lshl_add_u32 v{TB}, v7, 4, v{TB}
v_and_b32 v7, 8, v7
v_lshlrev_b32 v7, 5, v7
v_sub_u32 v{TC}, v{TB}, v7
v_add_u32 v{TC}, 128, v{TC}""")
    rc = gu_rd(2, 0, 4096, "C"); rc[0].at = 20
    P[33]["side"] = rc[:11]; P[34]["side"] = rc[11:]
    wd = lambda h, needs: sum([dma((TB, TC)[i & 1], SRD_WD, S_E1, 4096 + (i & 3) * 1024, i * 4 * 1152, tag=("D", h), needs=needs) for i in range(4 * h, 4 * h + 4)], [])
    m = gu_mf(2, 2, False)
    P[34]["xmf"] = {0: m[0:1], 1: m[1:2], 2: m[2:3], 3: m[3:4], 5: m[4:5], 6: m[5:6], 7: m[6:8]}
    P[35]["vm"] = wd(0, ("rd", "C")); P[35]["first"] = True
    X = 120
    AD = 128
    P[35]["side"] = [It("dw", f"ds_write_b128 v5, {vr(GA+4*c,4)} offset:{c*1024}", at=10 + 4 * c) for c in range(4)] + \
        V(f"s_sub_u32 s{S_T}, s{S_W8K}, {hex(LDS_V - 4096)}\n" + "\n".join(f"v_add_u32 v{AD+T}, s{S_T}, v{VA+T}" for T in range(0)))
    si = V("\n".join(f"v_add_f32 v{GA+r}, v{GA+r}, v{GA+4+r}\nv_add_f32 v{GA+8+r}, v{GA+8+r}, v{GA+12+r}" for r in range(4)) + "\n" +
           "\n".join(f"v_add_f32 v{GA+r}, v{GA+r}, v{GA+8+r}" for r in range(4)) + f"\nv_cvt_pk_bf16_f32 v{HF}, v{GA}, v{GA+1}\nv_cvt_pk_bf16_f32 v{HF+1}, v{GA+2}, v{GA+3}\n" +
           unpack(GA, HF) + "".join(f"\nv_mul_f32 v{X+r}, 0xbfb8aa3b, v{GA+r}" for r in range(4)) + "".join(f"\nv_exp_f32 v{X+r}, v{X+r}" for r in range(4)) +
           "".join(f"\nv_add_f32 v{X+r}, 1.0, v{X+r}" for r in range(4)) + "".join(f"\nv_rcp_f32 v{X+r}, v{X+r}" for r in range(4)) + "".join(f"\nv_mul_f32 v{GA+r}, v{GA+r}, v{X+r}" for r in range(4)) +
           f"\nv_cvt_pk_bf16_f32 v{X}, v{GA}, v{GA+1}\nv_cvt_pk_bf16_f32 v{X+1}, v{GA+2}, v{GA+3}\nv_cndmask_b32 v{HF}, v{HF}, v{X}, s[{S_MK}:{S_MK+1}]\nv_cndmask_b32 v{HF+1}, v{HF+1}, v{X+1}, s[{S_MK}:{S_MK+1}]")
    si[0].needs = regs_of(vr(GA, 16)); si[0].at = 30
    DAr = lambda T: 192 + 4 * T if T < 4 else 212 + 4 * (T - 4)
    drd = lambda h: [It("ds", f"ds_read_b64_tr_b16 {ar(DAr(T)+2*h,2)}, v{AD+T}", after_vm=(("D", h) if T == 0 else None), tag=("dr", h)) for T in range(8)]
    P[36]["side"] = V("\n".join(f"v_add_u32 v{AD+T}, s{S_T}, v{VA+T}" for T in range(3))) + \
        [It("ds", f"ds_read_b128 {vr(GA+4*w,4)}, v6 offset:{w*8192}", at=OPT["barg"] + 1) for w in range(4)] + si[:8]
    P[35]["scal"] = V("\n".join(f"v_add_u32 v{AD+T}, s{S_E0}, v{VA+T}" for T in range(3, 8)))
    P[34]["scal"] = V(f"s_sub_u32 s{S_E0}, s{S_W8K}, {hex(LDS_V - 4096)}")
    P[37]["side"] = si[8:24]
    P[38]["side"] = si[24:33]; P[38]["scal"] = drd(0)[:4]
    P[39]["side"] = si[33:] + [It("ds", f"ds_write_b64 v6, {vr(HF,2)} offset:{w*8192}") for w in range(4)]
    P[39]["scal"] = drd(0)[4:]
    hh = V("\n".join(unpack(GA + 8 + 4 * k, GA + 2 * k) for k in range(4)) + "".join(f"\nv_mul_f32 v{GA+8+r}, v{GA+8+r}, v{GA+16+r}" for r in range(8)) +
           "".join(f"\nv_cvt_pk_bf16_f32 v{HF+k}, v{GA+8+2*k}, v{GA+9+2*k}" for k in range(4)))
    hh[0].needs = regs_of(vr(GA, 8)); hh[0].at = 0
    P[40]["vm"] = wd(1, ("dr", 0)); P[40]["first"] = True
    P[40]["side"] = [It("ds", f"ds_read_b64 {vr(GA+2*k,2)}, v5 offset:{k*1024}", at=OPT["barg"] + 1) for k in range(4)] + \
        V(f"v_and_b32 v7, 7, v1\nv_mul_u32_u24 v{TAW}, {YTS}, v4\nv_lshl_add_u32 v{TAW}, v7, 4, v{TAW}")
    P[40]["scal"] = V(f"""s_lshl_b32 s{S_E0}, s{S_GD}, 7
s_add_u32 s{S_E0}, s{S_E0}, {hex(WS_YP)}
s_add_u32 s{S_T2}, s{S_WAVE}, 32
s_mul_i32 s{S_E2}, s{S_T2}, {4*YTS}
s_add_u32 s{S_E2}, s{S_E2}, s{S_E0}
s_mul_i32 s{S_T2}, s{S_WAVE}, {32*YTS}
s_add_u32 s{S_E0}, s{S_E0}, s{S_T2}""")
    P[41]["side"] = hh[:18]
    P[42]["side"] = hh[18:]; P[42]["scal"] = drd(1)
    m = [f"{MF} {vr(104+4*T,4)}, {ar(DAr(T),4)}, {vr(HF,4)}, 0" for T in range(8)] + [f"{MF} {ar(228,4)}, {ar(WDX,4)}, {vr(HF,4)}, 0"]
    P[43]["xmf"] = {0: [m[8]] + m[0:4], 1: m[4:8]}
    st = [It("vm", f"buffer_store_dwordx4 {ar(228,4)}, v{TAW}, {R4(SRD_WS)}, s{S_E2} offen {SC}")]
    for T in range(8):
        st += [It("s", f"s_add_u32 s{S_T3}, s{S_E0}, {T*4*YTS}"), It("vm", f"buffer_store_dwordx4 {vr(104+4*T,4)}, v{TAW}, {R4(SRD_WS)}, s{S_T3} offen {SC}")]
    P[43]["vm"] = st; P[43]["last"] = True
    P[43]["scal"] = attn.sync_init()
    P[43]["side"] = V(f"s_mov_b32 s{S_LOOP}, 6\ns_mov_b32 s{S_H0}, 0x180\ns_add_u32 s{S_GD}, s{S_GD}, 1")
    U0 = OPT["trk"]
    for v in range(20, 45):
        u = v - 20 + U0
        base = attn.period_dma(u >> 2)[u & 3]
        if OPT["dbgx"] & 64 and v < 43: P[v] = dict(side=[], vm=[], xmf={})
        if OPT["dbgx"] & 64: P[v]["vm"] = []
        vm = merge([], P[v]["vm"]) + merge(base, []) if P[v].get("first") else merge(base, P[v]["vm"])
        if P[v].get("last"): vm = base + P[v]["vm"]
        attn.emit_step(em, u, vm=vm, scal=P[v].get("scal", ()), bar=(u & 3) == 0, hard=True, vmw=("kv" if v > 20 else 4), nxt=attn.first(u + 1), side=P[v]["side"], xmf=P[v]["xmf"])
    sv = attn.LOOPST["b5"]
    e(f"s_waitcnt lgkmcnt({min(15, sv[0] - 1 - sv[1])})\ns_branch K_B5")
    em.label("K_PUB")
    e(f"s_mov_b32 s{SRD_FO+2}, 0x4000\nv_lshlrev_b32 v{PFV}, 7, v3\ns_mov_b32 s{S_PF}, {hex(WS_YC - WS_QT)}\ns_mov_b32 s{S_PFS}, 0\ns_cmp_lg_u32 s{S_WAVE}, 0\ns_cbranch_scc1 K_B4")
    e(f"v_mov_b32 v244, 1\ns_and_b32 s{S_T}, s{S_GD}, 15\ns_lshl_b32 s{S_T}, s{S_T}, 7\ns_add_u32 s{S_T}, s{S_T}, {hex(WS_YC)}\ns_mov_b64 exec, 1\nbuffer_atomic_add v244, v{L16}, {R4(SRD_WS)}, s{S_T} offen sc1\ns_mov_b64 exec, -1\ns_branch K_B4")
```

```python
from defs import *
from attn import pv, smf, snap, restore
from moe import IDXV
def OB(hh, ks, lam): return 8 + ((hh * 4 + ks) * 2 + lam) * 4
def FB(i, hh, ks, lam): return ((hh * 3 + i - 1) * 8 + ks * 2 + lam) * 4
def ACC(lam, j): return 136 + (lam * 8 + j) * 4 if j < 8 else 72 + (lam * 4 + j - 8) * 4
AF = 192
PA0, PA2 = 200, 208
PE = 216
LV = 104
S_PW, S_PO = 42, 90
S_VAL, S_X1, S_X2 = 93, 94, 95
RB = 16 * 1152
SLOT = [3 * U, 4 * U, U, 2 * U, 3 * U, 4 * U, 0, U]
L_CHK = 2 * U + 3 * 4096
SNV, SNY, RWV, FLV, L8 = 246, 247, 248, 249, 250
GG, XF, TU = 8, 72, 28
XL = 120
XW = 242
M, NL, SLO, SHI = 56, 57, 58, 59
S_RX, S_TX, S_XFL, S_EV, S_EFL, S_EB, S_ES, S_FM = 60, 64, 63, 67, 86, 87, 88, 38

def wdma(vo, i0, i1, soff, sadd, step, lds, tag=None):
    r = []
    for i in range(i0, i1):
        r += [It("s", f"s_add_u32 m0, s{S_W1K}, {lds + i*4096}"), It("s", f"s_add_u32 s{S_T3}, s{soff}, {sadd + i*step}"),
              It("vm", f"buffer_load_dwordx4 v{vo}, {R4(SRD_W)}, s{S_T3} offen lds", tag=tag)]
    return r
def wo_dma(st, i0=0, i1=8):
    i, hh = ((st - 2) % 3 + 1, (st - 2) // 3)
    return wdma(WOV, i0, i1, S_PW + i - 1, hh * 128 * 1152 + (0x70000000 if OPT['dbgx'] & 8 else 0), RB, SLOT[st], tag=("wo", st))
def last_side():
    from front import as_items
    t = ""
    for i in range(1, 4):
        t += f"s_add_u32 s{S_T}, s{S_NB}, {i}\ns_and_b32 s{S_T}, s{S_T}, 3\ns_mul_i32 s{S_PW+i-1}, s{S_T}, {256*1152}\ns_add_u32 s{S_PW+i-1}, s{S_PW+i-1}, s{S_WOO}\n"
    t += f"s_cmp_eq_u32 s{S_WAVE}, s{S_NB}"
    return as_items(t)
LASTQ = []
def last_vm(em, u):
    if u == 60: LASTQ[:] = wdma(WOV, 0, 8, S_SB, 0, RB, SLOT[0]) + wdma(WEV, 0, 8, S_EXO, 0, 2 * RB, 0) + wdma(WOV, 8, 16, S_SB, 0, RB, SLOT[0]) + wo_dma(2, 0, 4)
    if u == 62: LASTQ.extend(wo_dma(2, 4, 8) + wo_dma(3, 0, 3))
    take = {60: 10, 61: 12, 62: 13, 63: 0}[u]
    r = []; k = 0
    while LASTQ and k < take:
        x = LASTQ.pop(0); r.append(x)
        if x.kind == "vm": k += 1
    if u == 63: assert not LASTQ
    return r

def oflag(em, h):
    em.e(f"s_mov_b64 exec, 1")
    em.vmem(f"buffer_store_dword v5, v{L16}, {R4(SRD_WS)}, s{S_X2} offen offset:{4*h} {SC}")
    em.e("s_mov_b64 exec, -1")
def interleave(em, mf, fill, per=2):
    fill = list(fill)
    for m in mf:
        em.mfma(m)
        for _ in range(per):
            if fill: em.e(fill.pop(0))
    for f in fill: em.e(f)
def ost(hh, ks, lam):
    f = (hh * 4 + ks) * 2 + lam
    return [It("s", f"s_add_u32 s{S_X1}, s{S_OB}, {(f>>2)*4096 + (0x70000000 if OPT['dbgx'] & 2 else 0)}"),
            It("vm", f"buffer_store_dwordx4 {vr(OB(hh,ks,lam),4)}, v{L16}, {R4(SRD_WS)}, s{S_X1} offen offset:{(f&3)*1024} {SC}{NT(32)}", tag=("ost", hh))]

def emit_final(em):
    e = em.e
    pr = 1
    T2 = 136
    chk = ["s_nop 0"] * 2
    for qs in range(4): chk += [f"v_accvgpr_read_b32 v{LV+2*qs}, a{AL+2*qs}", f"v_accvgpr_read_b32 v{LV+2*qs+1}, a{AL+2*qs+1}"]
    for qs in range(4): chk += [f"v_add_f32 v{LV+2*qs}, v{LV+2*qs}, v{LV+2*qs+1}"]
    chk += [f"v_max3_f32 v{T2}, v{LV}, v{LV+2}, v{LV+4}", f"v_add_f32 v{T2+1}, v{LV}, v{LV+2}", f"v_max_f32 v{T2}, v{T2}, v{LV+6}", f"v_add_f32 v{T2+1}, v{T2+1}, v{LV+4}",
            f"v_cmp_nge_f32 vcc, 0x5f800000, v{T2}", f"v_add_f32 v{T2+1}, v{T2+1}, v{LV+6}", f"v_cmp_u_f32 s[{S_X1}:{S_X2}], v{T2+1}, v{T2+1}"]
    mf = [smf(pr, 0), smf(pr, 1)] + [pv(pr, T, qs) for qs in (0, 1) for T in range(8)]
    pre = [f"s_lshl_b32 s{S_T}, s{S_WAVE}, 2\nv_and_b32 v{T2+2}, 3, v1", f"s_add_u32 s{S_T}, s{S_T}, {L_CHK}\nv_lshlrev_b32 v{T2+2}, 10, v{T2+2}",
           f"s_add_u32 s{S_T2}, s{S_W1K}, {L_CHK}\nv_add_u32 v{T2+2}, s{S_T}, v{T2+2}", f"v_mov_b32 v{T2+3}, s{S_T2}"]
    for k in range(4): em.mfma(mf[k]); e(pre[k])
    interleave(em, mf[4:], chk)
    e(f"s_or_b64 vcc, vcc, s[{S_X1}:{S_X2}]\ns_cmp_lg_u64 vcc, 0\ns_cselect_b32 s{S_T3}, 1, 0\nv_mov_b32 v{T2}, s{S_T3}")
    em.dsw(f"ds_write_b32 v{T2+2}, v{T2}")
    YW[1] = em.vm
    e(f"s_cmp_lg_u32 s{S_GD}, 0\ns_cbranch_scc1 K_YRA")
    em.label("K_YRAD")
    for qs in range(4): e(f"v_rcp_f32 v{LV+2*qs}, v{LV+2*qs}")
    em.ds_all("vmcnt(0)")
    e("s_barrier")
    em.vm = 0
    stamp(em, "t0bar", 66)
    em.dsr(f"ds_read_b128 {vr(T2+4,4)}, v{T2+3}")
    def rd(qs, t): return [f"v_accvgpr_read_b32 v{t+4*T+r}, a{Oacc(T,qs)+r}" for T in range(8) for r in range(4)]
    def fin(qs, t, after):
        hh, lam = qs >> 1, qs & 1
        for ks in range(4):
            a = t + 8 * ks; d = OB(hh, ks, lam)
            for k in range(4): e(f"v_pk_mul_f32 {vr(a+2*k,2)}, {vr(a+2*k,2)}, {vr(LV+2*qs,2)} op_sel_hi:[1,0]")
            for k in range(4): e(f"v_cvt_pk_bf16_f32 v{d+k}, v{a+2*k}, v{a+2*k+1}")
            after(hh, ks, lam)
    interleave(em, [pv(pr, T, qs) for qs in (2, 3) for T in range(8)], rd(0, 40))
    st0 = lambda hh, ks, lam: em.items(ost(hh, ks, lam))
    fin(0, 40, st0)
    for x in rd(1, 72): e(x)
    fin(1, 72, st0)
    stamp(em, "h0st", 2)
    em.need(regs_of(vr(T2 + 4, 4)))
    e(f"v_or3_b32 v{T2+4}, v{T2+4}, v{T2+5}, v{T2+6}\nv_or_b32 v{T2+4}, v{T2+4}, v{T2+7}\ns_nop 0\nv_readfirstlane_b32 s{S_T}, v{T2+4}")
    e(f"s_andn2_b32 s{S_T}, s{S_T}, s{S_PASS}\ns_cbranch_scc1 K_FB")
    e(f"s_cmp_lg_u32 s{S_RD}, 0\ns_cbranch_scc1 K_YR1")
    em.label("K_YR1D")
    YW[0] = em.vm
    for k in range(12): e(f"v_accvgpr_read_b32 v{XL+k}, a{AX+k}")
    for t in range(8): e(f"v_xor_b32 v{VA+t}, s{S_X0}, v{VA+t}")
    e(f"v_bfe_u32 v5, v1, 2, 2\nv_lshl_add_u32 v5, v4, 2, v5\nv_bfe_u32 v6, v5, 1, 2\nv_lshlrev_b32 v6, 5, v6\nv_lshl_add_u32 v6, v5, 7, v6\nv_and_b32 v5, 3, v1\nv_lshl_add_u32 v{PE}, v5, 3, v6")
    for t in range(1, 4): e(f"v_xor_b32 v{PE+t}, {32*t}, v{PE}")
    for j in range(12):
        for x in a_rd(0, j): em.dsr(x)
    H1.clear()
    for ks in range(4):
        for lam in range(2):
            qs = 2 + lam; d = OB(1, ks, lam); a = 112
            src = [Oacc(2 * ks + (r >> 2), qs) + (r & 3) for r in range(8)]
            if ks < OPT["e1"]:
                for r in range(8): e(f"v_accvgpr_read_b32 v{a+r}, a{src[r]}")
                for k in range(4): e(f"v_pk_mul_f32 {vr(a+2*k,2)}, {vr(a+2*k,2)}, {vr(LV+2*qs,2)} op_sel_hi:[1,0]")
                for k in range(4): e(f"v_cvt_pk_bf16_f32 v{d+k}, v{a+2*k}, v{a+2*k+1}")
                H1.append((ks, [], ost(1, ks, lam)))
            else:
                it = [It("v", f"v_accvgpr_read_b32 v{a+r}, a{src[r]}") for r in range(8)] + [It("v", f"v_mul_f32 v{a+r}, v{LV+2*qs}, v{a+r}") for r in range(8)]
                it += [It("v", f"v_cvt_pk_bf16_f32 v{d+k}, v{a+2*k}, v{a+2*k+1}") for k in range(4)]
                H1.append((ks, it, ost(1, ks, lam)))
H1 = []; W3 = []

def fo_ld(hh, i):
    r = []
    for f in range(8):
        r.append(It("s", f"s_add_u32 s{S_X1}, s{S_PO+i-1}, {hh*8192 + (f>>2)*4096 + (0x70000000 if OPT['dbgx'] & 4 else 0)}"))
        r.append(It("vm", f"buffer_load_dwordx4 {ar(FB(i,hh,f>>1,f&1),4)}, v{L16}, {R4(SRD_WS)}, s{S_X1} offen offset:{(f&3)*1024} {SC}", tag=("fo", hh, i)))
    return r
def snapld(tag): return It("vm", f"buffer_load_dword v{SNV}, v6, {R4(SRD_WS)}, s{S_OFL} offen {SC}", tag=tag)
def a_rd(t, j):
    st, kk = t >> 2, t & 3
    if j >= 8: return [f"ds_read_b64_tr_b16 {ar(AF+4*j+2*h,2)}, v{PE+j-8} offset:{st*16384 + kk*4096 + h*2048}" for h in range(2)]
    reg, off = ((PA0, VA, PA2)[SLOT[st] >> 16], SLOT[st] & 0xffff)
    return [f"ds_read_b64_tr_b16 {ar(AF+4*j+2*h,2)}, v{reg+j} offset:{off + kk*8192 + h*4096}" for h in range(2)]
def bfrag(t, lam):
    st, kk = t >> 2, t & 3
    if st < 2: return vr(OB(st, kk, lam), 4)
    return ar(FB((st - 2) % 3 + 1, (st - 2) // 3, kk, lam), 4)
def ntile(t): return 12 if t < 8 else 8
def mfl(t): return [f"{MF} {vr(ACC(lam,j),4)}, {ar(AF+4*j,4)}, {bfrag(t,lam)}, {'0' if t == 0 else vr(ACC(lam,j),4)}" for j in range(ntile(t)) for lam in range(2)]
BG = 4
NEXTG = [0]
FR = [0.0, 1.0]
def vcost(x): return OPT["gs"] if "store_dwordx4" in x.text else OPT["gs"] // 2 if "store" in x.text else OPT["gl"]
def kstep(em, t, pend, vfill, barrier=None, after=None, sfill=None):
    mf = mfl(t); n = len(mf)
    lo = BG + 1 if barrier else 0
    ds = []
    if t + 1 < 32:
        for j in range(ntile(t + 1)): ds += [It("ds", x, at=max(lo, 2 * j + 1)) for x in a_rd(t + 1, j)]
    if barrier:
        packed = pack(BG, {"v": vfill[:2 * BG]}, ["v"])
        del vfill[:2 * BG]
        vfill[:0] = packed[BG]
        emit_packed(em, mf[:BG + 1], packed[:BG] + [[], []], None)
        barrier(em)
        if after: after()
    cur = []; k = 0; g = max(NEXTG[0], lo + 2 if barrier else 0)
    while pend and g < n - 1:
        grp = []
        while pend[0].kind != "vm": grp.append(pend.pop(0))
        x = pend.pop(0); x.at = max(g, lo + len(grp))
        for j, y in enumerate(grp): y.at = max(lo, x.at - len(grp) + j)
        cur += grp + [x]; k += 1; FR[0] += vcost(x) * FR[1]; g = x.at + max(2, int(FR[0])); FR[0] -= int(FR[0])
    NEXTG[0] = max(0, g - n)
    st = {"vm": cur, "ds": ds}
    room = max(0, 2 * (n - lo) - len(ds) - 2 * k - 1); ns = n - lo - sum(1 for x in cur if x.kind == "s") - 3
    tk = 0
    for x in vfill:
        c = {"s": 0, "v": 1, "x": 2}[x.kind]
        if room < c or (x.kind == "s" and ns <= 0): break
        room -= c; tk += 1
        if x.kind == "s": ns -= 1
    st["v"] = vfill[:tk]; del vfill[:tk]
    for x in st["v"]: x.at = max(x.at, lo)
    st["s"] = sfill[:max(0, ns)]; del sfill[:max(0, ns)]
    for x in st["s"]: x.at = lo
    packed = pack(n, st, ["vm", "ds", "v", "s"])
    left = [x for x in packed[n] if x in st["s"]]
    sfill[:0] = left; packed[n] = [x for x in packed[n] if x not in left]
    left = [x for x in packed[n] if x in st["v"]]
    for x in left: x.at = 0
    vfill[:0] = left; packed[n] = [x for x in packed[n] if x not in left]
    emit_packed(em, mf[lo:], packed[lo:], mfl(t + 1)[0] if t + 1 < 32 else None)

def setup_items():
    from front import as_items
    T, T2 = S_EV, S_T2
    t = "\n".join(f"v_add_u32 v{PA2+k}, 0x10000, v{VA+k}" for k in range(8)) + "\n"
    t += f"""s_lshl_b32 s{S_X2}, s{S_NB}, 3
v_mov_b32 v5, 1
v_and_b32 v6, 7, v1
s_add_u32 s{S_X2}, s{S_X2}, s{S_OFL}
v_lshlrev_b32 v6, 2, v6
v_lshlrev_b32 v{L8}, 3, v1
"""
    for i in range(1, 4):
        t += f"s_add_u32 s{T}, s{S_NB}, {i}\ns_and_b32 s{T}, s{T}, 3\ns_sub_u32 s{T}, s{T}, s{S_NB}\ns_lshl_b32 s{T}, s{T}, 16\ns_add_u32 s{S_PO+i-1}, s{S_OB}, s{T}\n"
    t += "\n".join(f"v_subrev_u32 v{PA0+k}, 0x10000, v{VA+k}" for k in range(8)) + "\n"
    t += f"""s_lshl_b32 s{T}, s{S_QB}, 2
s_add_u32 s{T}, s{T}, s{S_WAVE}
s_lshl_b32 s{S_EFL}, s{T}, 7
s_add_u32 s{S_EFL}, s{S_EFL}, {hex(WS_EFL)}
s_lshl_b32 s{T}, s{T}, 1
s_lshr_b32 s{T2}, s{S_KQ}, 1
s_add_u32 s{T}, s{T}, s{T2}
s_lshl_b32 s{S_EB}, s{T}, 15
s_add_u32 s{S_EB}, s{S_EB}, {hex(WS_EX)}
s_lshl_b32 s{T}, s{S_KV}, 9
s_add_u32 s{S_ES}, s{S_EB}, s{T}
s_xor_b32 s{S_ES+1}, s{S_ES}, 0x8000
s_lshl_b32 s{T2}, s{S_QB}, 2
s_add_u32 s{T2}, s{T2}, s{S_NB}
s_lshl_b32 s{S_XFL}, s{T2}, 2
s_add_u32 s{S_XFL}, s{S_XFL}, s{S_WAVE}
s_lshl_b32 s{S_XFL}, s{S_XFL}, 9
s_add_u32 s{S_XFL}, s{S_XFL}, {hex(WS_XFL)}
s_lshl_b32 s{T2}, s{T2}, 6
s_add_u32 s{T2}, s{T2}, s{S_WAVE}
s_lshl_b32 s{T2}, s{T2}, 11
s_mul_i32 s{T}, s{S_KQ}, {32768 + 8192}
s_add_u32 s{T}, s{T}, s{T2}
s_add_u32 s{T}, s{T}, {hex(WS_XB)}
s_mov_b32 s{NL}, 0xbfb8aa3b
s_mov_b32 s{M}, 0xffff0000
s_mov_b32 s{SLO}, 0x00003f80
s_mov_b32 s{SHI}, 0x3f800000
s_lshl_b32 s{T2}, s{S_NB}, 13
s_add_u32 s{S_EB}, s{S_EB}, s{T2}
s_mov_b32 s{S_FM}, 15
s_bitset0_b32 s{S_FM}, s{S_KQ}
v_lshlrev_b32 v{FLV}, 7, v1
v_lshlrev_b32 v7, 2, v3
v_subrev_u32 v{RWV}, s{S_ROW}, v{IDXV}
v_subrev_u32 v{RWV}, 1, v{RWV}"""
    for d in (1, 2, 3): t += f"\ns_xor_b32 s{S_RX+d-1}, s{T}, {d*8192}\ns_xor_b32 s{S_TX+d-1}, s{T}, {d*32768}"
    t += f"\nv_add_u32 v{XA}, s{S_W4K}, v{XA}\nv_add_u32 v{XA}, {2*U}, v{XA}" + "".join(f"\nv_xor_b32 v{XA+k}, {32*k}, v{XA}" for k in range(1, 4))
    return as_items(t)

def need_flags(em, mask, lab, tag):
    e = em.e
    stamp(em, "c" + tag, 64)
    em.wait_vm(tag)
    stamp(em, "w" + tag, 64)
    e(f"v_cmp_ne_u32 vcc, 1, v{SNV}\ns_and_b32 s{S_T}, vcc_lo, {mask}\ns_cbranch_scc0 {lab}_OK")
    em.label(lab)
    spin(em, 1)
    e(f"buffer_load_dword v{SNV}, v6, {R4(SRD_WS)}, s{S_OFL} offen {SC}\ns_waitcnt vmcnt(0)\nv_cmp_ne_u32 vcc, 1, v{SNV}\ns_and_b32 s{S_T}, vcc_lo, {mask}\ns_cbranch_scc1 {lab}")
    em.label(lab + "_OK")
    stamp(em, "k" + tag, 64)
def unpack_l(t, a): return [f"v_lshlrev_b32 v{t}, 16, v{a}", f"v_and_b32 v{t+1}, s{M}, v{a}", f"v_lshlrev_b32 v{t+2}, 16, v{a+1}", f"v_and_b32 v{t+3}, s{M}, v{a+1}"]

YW = [0, 0]
def rnd(em, t): em.e(f"v_cvt_pk_bf16_f32 v{TU}, v{t}, v{t+1}\nv_cvt_pk_bf16_f32 v{TU+1}, v{t+2}, v{t+3}\n" + "\n".join(unpack_l(t, TU)))
def gcalc(em, k):
    e = em.e
    t = GG + 4 * k; u = TU + 2; x = u; MS = vr(XL + 10, 2); RS = vr(XL + 12, 2)
    e("\n".join(unpack_l(x, XL + 2 * k)))
    for h in (0, 2): e(f"v_pk_add_f32 {vr(u+h,2)}, {vr(x+h,2)}, {MS} op_sel_hi:[1,0] neg_lo:[0,1] neg_hi:[0,1]")
    rnd(em, u)
    for h in (0, 2): e(f"v_pk_mul_f32 {vr(t+h,2)}, {vr(u+h,2)}, {RS} op_sel_hi:[1,0]")
    for h in (0, 2): e(f"v_pk_fma_f32 {vr(u+h,2)}, {vr(t+h,2)}, {MS}, {vr(u+h,2)} op_sel:[0,1,0] op_sel_hi:[1,1,1] neg_lo:[1,0,0] neg_hi:[1,0,0]")
    for h in (0, 2): e(f"v_pk_fma_f32 {vr(t+h,2)}, {vr(u+h,2)}, {RS}, {vr(t+h,2)} op_sel_hi:[1,0,1]")
    rnd(em, t)
    for i in range(4): e(f"v_mul_f32 v{u+i}, s{NL}, v{t+i}")
    for i in range(4): e(f"v_exp_f32 v{u+i}, v{u+i}")
    e("s_nop 0")
    for i in range(4): e(f"v_add_f32 v{u+i}, 1.0, v{u+i}")
    for i in range(4): e(f"v_rcp_f32 v{u+i}, v{u+i}")
    e("s_nop 0")
    e(f"v_pk_mul_f32 {vr(t,2)}, {vr(t,2)}, {vr(u,2)}\nv_pk_mul_f32 {vr(t+2,2)}, {vr(t+2,2)}, {vr(u+2,2)}")
    rnd(em, t)

def emit_p2(em):
    e = em.e
    su = setup_items()
    PK = 72
    exs = []
    for lam in range(2):
        for j in range(4):
            exs += [It("s", f"s_add_u32 s{S_X1}, s{S_ES+lam}, {j*8192 + (0x70000000 if OPT['dbgx'] & 16 else 0)}"),
                    It("vm", f"buffer_store_dwordx2 {vr(ACC(lam,8+j),2)}, v{L8}, {R4(SRD_WS)}, s{S_X1} offen {SC}", tag="exs")]
    sv = [x for x in su if x.kind == "v"]; ss = [x for x in su if x.kind == "s"]
    h1v = [x for g in H1 for x in g[1]]
    n0 = sum(len(g[1]) for g in H1 if g[0] < 2)
    vf = sv[:8] + h1v[:n0] + sv[8:20] + h1v[n0:]
    late = sv[20:]
    em.items(su[8:14])
    vf = [x for x in vf if not x.done]; ss = [x for x in ss if not x.done]
    pend = wo_dma(3, 3, 8); h1 = list(H1); h1st = [x for g in H1 for x in g[2]]
    NEXTG[0] = OPT["ng0"]
    TF0, TS0, TC0, TF1, TS1, TC1, TE = OPT["tf0"], OPT["ts0"], OPT["tc0"], OPT["tf1"], OPT["ts1"], OPT["tc1"], OPT["te"]
    BARS = dict(tuple(map(int, x.split(":"))) for x in OPT["bars"].split(",")); REL = []; vis = 2
    def deadline(tag):
        if tag == "exs": return TE
        if tag is None: return 99
        if tag[0] == "wo": return min(t_ for t_, v_ in BARS.items() if v_ >= tag[1])
        if tag[0] == "fo": return 4 * (2 + 3 * tag[1] + tag[2] - 1)
        if tag[0] == "ost": return TF1 - OPT["h1b"]
    def add(items):
        grp = []; cur = []
        for x in pend + items:
            cur.append(x)
            if x.kind == "vm": grp.append(cur); cur = []
        grp.sort(key=lambda g: deadline(g[-1].tag))
        pend[:] = [x for g in grp for x in g]
    def barw(tag):
        def f(em):
            assert not any(x.tag == tag for x in pend) or tag is None, tag
            em.ds_all(f"vmcnt({em.vm_n(tag)})" if tag else ""); e("s_barrier")
        return f
    for t in range(32):
        st, kk = t >> 2, t & 3
        if t in (4, 8, 12, 16, 20, 24, 28): stamp(em, f"t{t}", 2)
        if t == TF0:
            stamp(em, "tf0", 64); em.wait_vm(("ost", 0)); stamp(em, "ack0", 64); oflag(em, 0)
        if t >= TF0:
            while h1 and all(x.done for x in h1[0][1]): add(h1.pop(0)[2])
        if 4 <= t < 8:
            k = 0
            while not all(x.done for g in H1 if g[0] <= t - 4 for x in g[1]): em.item(vf.pop(0)); k += 1
            if k: e("s_nop 1"); print("flushed", t, k)
        if t == 3: assert all(x.done for x in sv[:8])
        if t == 7: assert all(x.done for x in sv[:20])
        if t == TS0: em.item(snapld("sn0"))
        if t == TC0:
            assert all(x.done for x in su[14:29]) and not ss
            e(f"v_rcp_f32 v{XL+12}, v{XL+11}")
            for k in range(OPT["ng"]): gcalc(em, k)
            need_flags(em, 0x55, "K_F0", "sn0")
            add(fo_ld(0, 1) + fo_ld(0, 2))
        if t == 8: add(fo_ld(0, 3))
        if t == TF1:
            assert all(x.done for x in h1st)
            stamp(em, "tf1", 64); em.wait_vm(("ost", 1)); stamp(em, "ack1", 64); oflag(em, 1)
        if t == TS1: em.item(snapld("sn1"))
        if t == TC1:
            need_flags(em, 0xaa, "K_F1", "sn1")
            add(fo_ld(1, 1) + fo_ld(1, 2) + fo_ld(1, 3))
        if t == 8:
            assert not vf and not ss, (len(vf), len(ss))
            for lam in range(2):
                for j in range(4):
                    a = ACC(lam, 8 + j)
                    vf += [It("v", f"v_cvt_pk_bf16_f32 v{a}, v{a}, v{a+1}", at=(0 if vf else 3)), It("v", f"v_cvt_pk_bf16_f32 v{a+1}, v{a+2}, v{a+3}")]
            cv = list(vf); vf += late
            for k in range(OPT["ng"], OPT["ng2"]): gcalc(em, k)
        if t == 11:
            assert all(x.done for x in cv)
            add(exs)
        if t == 8:
            YW[0] = em.vm - YW[0]
            e(f"s_cmp_lg_u32 s{S_RD}, 0\ns_cbranch_scc1 K_YR2")
            em.label("K_YR2D")
        if kk == 0 and st >= 2:
            tg = ("fo", (st - 2) // 3, (st - 2) % 3 + 1)
            assert not any(x.tag == tg for x in pend), (t, tg)
            stamp(em, f"b{t}", 64)
            em.wait_vm(tg)
            if t > 8: stamp(em, f"w{t}", 64)
        if t == 8: stamp(em, "p2own")
        if t == TE:
            assert exs[-1].done
            em.wait_vm("exs")
            e(f"s_lshl_b32 s{S_T}, s{S_KV}, 2\ns_add_u32 s{S_T}, s{S_T}, s{S_EFL}\ns_mov_b64 exec, 1")
            em.vmem(f"buffer_store_dword v5, v{L16}, {R4(SRD_WS)}, s{S_T} offen {SC}")
            e("s_mov_b64 exec, -1")
        if t == 29:
            e(f"v_cmp_gt_u32 vcc, 16, v{RWV}\nv_lshlrev_b32 v6, 7, v3\nv_add_u32 v6, {hex(WS_YC + 2048)}, v6\ns_and_b32 s{S_VAL}, vcc_lo, 0xff\ns_cselect_b32 s{S_T2}, 0, 0x7f000000")
            pend += [It("vm", f"buffer_load_dword v{SNV}, v7, {R4(SRD_WS)}, s{S_EFL} offen {SC}"), It("vm", f"buffer_load_dword v{SNY}, v6, {R4(SRD_WS)}, s{S_T2} offen {SC}")]
        bar = after = None
        if t in BARS:
            rel = [st_ for st_, tt in ((4, 3), (5, 7), (6, 7), (7, 11)) if tt <= t and st_ not in REL]
            REL.extend(rel)
            bar, after = barw(("wo", BARS[t]) if BARS[t] else None), (lambda rel=rel: add(sum([wo_dma(x) for x in rel], [])))
            vis = max(vis, BARS[t])
        if kk == 3 and t < 31: assert vis >= st + 1, t
        f = 1.0; c = NEXTG[0]
        for x in pend:
            if x.kind == "vm":
                avail = sum(2 * ntile(tt) for tt in range(t, max(t + 1, min(32, deadline(x.tag) - OPT["lat"])))) - 2
                if c > 0: f = min(f, avail / c)
                c += vcost(x)
        FR[1] = f
        kstep(em, t, pend, vf, bar, after, ss)
        if OPT["verb"]: print(t, len([x for x in pend if x.kind == "vm"]), [x.tag for x in pend if x.kind == "vm"][:1], round(f, 2))
    assert not pend
    stamp(em, "p2main")

def OSC(): return ['', 'sc0 sc1', 'nt', 'sc0 sc1 nt'][OPT['osc']]
def ERr(k): return 40 + 2 * k
def RCr(i, h): return 96 + 8 * i + 4 * h
def ex_ld(k, so): return f"buffer_load_dwordx2 {vr(ERr(k),2)}, v{L8}, {R4(SRD_WS)}, s{so} offen offset:{(k&7)*512} {SC}"
def rc_ld(): return [f"buffer_load_dwordx4 {vr(RCr(d-1,h),4)}, v{L16}, {R4(SRD_WS)}, s{S_RX+d-1} offen offset:{h*1024} {SC}" for h in range(2) for d in (1, 2, 3)]

def emit_xchg(em):
    e = em.e
    p = 200
    e(f"s_lshl_b32 s{S_X2}, s{S_KQ}, 2\ns_add_u32 s{S_X2}, s{S_X2}, s{S_XFL}\ns_lshl_b32 s{S_T}, s{S_KQ}, 7\ns_add_u32 s{S_XFL}, s{S_XFL}, s{S_T}")
    for d in (2, 1, 3):
        lam, j0 = d >> 1, (d & 1) * 4
        for h in range(2):
            for k in range(2):
                a = ACC(lam, j0 + 2 * h + k)
                e(f"v_cvt_pk_bf16_f32 v{p+2*k}, v{a}, v{a+1}\nv_cvt_pk_bf16_f32 v{p+2*k+1}, v{a+2}, v{a+3}")
            e(f"buffer_store_dwordx4 {vr(p,4)}, v{L16}, {R4(SRD_WS)}, s{S_TX+d-1} offen offset:{h*1024} {SC}")
            p += 4
    def acc4(a, b): e(f"v_dot2_f32_bf16 v{a}, v{b}, s{SLO}, v{a}\nv_dot2_f32_bf16 v{a+1}, v{b}, s{SHI}, v{a+1}\nv_dot2_f32_bf16 v{a+2}, v{b+1}, s{SLO}, v{a+2}\nv_dot2_f32_bf16 v{a+3}, v{b+1}, s{SHI}, v{a+3}")
    def finish(a, k):
        g = GG + 4 * k
        rnd(em, a)
        e(f"v_pk_mul_f32 {vr(a,2)}, {vr(a,2)}, {vr(g,2)}\nv_pk_mul_f32 {vr(a+2,2)}, {vr(a+2,2)}, {vr(g+2,2)}")
        rnd(em, a)
        e(f"v_pk_add_f32 {vr(a,2)}, {vr(a,2)}, {vr(XF+4*k,2)}\nv_pk_add_f32 {vr(a+2,2)}, {vr(a+2,2)}, {vr(XF+4*k+2,2)}")
        e(f"v_cvt_pk_bf16_f32 v{a}, v{a}, v{a+1}\nv_cvt_pk_bf16_f32 v{a+1}, v{a+2}, v{a+3}")
    EA = 36
    def exsum():
        e("\n".join(unpack_l(EA, ERr(0))))
        for k in range(1, 16): acc4(EA, ERr(k))
    stamp(em, "sent", 16)
    e(f"s_waitcnt vmcnt(6)\nv_cmp_ne_u32 vcc, 1, v{SNV}\ns_and_b32 s{S_T}, s{S_KQ}, 1\ns_or_b32 s{S_T}, s{S_T}, vcc_lo\ns_cselect_b32 s{S_EV}, 0, 1\ns_cbranch_scc1 K_NOER\ns_add_u32 s{S_T3}, s{S_EB}, 4096")
    for k in range(16): e(ex_ld(k, (S_EB, S_T3)[k >> 3]))
    em.label("K_NOER")
    for k in range(OPT["ng2"], max(OPT["ng2"], OPT["ng3"])): gcalc(em, k)
    PV, PX = 152, 153
    e(f"s_mov_b32 s{S_T2}, s{S_EV}\ns_and_b32 s{S_T}, s{S_KQ}, 1\ns_or_b32 s{S_EV}, s{S_EV}, s{S_T}\ns_cselect_b32 s{S_T}, 0, 16")
    e(f"v_and_b32 v{PX}, 3, v1\nv_lshl_add_u32 v{PX}, v{PX}, 2, s{S_XFL}\nv_add_u32 v7, s{S_EFL}, v7\nv_cmp_gt_u32 vcc, s{S_T}, v1\ns_add_u32 s{S_T3}, s{S_KQ}, 16\ns_nop 0\nv_cndmask_b32 v{PV}, v{PX}, v7, vcc")
    poll = f"buffer_load_dword v{SNV}, v{PV}, {R4(SRD_WS)}, 0 offen {SC}"
    e(f"s_waitcnt vmcnt(16)\ns_cmp_lg_u32 s{S_T2}, 0\ns_cbranch_scc1 K_FLAGGED\ns_waitcnt vmcnt(0)")
    em.label("K_FLAGGED")
    e(f"{poll}\ns_mov_b32 exec_lo, s{S_FM}\ns_mov_b32 exec_hi, 0\nbuffer_store_dword v5, v{FLV}, {R4(SRD_WS)}, s{S_X2} offen {SC}\ns_mov_b64 exec, -1")
    stamp(em, "flagd", 16)
    for k in range(max(OPT["ng2"], OPT["ng3"]), 5): gcalc(em, k)
    e("s_waitcnt vmcnt(2)")
    exsum()
    if not OPT["dbgx"] & 1: e(f"s_cmp_lg_u32 s{S_VAL}, 0\ns_cbranch_scc1 K_YG")
    em.label("K_YGD")
    e(f"s_waitcnt vmcnt(1)\ns_branch K_XW")
    em.label("K_XPOLL")
    spin(em, OPT["xs"])
    e(f"{poll}\ns_waitcnt vmcnt(0)")
    em.label("K_XW")
    e(f"v_writelane_b32 v{SNV}, 1, s{S_T3}\nv_cmp_ne_u32 vcc, 1, v{SNV}\ns_cmp_lg_u32 s{S_EV}, 0\ns_cbranch_scc1 K_XW2\ns_and_b32 s{S_T}, vcc_lo, 0xffff\ns_cbranch_scc1 K_XPOLL")
    e(f"s_add_u32 s{S_T}, s{S_EB}, 4096\ns_mov_b32 s{S_EV}, 2\nv_mov_b32 v{PV}, v{PX}")
    for k in range(16): e(ex_ld(k, (S_EB, S_T)[k >> 3]))
    em.label("K_XW2")
    e(f"s_and_b32 s{S_T}, vcc_lo, 0xf0000\ns_cbranch_scc1 K_XPOLL")
    for x in rc_ld(): e(x)
    stamp(em, "xchg")
    for k in range(5): e("\n".join(unpack_l(XF + 4 * k, XL + 2 * k)))
    e(f"s_cmp_lg_u32 s{S_EV}, 2\ns_cbranch_scc1 K_EFIN\ns_waitcnt vmcnt(6)")
    exsum()
    e("s_nop 1")
    em.label("K_EFIN")
    finish(EA, 4)
    e(f"buffer_store_dwordx2 {vr(EA,2)}, v{XE}, {R4(SRD_OUT)}, s{S_XE} offen {OSC()}\ns_add_u32 s{S_T}, s{S_W4K}, {2*U}\nv_add_u32 v5, s{S_T}, v{L16}\ns_add_u32 s{S_T}, s{S_XR}, {8*1152}")
    for h in range(2):
        e(f"s_waitcnt vmcnt({4 - 3*h})")
        for i in range(3):
            for k in (2 * h, 2 * h + 1): acc4(ACC(0, k), RCr(i, h) + 2 * (k & 1))
        for k in (2 * h, 2 * h + 1):
            finish(ACC(0, k), k)
            e(f"ds_write_b64 v{XA+k}, {vr(ACC(0,k),2)}")
    e(f"ds_read_b128 {vr(40,4)}, v5\nds_read_b128 {vr(44,4)}, v5 offset:1024")
    for i in range(2):
        e(f"s_waitcnt lgkmcnt({1-i})\nbuffer_store_dwordx4 {vr(40+4*i,4)}, v{XV}, {R4(SRD_OUT)}, s{(S_XR, S_T)[i]} offen {OSC()}")

def emit_ygather(em):
    e = em.e
    from moe import YTS, unpack
    RD = [112 + 4 * i for i in range(5)]
    XR, AD = 134, 245
    A, B = 112, 116
    em.label("K_YSPIN")
    spin(em, 4)
    e(f"buffer_load_dwordx2 v[252:253], v{PFV}, {R4(SRD_FO)}, s{S_PF} offen {SC}\ns_waitcnt vmcnt(0)")
    em.label("K_YR0")
    e(f"s_cmp_lg_u32 s{S_PASS}, 0\ns_cbranch_scc1 K_YR0B\ns_waitcnt vmcnt(3)\nv_cmp_gt_u32 vcc, 9, v252\ns_cbranch_vccnz K_YSPIN")
    em.label("K_YR0B")
    e(f"s_mul_i32 s{S_T3}, s{S_GD}, {YTS}\ns_mul_i32 s{S_T}, s{S_WAVE}, 4608\ns_add_u32 s{S_T3}, s{S_T3}, s{S_T}\ns_add_u32 s{S_T3}, s{S_T3}, {hex(WS_YP - YTS)}\ns_add_u32 s{S_T}, s{S_T3}, 4096")
    for i in range(4): e(f"buffer_load_dwordx4 {vr(RD[i],4)}, v{L16}, {R4(SRD_WS)}, s{S_T3} offen offset:{i*1024} {SC}")
    e(f"v_subrev_u32 v{AD}, 1, v{IDXV}\nv_and_b32 v{AD}, 0x7ff, v{AD}\nv_mul_u32_u24 v{AD}, 0x480, v{AD}\nv_mov_b64 {vr(RD[4],2)}, 0\nv_mov_b64 {vr(RD[4]+2,2)}, 0\ns_lshl_b32 s{S_SA}, s{S_GD}, 3\ns_sub_u32 s{S_SA}, s{S_SA}, 8")
    e(f"s_mov_b32 exec_hi, 0\nbuffer_load_dwordx4 {vr(RD[4],4)}, v{L16}, {R4(SRD_WS)}, s{S_T} offen {SC}")
    e(f"s_mov_b32 exec_lo, 0xff\nbuffer_load_dwordx2 {vr(XR,2)}, v{AD}, {R4(SRD_WS)}, s{S_SA} offen {SC}\ns_mov_b64 exec, -1\ns_branch K_LAST")
    em.label("K_YRA")
    e(f"s_waitcnt vmcnt({min(63, YW[1])})")
    for i in range(1, 5): e(f"v_pk_add_f32 {vr(A,2)}, {vr(A,2)}, {vr(RD[i],2)}\nv_pk_add_f32 {vr(A+2,2)}, {vr(A+2,2)}, {vr(RD[i]+2,2)}")
    e(f"s_lshl_b32 s{S_T}, s{S_NB}, 10\ns_lshl_b32 s{S_T2}, s{S_WAVE}, 7\ns_add_u32 s{S_T}, s{S_T}, s{S_T2}")
    for r in range(4): e(f"v_add_f32_dpp v{A+r}, v{A+r}, v{A+r} row_ror:8 row_mask:0xf bank_mask:0xf")
    e(f"s_add_u32 s{S_T}, s{S_T}, {L_CHK + 128}\nv_and_b32 v{B+4}, 0x70, v{L16}\nv_add_u32 v{B+4}, s{S_T}, v{B+4}")
    for op in ("v_permlane16_swap_b32", "v_permlane32_swap_b32"):
        for r in range(4): e(f"v_mov_b32 v{B+r}, v{A+r}")
        for r in range(4): e(f"{op} v{A+r}, v{B+r}")
        e(f"v_pk_add_f32 {vr(A,2)}, {vr(A,2)}, {vr(B,2)}\nv_pk_add_f32 {vr(A+2,2)}, {vr(A+2,2)}, {vr(B+2,2)}")
    e(f"ds_write_b128 v{B+4}, {vr(A,4)}\nv_subrev_u32 v{B+4}, s{S_T2}, v{B+4}\ns_branch K_YRAD")
    em.label("K_YR1")
    for w in range(4): e(f"ds_read_b128 {vr(144+4*w,4)}, v{B+4} offset:{w*128}")
    e(f"v_mov_b32_dpp v160, v{IDXV} row_ror:8 row_mask:0xf bank_mask:0xf\nv_mul_u32_u24 v{AD}, 0x480, v1\ns_mov_b32 s{NL}, 0xbfb8aa3b\ns_mov_b32 s{M}, 0xffff0000\nv_and_b32 v160, s{M}, v160\ns_waitcnt lgkmcnt(0)")
    for h in (0, 2): e(f"v_pk_add_f32 {vr(A+h,2)}, {vr(144+h,2)}, {vr(148+h,2)}\nv_pk_add_f32 {vr(B+h,2)}, {vr(152+h,2)}, {vr(156+h,2)}\nv_pk_add_f32 {vr(A+h,2)}, {vr(A+h,2)}, {vr(B+h,2)}")
    def rnd(em, t): em.e(f"v_cvt_pk_bf16_f32 v162, v{t}, v{t+1}\nv_cvt_pk_bf16_f32 v163, v{t+2}, v{t+3}\n" + "\n".join(unpack_l(t, 162)))
    rnd(em, A)
    for r in range(4): e(f"v_mul_f32 v{A+r}, v160, v{A+r}")
    rnd(em, A)
    e(unpack(B, XR))
    e(f"v_pk_add_f32 {vr(A,2)}, {vr(A,2)}, {vr(B,2)}\nv_pk_add_f32 {vr(A+2,2)}, {vr(A+2,2)}, {vr(B+2,2)}")
    rnd(em, A)
    for r in range(4): e(f"v_mul_f32 v{B+r}, s{NL}, v{A+r}")
    for r in range(4): e(f"v_exp_f32 v{B+r}, v{B+r}")
    e("s_nop 0")
    for r in range(4): e(f"v_add_f32 v{B+r}, 1.0, v{B+r}")
    for r in range(4): e(f"v_rcp_f32 v{B+r}, v{B+r}")
    e(f"s_add_u32 s{S_T}, s{S_SA}, {hex(WS_GS)}")
    e(f"v_pk_mul_f32 {vr(A,2)}, {vr(A,2)}, {vr(B,2)}\nv_pk_mul_f32 {vr(A+2,2)}, {vr(A+2,2)}, {vr(B+2,2)}")
    e(f"v_cvt_pk_bf16_f32 v{XR}, v{A}, v{A+1}\nv_cvt_pk_bf16_f32 v{XR+1}, v{A+2}, v{A+3}\ns_mov_b64 exec, 0xff")
    e(f"buffer_store_dwordx2 {vr(XR,2)}, v{AD}, {R4(SRD_WS)}, s{S_T} offen {SC}\ns_mov_b64 exec, -1\ns_branch K_YR1D")
    em.label("K_YR2")
    e(f"s_waitcnt vmcnt({min(63, YW[0])})\ns_and_b32 s{S_T}, s{S_RD}, 15\ns_lshl_b32 s{S_T}, s{S_T}, 7\ns_add_u32 s{S_T}, s{S_T}, {hex(WS_YC + 2048)}\ns_mov_b64 exec, 1\nbuffer_atomic_add v5, v{L16}, {R4(SRD_WS)}, s{S_T} offen sc1\ns_mov_b64 exec, -1\ns_branch K_YR2D")
    em.label("K_YG")
    e(f"v_mov_b32 v157, -1")
    em.label("K_YG1")
    e(f"s_ff1_i32_b32 s{S_T}, s{S_VAL}\ns_bitset0_b32 s{S_VAL}, s{S_T}\nv_readlane_b32 s{S_T2}, v{RWV}, s{S_T}\nv_mov_b32 v158, s{S_T}\ns_nop 0\nv_cmp_eq_u32 vcc, s{S_T2}, v3\ns_cmp_lg_u32 s{S_VAL}, 0\ns_nop 0\nv_cndmask_b32 v157, v157, v158, vcc\ns_cbranch_scc1 K_YG1")
    e(f"v_mul_u32_u24 v158, 0x480, v157\nv_lshl_add_u32 v158, v4, 3, v158")
    e(f"s_lshl_b32 s{S_T}, s{S_NB}, 8\ns_add_u32 s{S_T}, s{S_T}, s{S_X0}\ns_add_u32 s{S_T}, s{S_T}, {hex(WS_GS)}\ns_lshl_b32 s{S_T2}, s{S_NB}, 5\ns_add_u32 s{S_T2}, s{S_T2}, {hex(WS_GS + 1024)}\ns_branch K_YG3")
    em.label("K_YG2")
    spin(em, 2)
    e(f"buffer_load_dword v{SNY}, v6, {R4(SRD_WS)}, 0 offen {SC}\ns_waitcnt vmcnt(0)")
    em.label("K_YG3")
    e(f"v_cmp_gt_u32 vcc, 9, v{SNY}\ns_cbranch_vccnz K_YG2")
    e("v_cmp_gt_u32 vcc, 8, v157\ns_nop 1\ns_mov_b64 exec, vcc")
    for k in range(5): e(f"buffer_load_dwordx2 {vr(160+2*k,2)}, v158, {R4(SRD_WS)}, s{S_T if k < 4 else S_T2} offen offset:{k*32 if k < 4 else 0} {SC}")
    e("s_waitcnt vmcnt(0)")
    for k in range(5): e("\n".join(unpack_l(GG + 4 * k, 160 + 2 * k)))
    e("s_mov_b64 exec, -1\ns_branch K_YGD")
```
